```python
import torch

def _softmax(x, axis=-1):
    return torch.softmax(x, dim=axis)
def _gelu(x):
    return torch.nn.functional.gelu(x, approximate="tanh")
def _silu(x):
    return torch.nn.functional.silu(x)
def _sigmoid(x):
    return torch.sigmoid(x)
def _layernorm(x, axis=-1, eps=1e-5):
    m = x.mean(dim=axis, keepdim=True)
    v = x.var(dim=axis, keepdim=True, unbiased=False)
    return (x - m) / torch.sqrt(v + eps)
def _scatter_add(tgt, idx, src, axis=0):
    return tgt.clone().index_add_(axis, idx, src)
def _segment_sum(src, seg, n):
    out = torch.zeros((n,) + src.shape[1:], dtype=src.dtype)
    return out.index_add_(0, seg, src)
def _pad(x, pw):
    flat = tuple(v for pair in reversed(pw) for v in pair)
    return torch.nn.functional.pad(x, flat)

kernel_name = 'recurrent_scan__sliding_block_cached__geglu_ffn__prompt'

def setup_inputs():

    _w = (lambda a: (lambda t: t.to(torch.bfloat16) if t.is_floating_point() else t)(torch.as_tensor(a)))
    def _A_setup():
        B, Sq, D = 1, 2048, 512
        Hq, Hkv, Sk, Dh = 32, 32, 2048, 128
        assert Hq % Hkv == 0, (Hq, Hkv)
        return {
            "x": _w((lambda *s: torch.randn(*s, dtype=torch.bfloat16) * 0.05)(B, Sq, D)),
            "k_cache": _w((lambda *s: torch.randn(*s, dtype=torch.bfloat16) * 0.8)(B, Hkv, Sk, Dh)),
            "v_cache": _w((lambda *s: torch.randn(*s, dtype=torch.bfloat16) * 0.2)(B, Hkv, Sk, Dh)),
            "wq": _w((lambda *s: torch.randn(*s, dtype=torch.bfloat16) * 0.8)(D, Hq * Dh) * (D ** -0.5)),
            "wo": _w((lambda *s: torch.randn(*s, dtype=torch.bfloat16) * 0.2)(Hq * Dh, D) * ((Hq * Dh) ** -0.5)),
        }
    _A_in = _A_setup()

    def _B_setup():
        B, S, D, F = 1, 2048, 512, 1376
        return {
            "x": _w((lambda *s: torch.randn(*s, dtype=torch.bfloat16) * 0.05)(B, S, D)),
            "w_gate": _w((lambda *s: torch.randn(*s, dtype=torch.bfloat16) * 0.1)(D, F)),
            "w_up": _w((lambda *s: torch.randn(*s, dtype=torch.bfloat16) * 0.1)(D, F)),
            "w_down": _w((lambda *s: torch.randn(*s, dtype=torch.bfloat16) * 0.1)(F, D)),
        }
    _B_in = _B_setup()

    return {
        "A_x": _A_in["x"],
        "A_k_cache": _A_in["k_cache"],
        "A_v_cache": _A_in["v_cache"],
        "A_wq": _A_in["wq"],
        "A_wo": _A_in["wo"],
        "B_x": _B_in["x"],
        "B_w_gate": _B_in["w_gate"],
        "B_w_up": _B_in["w_up"],
        "B_w_down": _B_in["w_down"],
    }

def reference(A_x, A_k_cache, A_v_cache, A_wq, A_wo, B_x, B_w_gate, B_w_up, B_w_down):
    def _A_ref(x, k_cache, v_cache, wq, wo):
        B, Sq, D = x.shape
        Hq, Dh = 32, 128
        Hkv, Sk = k_cache.shape[1], k_cache.shape[2]
        W = min(4096, max(256, Sk // 4))
        rep = Hq // Hkv
        q = (lambda x, *d: x.permute(*d))((x @ wq).reshape(B, Sq, Hq, Dh), 0, 2, 1, 3)
        k = (lambda x, n, axis: torch.repeat_interleave(x, n, dim=axis))(k_cache[:, :, Sk - W:, :], rep, axis=1)
        v = (lambda x, n, axis: torch.repeat_interleave(x, n, dim=axis))(v_cache[:, :, Sk - W:, :], rep, axis=1)
        scores = torch.einsum("bhqd,bhkd->bhqk", q, k) * (Dh ** -0.5)
        p = _softmax(scores, axis=-1)
        o = torch.einsum("bhqk,bhkd->bhqd", p, v)
        return (lambda x, *d: x.permute(*d))(o, 0, 2, 1, 3).reshape(B, Sq, Hq * Dh) @ wo

    def _B_ref(x, w_gate, w_up, w_down):
        return (_gelu(x @ w_gate) * (x @ w_up)) @ w_down

    x = A_x
    xn = _layernorm(x, axis=-1)
    s = _A_ref(xn, A_k_cache, A_v_cache, A_wq, A_wo)
    g = _silu(_B_ref(xn, B_w_gate, B_w_up, B_w_down))
    return x + s * g
```

```python
import re

_RANGE = re.compile(r"^-?(?:abs\()?([vsa])\[(\d+):(\d+)\]\)?$")
_SINGLE = re.compile(r"^-?(?:abs\()?([vsa])(\d+)\)?$")


def regs_of(op):
    if not isinstance(op, str):
        return None, []
    m = _RANGE.match(op)
    if m:
        return m.group(1), list(range(int(m.group(2)), int(m.group(3)) + 1))
    m = _SINGLE.match(op)
    if m:
        return m.group(1), [int(m.group(2))]
    if op == "vcc":
        return "s", [106, 107]
    if op == "m0":
        return "s", [124]
    if op == "exec":
        return "s", [126, 127]
    return None, []


def v(i, n=1):
    return "v%d" % i if n == 1 else "v[%d:%d]" % (i, i + n - 1)


def s(i, n=1):
    return "s%d" % i if n == 1 else "s[%d:%d]" % (i, i + n - 1)


TRANS = ("v_exp_f32", "v_rcp_f32", "v_rsq_f32", "v_sqrt_f32", "v_log_f32")


class Kern:
    def __init__(self, name):
        self.name = name
        self.lines = []
        self.pos = 0
        self.valu_w = {}
        self.trans_w = {}
        self.mfma_w = {}
        self.mfma_c = {}
        self.store_d = {}
        self.valu_sw = {}
        self.salu_m0 = -100
        self.vmq = []
        self.lgq = []
        self.nid = 0
        self.maxv = 0
        self.count = {}

    def raw(self, text):
        self.lines.append(text)

    def comment(self, text):
        self.lines.append("    ; " + text)

    def label(self, name):
        self.lines.append(name + ":")

    def nop(self, n):
        while n > 0:
            k = min(n, 16)
            self.lines.append("    s_nop %d" % (k - 1))
            self.pos += k
            n -= k

    def _need(self, prevpos, n):
        gap = self.pos - prevpos - 1
        return max(0, n - gap)

    def emit(self, opc, *ops, mods=""):
        ops = [str(o) for o in ops]
        need = 0
        vr, vw, sr, sw = [], [], [], []
        kind = None
        cregs = []

        def addr(lst_v, lst_s, op):
            k, r = regs_of(op)
            if k == "v":
                lst_v.extend(r)
            elif k == "s":
                lst_s.extend(r)

        if opc.startswith("v_mfma"):
            kind = "mfma"
            addr(vw, sw, ops[0])
            addr(vr, sr, ops[1])
            addr(vr, sr, ops[2])
            k, r = regs_of(ops[3])
            cregs = r if k == "v" else []
        elif opc.startswith("v_permlane"):
            kind = "perm"
            for o in ops[:2]:
                addr(vr, sr, o)
                addr(vw, sw, o)
        elif opc.startswith("v_readfirstlane") or opc.startswith("v_readlane"):
            kind = "rfl"
            addr(vw, sw, ops[0])
            for o in ops[1:]:
                addr(vr, sr, o)
        elif opc.startswith("v_cmp"):
            kind = "valu"
            addr(vw, sw, ops[0])
            for o in ops[1:]:
                addr(vr, sr, o)
        elif opc.startswith("v_"):
            kind = "trans" if opc in TRANS else "valu"
            addr(vw, sw, ops[0])
            for o in ops[1:]:
                addr(vr, sr, o)
            if opc.startswith("v_fmac"):
                addr(vr, sr, ops[0])
            if opc.startswith("v_cndmask") and len(ops) == 3:
                sr.extend([106, 107])
        elif opc.startswith("ds_read") or opc.startswith("ds_swizzle") or opc.startswith("ds_bpermute"):
            kind = "dsr"
            addr(vw, sw, ops[0])
            for o in ops[1:]:
                addr(vr, sr, o)
        elif opc.startswith("ds_write"):
            kind = "dsw"
            for o in ops:
                addr(vr, sr, o)
        elif opc.startswith("buffer_load") or opc.startswith("global_load"):
            if "lds" in mods.split():
                kind = "dma"
                for o in ops:
                    addr(vr, sr, o)
            else:
                kind = "vload"
                addr(vw, sw, ops[0])
                for o in ops[1:]:
                    addr(vr, sr, o)
        elif opc.startswith("buffer_store") or opc.startswith("global_store"):
            kind = "vstore"
            for o in ops:
                addr(vr, sr, o)
        elif opc.startswith("s_"):
            kind = "salu"
            if opc.startswith("s_cmp") or opc.startswith("s_cbranch") or opc.startswith("s_branch") or opc in (
                "s_barrier", "s_waitcnt", "s_endpgm", "s_setprio", "s_nop"):
                for o in ops:
                    addr(vr, sr, o)
            else:
                addr(vw, sw, ops[0])
                for o in ops[1:]:
                    addr(vr, sr, o)
        else:
            raise ValueError("unknown opcode " + opc)

        if kind == "mfma":
            for r in vr + cregs:
                if r in self.valu_w:
                    need = max(need, self._need(self.valu_w[r], 2))
            for r in vr:
                if r in self.mfma_w:
                    need = max(need, self._need(self.mfma_w[r][0], 12))
            for r in cregs:
                if r in self.mfma_w:
                    p, rng = self.mfma_w[r]
                    if rng != tuple(cregs):
                        need = max(need, self._need(p, 10))
            for r in vw:
                if r in self.mfma_w:
                    p, rng = self.mfma_w[r]
                    if rng != tuple(vw) or tuple(cregs) != tuple(vw):
                        need = max(need, self._need(p, 12))
        if kind in ("valu", "trans", "perm", "rfl"):
            for r in vr + vw:
                if r in self.mfma_w:
                    need = max(need, self._need(self.mfma_w[r][0], 12))
            for r in vw:
                if r in self.mfma_c:
                    need = max(need, self._need(self.mfma_c[r], 7))
                if r in self.store_d:
                    need = max(need, self._need(self.store_d[r], 2))
            if kind != "trans":
                for r in vr:
                    if r in self.trans_w:
                        need = max(need, self._need(self.trans_w[r], 1))
            for r in sr:
                if r in self.valu_sw:
                    need = max(need, self._need(self.valu_sw[r], 2))
            if kind == "perm":
                for r in vr:
                    if r in self.valu_w:
                        need = max(need, self._need(self.valu_w[r], 2))
            if kind == "rfl":
                for r in vr:
                    if r in self.valu_w:
                        need = max(need, self._need(self.valu_w[r], 1))
        if kind in ("dsr", "dsw", "vload", "vstore", "dma"):
            for r in vr + vw:
                if r in self.mfma_w:
                    need = max(need, self._need(self.mfma_w[r][0], 12))
            for r in vw:
                if r in self.mfma_c:
                    need = max(need, self._need(self.mfma_c[r], 7))
                if r in self.store_d:
                    need = max(need, self._need(self.store_d[r], 1))
            for r in sr:
                if r in self.valu_sw:
                    need = max(need, self._need(self.valu_sw[r], 5))
            if kind == "dma":
                need = max(need, self._need(self.salu_m0, 1))
        if kind == "salu":
            for r in sr:
                if r in self.valu_sw:
                    need = max(need, self._need(self.valu_sw[r], 4))
        if need:
            self.nop(need)

        text = "    " + opc
        if ops:
            text += " " + ", ".join(ops)
        if mods:
            text += " " + mods
        self.lines.append(text)
        p = self.pos
        self.pos += 1
        self.count[kind] = self.count.get(kind, 0) + 1
        for r in vr + vw + cregs:
            self.maxv = max(self.maxv, r)

        if kind == "mfma":
            for r in vw:
                self.mfma_w[r] = (p, tuple(vw))
                self.valu_w.pop(r, None)
            for r in cregs:
                self.mfma_c[r] = p
        if kind in ("valu", "trans", "perm", "rfl"):
            for r in vw:
                self.valu_w[r] = p
                self.mfma_w.pop(r, None)
                if kind == "trans":
                    self.trans_w[r] = p
                else:
                    self.trans_w.pop(r, None)
            for r in sw:
                self.valu_sw[r] = p
        if kind in ("dsr", "vload"):
            for r in vw:
                self.valu_w.pop(r, None)
                self.mfma_w.pop(r, None)
                self.trans_w.pop(r, None)
        if kind == "vstore" and ("x4" in opc or "x3" in opc):
            k, r0 = regs_of(ops[0])
            for r in r0:
                self.store_d[r] = p
        if kind == "salu":
            for r in sw:
                self.valu_sw.pop(r, None)
                if r == 124:
                    self.salu_m0 = p
        oid = None
        if kind in ("vload", "vstore", "dma"):
            self.nid += 1
            oid = self.nid
            self.vmq.append(oid)
        if kind in ("dsr", "dsw"):
            self.nid += 1
            oid = self.nid
            self.lgq.append(oid)
            assert len(self.lgq) <= 15 or True
        return oid

    def wait_vm(self, oid):
        if oid not in self.vmq:
            return
        n = len(self.vmq) - 1 - self.vmq.index(oid)
        assert n <= 63
        self.emit("s_waitcnt", "vmcnt(%d)" % n)
        self.vmq = self.vmq[len(self.vmq) - n:] if n else []

    def wait_lg(self, oid):
        if oid not in self.lgq:
            return
        n = len(self.lgq) - 1 - self.lgq.index(oid)
        assert n <= 15, n
        self.emit("s_waitcnt", "lgkmcnt(%d)" % n)
        self.lgq = self.lgq[len(self.lgq) - n:] if n else []

    def wait_all(self):
        self.emit("s_waitcnt", "vmcnt(0) lgkmcnt(0)")
        self.vmq = []
        self.lgq = []

    def wait_lg0(self):
        self.emit("s_waitcnt", "lgkmcnt(0)")
        self.lgq = []

    def wait_vm0(self):
        self.emit("s_waitcnt", "vmcnt(0)")
        self.vmq = []

    def srd(self, d, base, nbytes, add=0):
        if add:
            self.emit("s_add_u32", s(d), s(base), add)
            self.emit("s_addc_u32", s(d + 1), s(base + 1), 0)
            self.emit("s_and_b32", s(d + 1), s(d + 1), 0xFFFF)
        else:
            self.emit("s_mov_b32", s(d), s(base))
            self.emit("s_and_b32", s(d + 1), s(base + 1), 0xFFFF)
        self.emit("s_mov_b32", s(d + 2), nbytes)
        self.emit("s_mov_b32", s(d + 3), 0x00020000)

    def text(self, nvgpr, nsgpr=102):
        out = []
        out.append(".globl %s" % self.name)
        out.append(".p2align 8")
        out.append(".type %s,@function" % self.name)
        out.append("%s:" % self.name)
        out.extend(self.lines)
        out.append("    s_endpgm")
        body = "\n".join(out)
        acc = (nvgpr + 3) // 4 * 4
        desc = """.p2align 6
.amdhsa_kernel %s
  .amdhsa_next_free_vgpr %d
  .amdhsa_next_free_sgpr %d
  .amdhsa_accum_offset %d
  .amdhsa_group_segment_fixed_size 0
  .amdhsa_kernarg_size 96
  .amdhsa_user_sgpr_count 2
  .amdhsa_user_sgpr_kernarg_segment_ptr 1
  .amdhsa_system_sgpr_workgroup_id_x 1
.end_amdhsa_kernel""" % (self.name, nvgpr, nsgpr, acc)
        return body, desc
```

```python
import struct
from asmlib import Kern, v, s

XN_OFF = 0
O_OFF = 2 << 20
H_OFF = 18 << 20
H_STRIDE = 2816
LOG2E = 1.4426950408889634
SLOT = 32768
NSLOT = 5
G_REG = 16384
U_REG = 22656


def f32(x):
    return "0x%08x" % struct.unpack("<I", struct.pack("<f", x))[0]


def gen_attn():
    k = Kern("attn_kernel")

    def rawi(text):
        k.raw("    " + text)
        k.pos += 1

    k.emit("s_cmp_ge_u32", s(2), 256)
    k.emit("s_cbranch_scc1", "L_at_end")
    k.emit("s_load_dwordx4", s(4, 4), s(0, 2), 8)
    k.emit("s_load_dwordx2", s(8, 2), s(0, 2), 24)
    k.emit("s_load_dwordx4", s(12, 4), s(0, 2), 48)
    k.emit("s_load_dwordx2", s(10, 2), s(0, 2), 88)
    LANE, VX, VW, VG, VK, VV, T0, VA, VF, T1, T2, T3 = 1, 2, 3, 4, 5, 6, 7, 8, 12, 13, 14, 15
    k.emit("v_lshrrev_b32", v(T0), 6, v(0))
    k.emit("v_and_b32", v(LANE), 63, v(0))
    k.emit("v_readfirstlane_b32", s(48), v(T0))
    k.emit("s_and_b32", s(49), s(2), 7)
    k.emit("s_lshl_b32", s(49), s(49), 2)
    k.emit("s_lshr_b32", s(51), s(2), 3)
    k.emit("s_and_b32", s(51), s(51), 3)
    k.emit("s_add_u32", s(49), s(49), s(51))
    k.emit("s_lshr_b32", s(50), s(2), 5)
    SW1024, SW2048, SW65536, SW768, SW22016 = 52, 53, 54, 55, 56
    k.emit("s_lshl_b32", s(SW1024), s(48), 10)
    k.emit("s_lshl_b32", s(SW2048), s(48), 11)
    k.emit("s_lshl_b32", s(SW65536), s(48), 16)
    k.emit("s_mul_i32", s(SW768), s(48), 768)
    k.emit("s_mul_i32", s(SW22016), s(48), 22016)
    k.raw("    s_waitcnt lgkmcnt(0)")

    def srd_dyn(d, base, off_s, nrec_s=None, nrec=None, add=0):
        k.emit("s_add_u32", s(d), s(base), s(off_s))
        k.emit("s_addc_u32", s(d + 1), s(base + 1), 0)
        if add:
            k.emit("s_add_u32", s(d), s(d), add)
            k.emit("s_addc_u32", s(d + 1), s(d + 1), 0)
        k.emit("s_and_b32", s(d + 1), s(d + 1), 0xFFFF)
        if nrec_s is not None:
            k.emit("s_mov_b32", s(d + 2), s(nrec_s))
        else:
            k.emit("s_mov_b32", s(d + 2), nrec)
        k.emit("s_mov_b32", s(d + 3), 0x00020000)

    XN, WQ, GS, US, KS, VS, OS, HS = 16, 20, 24, 28, 32, 36, 40, 44
    k.emit("s_lshl_b32", s(57), s(50), 18)
    srd_dyn(XN, 10, 57, nrec=256 * 1024, add=XN_OFF)
    k.emit("s_lshl_b32", s(57), s(49), 8)
    k.emit("s_sub_u32", s(58), 4 << 20, s(57))
    srd_dyn(WQ, 8, 57, nrec_s=58)
    k.emit("s_lshl_b32", s(59), s(49), 5)
    SH32 = 59
    k.emit("s_sub_u32", s(58), 512 * 2752, s(SH32))
    srd_dyn(GS, 12, SH32, nrec_s=58)
    srd_dyn(US, 14, SH32, nrec_s=58)
    k.emit("s_lshl_b32", s(58), s(49), 19)
    srd_dyn(KS, 4, 58, nrec=131072, add=1536 * 256)
    srd_dyn(VS, 6, 58, nrec=131072, add=1536 * 256)
    k.emit("s_lshl_b32", s(58), s(50), 21)
    k.emit("s_add_u32", s(58), s(58), s(57))
    k.emit("s_sub_u32", s(60), 256 * 8192, s(57))
    srd_dyn(OS, 10, 58, nrec_s=60, add=O_OFF)
    k.emit("s_mul_i32", s(58), s(50), 256 * H_STRIDE)
    srd_dyn(HS, 10, 58, nrec=256 * H_STRIDE, add=H_OFF)

    HH = T3
    k.emit("v_lshrrev_b32", v(HH), 5, v(LANE))
    k.emit("v_and_b32", v(T0), 31, v(LANE))
    k.emit("s_lshl_b32", s(57), s(48), 5)
    k.emit("v_add_u32", v(T0), s(57), v(T0))
    k.emit("v_lshlrev_b32", v(T0), 10, v(T0))
    k.emit("v_lshl_add_u32", v(VX), v(HH), 4, v(T0))
    k.emit("v_lshrrev_b32", v(T0), 4, v(LANE))
    k.emit("v_bfe_u32", v(T1), v(LANE), 2, 2)
    k.emit("v_xor_b32", v(T1), v(T1), v(T0))
    k.emit("v_lshlrev_b32", v(T1), 6, v(T1))
    k.emit("v_and_b32", v(T2), 3, v(LANE))
    k.emit("v_lshl_add_u32", v(T1), v(T2), 4, v(T1))
    k.emit("v_lshl_add_u32", v(VW), v(T0), 13, v(T1))
    k.emit("v_lshl_add_u32", v(VV), v(T0), 8, v(T1))
    k.emit("s_and_b32", s(57), s(48), 3)
    k.emit("s_lshl_b32", s(57), s(57), 2)
    k.emit("v_add_u32", v(T1), s(57), v(T0))
    k.emit("v_and_b32", v(T2), 15, v(LANE))
    k.emit("v_xor_b32", v(T1), v(T1), v(T2))
    k.emit("v_lshlrev_b32", v(T1), 4, v(T1))
    k.emit("v_lshl_add_u32", v(VK), v(T0), 8, v(T1))
    k.emit("v_mul_u32_u24", v(T0), 43, v(LANE))
    k.emit("v_lshrrev_b32", v(T0), 8, v(T0))
    k.emit("v_mul_u32_u24", v(T1), 6, v(T0))
    k.emit("v_sub_u32", v(T1), v(LANE), v(T1))
    k.emit("v_mul_u32_u24", v(T0), 2752, v(T0))
    k.emit("v_lshrrev_b32", v(T2), 1, v(T1))
    k.emit("v_lshl_add_u32", v(T0), v(T2), 10, v(T0))
    k.emit("v_and_b32", v(T1), 1, v(T1))
    k.emit("v_lshl_add_u32", v(VG), v(T1), 4, v(T0))
    k.emit("v_bfe_u32", v(T0), v(LANE), 2, 2)
    k.emit("v_and_b32", v(T2), 1, v(LANE))
    k.emit("v_lshlrev_b32", v(T1), 4, v(T2))
    k.emit("v_and_b32", v(T2), 2, v(LANE))
    k.emit("v_lshl_add_u32", v(T1), v(T2), 2, v(T1))
    k.emit("v_bfe_u32", v(T2), v(LANE), 4, 1)
    k.emit("v_lshl_add_u32", v(T1), v(T2), 5, v(T1))
    k.emit("v_mul_u32_u24", v(VF), U_REG - G_REG - 32, v(T2))
    k.emit("v_add_u32", v(VF), v(VF), v(T1))
    k.emit("v_lshl_add_u32", v(T2), v(HH), 3, v(T0))
    k.emit("v_mul_u32_u24", v(T2), 96, v(T2))
    k.emit("v_add_u32", v(VF), v(VF), v(T2))
    k.emit("v_add_u32", v(VF), G_REG, v(VF))
    k.emit("v_lshl_add_u32", v(T2), v(HH), 3, v(T0))
    k.emit("v_lshl_add_u32", v(T1), v(T2), 8, v(T1))
    for dt in range(4):
        k.emit("v_xor_b32", v(T2), dt, v(T0))
        k.emit("v_lshl_add_u32", v(VA + dt), v(T2), 6, v(T1))

    ACCQ, ACCF, XF, WF = 16, 80, 128, 176
    QF, SP, SACC, KF, KA, MX = 224, 80, 16, 48, 208, 13
    OACC, VFR, TMP = 16, 208, 240

    dma_last = {}
    xn_last = {}

    def dma_stage(st):
        if st > 15:
            return
        slot = (st % NSLOT) * SLOT
        if st < 8:
            k0 = 64 * st
            for j in range(2):
                k.emit("s_add_u32", "m0", s(SW2048), slot + 1024 * j)
                k.emit("s_add_u32", s(61), s(SW65536), k0 * 8192 + j * 32768)
                k.emit("buffer_load_dwordx4", v(VW), s(WQ, 4), s(61), mods="offen lds")
            rawi("s_mov_b32 exec_hi, 0xffff")
            k.emit("s_add_u32", "m0", s(SW768), slot + G_REG)
            k.emit("s_add_u32", s(61), s(SW22016), k0 * 2752)
            k.emit("buffer_load_dwordx4", v(VG), s(GS, 4), s(61), mods="offen lds")
            k.emit("s_add_u32", "m0", s(SW768), slot + U_REG)
            k.emit("s_nop", 0)
            oid = k.emit("buffer_load_dwordx4", v(VG), s(US, 4), s(61), mods="offen lds")
            rawi("s_mov_b32 exec_hi, -1")
        else:
            j = (st - 8) % 4
            srd, vo = (KS, VK) if st < 12 else (VS, VV)
            for i in range(4):
                k.emit("s_add_u32", "m0", s(SW1024), slot + 8192 * i)
                k.emit("s_add_u32", s(61), s(SW1024), j * 32768 + i * 8192)
                oid = k.emit("buffer_load_dwordx4", v(vo), s(srd, 4), s(61), mods="offen lds")
        dma_last[st] = oid

    def xn_loads(st):
        if st > 7:
            return
        base = XF + 16 * (st % 3)
        for t in range(4):
            oid = k.emit("buffer_load_dwordx4", v(base + 4 * t, 4), v(VX), s(XN, 4), 0,
                         mods="offen offset:%d" % (128 * st + 32 * t))
        xn_last[st] = oid

    state = {"ready": -1}

    def ensure_stage(st, addr_regs):
        assert st == state["ready"] + 1
        k.wait_vm(dma_last[st])
        k.emit("s_barrier")
        state["ready"] = st
        if st > 0 and addr_regs:
            delta = ((st % NSLOT) - ((st - 1) % NSLOT)) * SLOT
            for r in addr_regs:
                k.emit("v_add_u32", v(r), delta & 0xFFFFFFFF, v(r))
        xn_loads(st + 1) if st >= 1 else None
        dma_stage(st + 3) if st >= 1 else None

    dma_stage(0)
    xn_loads(0)
    dma_stage(1)
    xn_loads(1)
    dma_stage(2)
    dma_stage(3)
    P1A = [VA, VA + 1, VA + 2, VA + 3, VF]
    ensure_stage(0, P1A)

    wfid = {}

    def p1_reads(step, i):
        st, t = divmod(step, 4)
        base = WF + 28 * (step & 1) + 4 * i
        for u in range(2):
            if i < 4:
                oid = k.emit("ds_read_b64_tr_b16", v(base + 2 * u, 2), v(VA + i), mods="offset:%d" % ((16 * t + 4 * u) * 256))
            else:
                oid = k.emit("ds_read_b64_tr_b16", v(base + 2 * u, 2), v(VF),
                             mods="offset:%d" % ((16 * t + 4 * u) * 96 + 32 * (i - 4)))
        wfid[(step, i)] = oid

    for i in range(7):
        p1_reads(0, i)
    for step in range(32):
        st, t = divmod(step, 4)
        if t == 0:
            k.wait_vm(xn_last[st])
        if t == 3:
            ensure_stage(st + 1, P1A if st < 7 else None)
        xb = XF + 16 * (st % 3) + 4 * t
        for i in range(7):
            k.wait_lg(wfid[(step, i)])
            acc = ACCQ + 16 * i if i < 4 else ACCF + 16 * (i - 4)
            c = v(acc, 16) if step > 0 else "0"
            k.emit("v_mfma_f32_32x32x16_bf16", v(acc, 16), v(WF + 28 * (step & 1) + 4 * i, 4), v(xb, 4), c)
            if step < 31:
                p1_reads(step + 1, i)

    for dt in range(4):
        for p in range(8):
            k.emit("v_cvt_pk_bf16_f32", v(QF + 8 * dt + p), v(ACCQ + 16 * dt + 2 * p), v(ACCQ + 16 * dt + 2 * p + 1))
    k.emit("v_lshrrev_b32", v(T3), 5, v(LANE))
    k.emit("v_and_b32", v(T0), 15, v(LANE))
    k.emit("v_and_b32", v(T1), 31, v(LANE))
    k.emit("v_lshlrev_b32", v(T1), 8, v(T1))
    k.emit("v_add_u32", v(T1), (8 % NSLOT) * SLOT, v(T1))
    for t in range(8):
        k.emit("v_add_u32", v(T2), 2 * t, v(T3))
        k.emit("v_xor_b32", v(T2), v(T2), v(T0))
        k.emit("v_lshl_add_u32", v(KA + t), v(T2), 4, v(T1))
    kfid = {}

    def k_read(j, t):
        oid = k.emit("ds_read_b128", v(KF + 4 * t, 4), v(KA + t), mods="offset:%d" % ((j % 4) * 8192))
        kfid[(j, t)] = oid

    for t in range(8):
        k_read(0, t)
    k.emit("v_and_b32", v(T0), 31, v(LANE))
    k.emit("s_lshl_b32", s(57), s(48), 5)
    k.emit("v_add_u32", v(T0), s(57), v(T0))
    k.emit("v_mul_u32_u24", v(T0), H_STRIDE, v(T0))
    k.emit("v_lshl_add_u32", v(T3), v(T3), 4, v(T0))
    CG = -2.0 * 0.7978845608028654 * LOG2E
    k.emit("s_mov_b32", s(62), f32(0.044715))
    k.emit("s_mov_b32", s(63), f32(CG))
    ET = XF
    for blk in range(3):
        a = ACCF + 16 * blk
        for r in range(8):
            k.emit("v_mul_f32", v(ET + r), v(a + r), v(a + r))
        for r in range(8):
            k.emit("v_fma_f32", v(ET + r), v(ET + r), s(62), "1.0")
        for r in range(8):
            k.emit("v_mul_f32", v(ET + r), v(ET + r), v(a + r))
        for r in range(8):
            k.emit("v_mul_f32", v(ET + r), s(63), v(ET + r))
        for r in range(8):
            k.emit("v_exp_f32", v(ET + r), v(ET + r))
        for r in range(8):
            k.emit("v_add_f32", v(ET + r), "1.0", v(ET + r))
        for r in range(8):
            k.emit("v_rcp_f32", v(ET + r), v(ET + r))
        for r in range(8):
            k.emit("v_mul_f32", v(ET + r), v(ET + r), v(a + r))
        for r in range(8):
            k.emit("v_mul_f32", v(ET + r), v(ET + r), v(a + 8 + r))
        pk = ET + 16 + 4 * blk
        for p in range(4):
            k.emit("v_cvt_pk_bf16_f32", v(pk + p), v(ET + 2 * p), v(ET + 2 * p + 1))
        k.emit("s_add_u32", s(61), s(SH32), 1024 * blk)
        if blk == 2:
            k.emit("s_cmp_lt_u32", s(49), 22)
            k.emit("s_cselect_b32", s(64), -1, 0)
            for p in range(4):
                k.emit("v_and_b32", v(pk + p), s(64), v(pk + p))
            k.emit("s_cmp_lt_u32", s(49), 24)
            k.emit("s_cselect_b32", s(61), s(61), 0x7FFFFFF0)
        k.emit("buffer_store_dwordx4", v(pk, 4), v(T3), s(HS, 4), s(61), mods="offen")

    KAR = [KA + t for t in range(8)]

    def post_ops(j):
        a = SACC + 16 * (j & 1)
        ops = []
        for p in range(8):
            ops.append(lambda p=p: k.emit("v_cvt_pk_bf16_f32", v(SP + 8 * j + p), v(a + 2 * p), v(a + 2 * p + 1)))
            m = MX + (p & 1)
            if j == 0 and p < 2:
                ops.append(lambda p=p, m=m: k.emit("v_max_f32", v(m), v(a + 2 * p), v(a + 2 * p + 1)))
            else:
                ops.append(lambda p=p, m=m: k.emit("v_max3_f32", v(m), v(a + 2 * p), v(a + 2 * p + 1), v(m)))
        return ops

    for j in range(16):
        if j % 4 == 3:
            st = 8 + j // 4 + 1
            if st < 12:
                ensure_stage(st, KAR)
            else:
                ensure_stage(st, None)
        pend = post_ops(j - 1) if j > 0 else []
        a = SACC + 16 * (j & 1)
        for t in range(8):
            k.wait_lg(kfid[(j, t)])
            c = v(a, 16) if t > 0 else "0"
            k.emit("v_mfma_f32_32x32x16_bf16", v(a, 16), v(KF + 4 * t, 4), v(QF + 4 * t, 4), c)
            if j < 15:
                k_read(j + 1, t)
            if t >= 3:
                for _ in range(4):
                    if pend:
                        pend.pop(0)()
        assert not pend

    k.emit("v_lshrrev_b32", v(T3), 5, v(LANE))
    k.emit("v_lshlrev_b32", v(T3), 10, v(T3))
    dlt = ((12 % NSLOT) - (7 % NSLOT)) * SLOT
    for dt in range(4):
        k.emit("v_sub_u32", v(VA + dt), v(VA + dt), v(T3))
        if dlt:
            k.emit("v_add_u32", v(VA + dt), dlt & 0xFFFFFFFF, v(VA + dt))
    vfid = {}
    VAR = [VA + dt for dt in range(4)]

    def v_read(pos):
        j, f = divmod(pos, 8)
        t, dt = divmod(f, 4)
        st = 12 + j // 4
        if st > state["ready"]:
            ensure_stage(st, VAR)
        base = VFR + 4 * (pos % 8)
        for u in range(2):
            oid = k.emit("ds_read_b64_tr_b16", v(base + 2 * u, 2), v(VA + dt),
                         mods="offset:%d" % ((32 * (j % 4) + 16 * t + 8 * u) * 256))
        vfid[pos] = oid

    for pos in range(7):
        v_read(pos)
    for op in post_ops(15):
        op()
    k.emit("v_max_f32", v(MX), v(MX), v(MX + 1))
    k.emit("v_mov_b32", v(MX + 1), v(MX))
    k.emit("v_permlane32_swap_b32", v(MX), v(MX + 1))
    k.emit("v_max_f32", v(MX), v(MX), v(MX + 1))
    CS = LOG2E / (128.0 ** 0.5)
    k.emit("s_mov_b32", s(62), f32(CS))
    NM = T0
    k.emit("v_mul_f32", v(NM), f32(-CS), v(MX))
    SUM0, SUM1 = T1, T2
    k.emit("v_mov_b32", v(SUM0), 0)
    k.emit("v_mov_b32", v(SUM1), 0)

    def soft_ops(j, p):
        r = SP + 8 * j + p
        lo = TMP + 2 * (p % 8)
        hi = lo + 1
        return [
            lambda: k.emit("v_lshlrev_b32", v(lo), 16, v(r)),
            lambda: k.emit("v_and_b32", v(hi), 0xFFFF0000, v(r)),
            lambda: k.emit("v_fma_f32", v(lo), v(lo), s(62), v(NM)),
            lambda: k.emit("v_fma_f32", v(hi), v(hi), s(62), v(NM)),
            lambda: k.emit("v_exp_f32", v(lo), v(lo)),
            lambda: k.emit("v_exp_f32", v(hi), v(hi)),
            lambda: k.emit("v_add_f32", v(SUM0), v(SUM0), v(lo)),
            lambda: k.emit("v_add_f32", v(SUM1), v(SUM1), v(hi)),
            lambda: k.emit("v_cvt_pk_bf16_f32", v(r), v(lo), v(hi)),
        ]

    for p in range(8):
        for op in soft_ops(0, p):
            op()
    for pos in range(128):
        j, f = divmod(pos, 8)
        t, dt = divmod(f, 4)
        k.wait_lg(vfid[pos])
        a = OACC + 16 * dt
        c = v(a, 16) if pos >= 4 else "0"
        k.emit("v_mfma_f32_32x32x16_bf16", v(a, 16), v(VFR + 4 * (pos % 8), 4), v(SP + 8 * j + 4 * t, 4), c)
        if pos + 7 < 128:
            v_read(pos + 7)
        if j < 15:
            for op in soft_ops(j + 1, f):
                op()

    k.emit("v_add_f32", v(SUM0), v(SUM0), v(SUM1))
    k.emit("v_mov_b32", v(SUM1), v(SUM0))
    k.emit("v_permlane32_swap_b32", v(SUM0), v(SUM1))
    k.emit("v_add_f32", v(SUM0), v(SUM0), v(SUM1))
    k.emit("v_rcp_f32", v(SUM0), v(SUM0))
    k.emit("v_and_b32", v(T0), 31, v(LANE))
    k.emit("s_lshl_b32", s(57), s(48), 5)
    k.emit("v_add_u32", v(T0), s(57), v(T0))
    k.emit("v_lshlrev_b32", v(T0), 13, v(T0))
    k.emit("v_lshrrev_b32", v(T3), 5, v(LANE))
    k.emit("v_lshl_add_u32", v(T3), v(T3), 4, v(T0))
    for dt in range(4):
        for a2 in range(2):
            base = OACC + 16 * dt + 8 * a2
            for r in range(8):
                k.emit("v_mul_f32", v(base + r), v(base + r), v(SUM0))
            pk = SP + 4 * (2 * dt + a2)
            for p in range(4):
                k.emit("v_cvt_pk_bf16_f32", v(pk + p), v(base + 2 * p), v(base + 2 * p + 1))
            k.emit("buffer_store_dwordx4", v(pk, 4), v(T3), s(OS, 4), 0, mods="offen offset:%d" % (64 * dt + 32 * a2))
    k.label("L_at_end")
    return k, 256, 80
```

```python
import os
import struct
import sys

sys.path.insert(0, os.path.dirname(os.path.abspath(__file__)))
from asmlib import Kern, v, s

NAME = "recurrent_scan__sliding_block_cached__geglu_ffn__prompt"
XN_OFF = 0
O_OFF = 2 << 20
H_OFF = 18 << 20
H_STRIDE = 2816
PART_OFF = 24 << 20
LOG2E = 1.4426950408889634


def f32(x):
    return "0x%08x" % struct.unpack("<I", struct.pack("<f", x))[0]


def wave_allreduce_add(k, val, tmp):
    for x in (1, 2, 4, 8, 16):
        o = k.emit("ds_swizzle_b32", v(tmp), v(val), mods="offset:0x%04x" % ((x << 10) | 0x1F))
        k.wait_lg(o)
        k.emit("v_add_f32", v(val), v(val), v(tmp))
    k.emit("v_mov_b32", v(tmp), v(val))
    k.emit("v_permlane32_swap_b32", v(val), v(tmp))
    k.emit("v_add_f32", v(val), v(val), v(tmp))


def gen_ln():
    k = Kern("ln_kernel")
    k.emit("s_cmp_ge_u32", s(2), 512)
    k.emit("s_cbranch_scc1", "L_ln_end")
    k.emit("s_load_dwordx2", s(4, 2), s(0, 2), 0)
    k.emit("s_load_dwordx2", s(6, 2), s(0, 2), 88)
    k.emit("v_lshlrev_b32", v(1), 4, v(0))
    k.emit("s_lshl_b32", s(3), s(2), 12)
    k.raw("    s_waitcnt lgkmcnt(0)")
    k.srd(8, 4, 2048 * 1024)
    k.srd(12, 6, 2048 * 1024, add=XN_OFF)
    o = k.emit("buffer_load_dwordx4", v(4, 4), v(1), s(8, 4), s(3), mods="offen")
    k.wait_vm(o)
    for i in range(4):
        k.emit("v_lshlrev_b32", v(8 + 2 * i), 16, v(4 + i))
        k.emit("v_and_b32", v(9 + 2 * i), 0xFFFF0000, v(4 + i))
    k.emit("v_add_f32", v(16), v(8), v(9))
    for i in range(2, 8):
        k.emit("v_add_f32", v(16), v(16), v(8 + i))
    wave_allreduce_add(k, 16, 17)
    k.emit("v_mul_f32", v(16), f32(1.0 / 512), v(16))
    k.emit("v_sub_f32", v(18), v(8), v(16))
    k.emit("v_mul_f32", v(19), v(18), v(18))
    for i in range(1, 8):
        k.emit("v_sub_f32", v(18), v(8 + i), v(16))
        k.emit("v_fmac_f32", v(19), v(18), v(18))
    wave_allreduce_add(k, 19, 17)
    k.emit("v_mul_f32", v(19), f32(1.0 / 512), v(19))
    k.emit("v_cvt_pk_bf16_f32", v(20), v(16), v(19))
    k.emit("v_lshlrev_b32", v(16), 16, v(20))
    k.emit("v_and_b32", v(19), 0xFFFF0000, v(20))
    k.emit("v_add_f32", v(19), f32(1e-5), v(19))
    k.emit("v_cvt_pk_bf16_f32", v(20), v(19), v(19))
    k.emit("v_lshlrev_b32", v(19), 16, v(20))
    k.emit("v_sqrt_f32", v(19), v(19))
    k.emit("v_cvt_pk_bf16_f32", v(20), v(19), v(19))
    k.emit("v_lshlrev_b32", v(19), 16, v(20))
    k.emit("v_rcp_f32", v(19), v(19))
    for i in range(4):
        k.emit("v_sub_f32", v(20), v(8 + 2 * i), v(16))
        k.emit("v_sub_f32", v(21), v(9 + 2 * i), v(16))
        k.emit("v_cvt_pk_bf16_f32", v(22), v(20), v(21))
        k.emit("v_lshlrev_b32", v(20), 16, v(22))
        k.emit("v_and_b32", v(21), 0xFFFF0000, v(22))
        k.emit("v_mul_f32", v(20), v(20), v(19))
        k.emit("v_mul_f32", v(21), v(21), v(19))
        k.emit("v_cvt_pk_bf16_f32", v(24 + i), v(20), v(21))
    k.emit("buffer_store_dwordx4", v(24, 4), v(1), s(12, 4), s(3), mods="offen")
    k.label("L_ln_end")
    return k, 28, 16


def gen_fin():
    k = Kern("fin_kernel")
    k.emit("s_cmp_ge_u32", s(2), 512)
    k.emit("s_cbranch_scc1", "L_fin_end")
    k.emit("s_load_dwordx2", s(4, 2), s(0, 2), 0)
    k.emit("s_load_dwordx2", s(6, 2), s(0, 2), 72)
    k.emit("s_load_dwordx2", s(16, 2), s(0, 2), 88)
    k.emit("v_and_b32", v(1), 63, v(0))
    k.emit("v_lshrrev_b32", v(2), 6, v(0))
    k.emit("v_and_b32", v(3), 1, v(2))
    k.emit("v_lshrrev_b32", v(4), 1, v(2))
    k.emit("s_and_b32", s(20), s(2), 1)
    k.emit("s_lshr_b32", s(21), s(2), 1)
    k.emit("s_and_b32", s(21), s(21), 3)
    k.emit("s_lshr_b32", s(22), s(2), 3)
    k.emit("s_lshr_b32", s(23), s(2), 1)
    k.emit("s_lshl_b32", s(23), s(23), 14)
    k.emit("s_lshl_b32", s(24), s(20), 13)
    k.emit("s_add_u32", s(23), s(23), s(24))
    k.emit("v_lshlrev_b32", v(5), 12, v(4))
    k.emit("v_lshl_add_u32", v(5), v(3), 11, v(5))
    k.emit("v_lshl_add_u32", v(5), v(1), 4, v(5))
    k.emit("s_lshr_b32", s(25), s(22), 2)
    k.emit("s_and_b32", s(26), s(22), 3)
    k.emit("s_lshr_b32", s(27), s(21), 1)
    k.emit("s_and_b32", s(28), s(21), 1)
    k.emit("s_lshl_b32", s(25), s(25), 7)
    k.emit("s_lshl_b32", s(27), s(27), 6)
    k.emit("s_add_u32", s(25), s(25), s(27))
    k.emit("s_lshl_b32", s(25), s(25), 10)
    k.emit("s_lshl_b32", s(26), s(26), 7)
    k.emit("s_lshl_b32", s(28), s(28), 6)
    k.emit("s_add_u32", s(26), s(26), s(28))
    k.emit("s_lshl_b32", s(29), s(20), 5)
    k.emit("s_add_u32", s(26), s(26), s(29))
    k.emit("s_lshl_b32", s(26), s(26), 1)
    k.emit("s_add_u32", s(25), s(25), s(26))
    k.emit("v_and_b32", v(6), 31, v(1))
    k.emit("v_lshl_add_u32", v(6), v(4), 5, v(6))
    k.emit("v_lshlrev_b32", v(6), 10, v(6))
    k.emit("v_lshl_add_u32", v(6), v(3), 5, v(6))
    k.emit("v_lshrrev_b32", v(7), 5, v(1))
    k.emit("v_lshl_add_u32", v(6), v(7), 4, v(6))
    k.raw("    s_waitcnt lgkmcnt(0)")
    k.srd(8, 4, 2048 * 1024)
    k.srd(12, 6, 2048 * 1024)
    k.srd(32, 16, 16 << 20, add=PART_OFF)
    ids = []
    for sp in range(4):
        k.emit("s_add_u32", s(36 + sp), s(23), sp * (4 << 20))
    for sp in range(4):
        for j in range(2):
            ids.append(k.emit("buffer_load_dwordx4", v(8 + sp * 8 + 4 * j, 4), v(5), s(32, 4), s(36 + sp),
                              mods="offen offset:%d" % (1024 * j)))
    ox = k.emit("buffer_load_dwordx4", v(40, 4), v(6), s(8, 4), s(25), mods="offen")
    k.wait_vm(ids[5])
    for i in range(8):
        k.emit("v_add_f32", v(8 + i), v(8 + i), v(16 + i))
        k.emit("v_add_f32", v(8 + i), v(8 + i), v(24 + i))
    k.wait_vm(ids[7])
    for i in range(4):
        k.emit("v_cvt_pk_bf16_f32", v(44 + i), v(8 + 2 * i), v(9 + 2 * i))
        k.emit("v_cvt_pk_bf16_f32", v(48 + i), v(32 + 2 * i), v(33 + 2 * i))
    for i in range(4):
        k.emit("v_lshlrev_b32", v(8 + 2 * i), 16, v(44 + i))
        k.emit("v_and_b32", v(9 + 2 * i), 0xFFFF0000, v(44 + i))
        k.emit("v_lshlrev_b32", v(32 + 2 * i), 16, v(48 + i))
        k.emit("v_and_b32", v(33 + 2 * i), 0xFFFF0000, v(48 + i))
    for i in range(8):
        k.emit("v_mul_f32", v(16 + i), f32(-LOG2E), v(32 + i))
    for i in range(8):
        k.emit("v_exp_f32", v(16 + i), v(16 + i))
    for i in range(8):
        k.emit("v_add_f32", v(16 + i), 1.0, v(16 + i))
    for i in range(8):
        k.emit("v_rcp_f32", v(16 + i), v(16 + i))
    for i in range(8):
        k.emit("v_mul_f32", v(16 + i), v(16 + i), v(32 + i))
    for i in range(4):
        k.emit("v_cvt_pk_bf16_f32", v(48 + i), v(16 + 2 * i), v(17 + 2 * i))
    for i in range(4):
        k.emit("v_lshlrev_b32", v(16 + 2 * i), 16, v(48 + i))
        k.emit("v_and_b32", v(17 + 2 * i), 0xFFFF0000, v(48 + i))
    for i in range(8):
        k.emit("v_mul_f32", v(8 + i), v(8 + i), v(16 + i))
    for i in range(4):
        k.emit("v_cvt_pk_bf16_f32", v(44 + i), v(8 + 2 * i), v(9 + 2 * i))
    k.wait_vm(ox)
    for i in range(4):
        k.emit("v_lshlrev_b32", v(8 + 2 * i), 16, v(44 + i))
        k.emit("v_and_b32", v(9 + 2 * i), 0xFFFF0000, v(44 + i))
        k.emit("v_lshlrev_b32", v(16 + 2 * i), 16, v(40 + i))
        k.emit("v_and_b32", v(17 + 2 * i), 0xFFFF0000, v(40 + i))
    for i in range(8):
        k.emit("v_add_f32", v(8 + i), v(8 + i), v(16 + i))
    for i in range(4):
        k.emit("v_cvt_pk_bf16_f32", v(44 + i), v(8 + 2 * i), v(9 + 2 * i))
    k.emit("buffer_store_dwordx4", v(44, 4), v(6), s(12, 4), s(25), mods="offen")
    k.label("L_fin_end")
    return k, 52, 44


def bs2_lane(k, dst, lane, tmp):
    k.emit("v_and_b32", v(tmp), 1, v(lane))
    k.emit("v_lshlrev_b32", v(dst), 4, v(tmp))
    k.emit("v_and_b32", v(tmp), 2, v(lane))
    k.emit("v_lshl_add_u32", v(dst), v(tmp), 2, v(dst))


def gen_gemm2():
    k = Kern("gemm2_kernel")
    SLOT = 32768
    NSLOT = 5
    k.emit("s_cmp_ge_u32", s(2), 256)
    k.emit("s_cbranch_scc1", "L_g2_end")
    k.emit("s_load_dwordx2", s(4, 2), s(0, 2), 32)
    k.emit("s_load_dwordx2", s(6, 2), s(0, 2), 64)
    k.emit("s_load_dwordx2", s(8, 2), s(0, 2), 88)
    k.emit("v_lshrrev_b32", v(1), 6, v(0))
    k.emit("v_and_b32", v(2), 63, v(0))
    k.emit("v_readfirstlane_b32", s(40), v(1))
    k.emit("s_and_b32", s(41), s(2), 3)
    k.emit("s_lshr_b32", s(42), s(2), 2)
    k.emit("s_and_b32", s(42), s(42), 1)
    k.emit("s_lshr_b32", s(43), s(2), 5)
    k.emit("s_lshl_b32", s(42), s(42), 3)
    k.emit("s_add_u32", s(42), s(42), s(43))
    k.emit("s_lshr_b32", s(43), s(2), 3)
    k.emit("s_and_b32", s(43), s(43), 3)
    k.emit("s_mov_b32", s(44), 0)
    k.emit("s_mov_b32", s(45), 22)
    k.emit("s_cmp_eq_u32", s(41), 1)
    k.emit("s_cselect_b32", s(44), 1408, s(44))
    k.emit("s_cselect_b32", s(45), 21, s(45))
    k.emit("s_cmp_eq_u32", s(41), 2)
    k.emit("s_cselect_b32", s(44), 2752, s(44))
    k.emit("s_cselect_b32", s(45), 21, s(45))
    k.emit("s_mov_b32", s(46), 8192)
    k.emit("s_mov_b32", s(47), O_OFF)
    k.emit("s_cmp_eq_u32", s(41), 3)
    k.emit("s_cselect_b32", s(46), H_STRIDE, s(46))
    k.emit("s_cselect_b32", s(47), H_OFF, s(47))
    k.emit("s_mul_i32", s(48), s(42), s(46))
    k.emit("s_lshl_b32", s(48), s(48), 7)
    k.emit("s_add_u32", s(47), s(47), s(48))
    k.emit("s_lshl_b32", s(48), s(44), 1)
    k.emit("s_add_u32", s(47), s(47), s(48))
    k.emit("s_lshl_b32", s(49), s(44), 10)
    k.emit("s_lshl_b32", s(48), s(43), 8)
    k.emit("s_add_u32", s(49), s(49), s(48))
    k.raw("    s_waitcnt lgkmcnt(0)")
    k.emit("s_mov_b32", s(50), 4096 * 1024)
    k.emit("s_cmp_eq_u32", s(41), 3)
    k.emit("s_cselect_b32", s(4), s(6), s(4))
    k.emit("s_cselect_b32", s(5), s(7), s(5))
    k.emit("s_cselect_b32", s(50), 1376 * 1024, s(50))
    k.emit("s_sub_u32", s(50), s(50), s(49))
    k.emit("s_add_u32", s(12), s(8), s(47))
    k.emit("s_addc_u32", s(13), s(9), 0)
    k.emit("s_and_b32", s(13), s(13), 0xFFFF)
    k.emit("s_lshl_b32", s(51), s(46), 7)
    k.emit("s_mov_b32", s(14), s(51))
    k.emit("s_mov_b32", s(15), 0x00020000)
    k.emit("s_add_u32", s(16), s(4), s(49))
    k.emit("s_addc_u32", s(17), s(5), 0)
    k.emit("s_and_b32", s(17), s(17), 0xFFFF)
    k.emit("s_mov_b32", s(18), s(50))
    k.emit("s_mov_b32", s(19), 0x00020000)
    k.srd(20, 8, 16 << 20, add=PART_OFF)
    k.emit("s_and_b32", s(52), s(40), 1)
    k.emit("s_lshl_b32", s(52), s(52), 2)
    k.emit("v_lshrrev_b32", v(4), 4, v(2))
    k.emit("v_add_u32", v(4), s(52), v(4))
    k.emit("v_and_b32", v(5), 7, v(2))
    k.emit("v_xor_b32", v(4), v(4), v(5))
    k.emit("v_lshlrev_b32", v(4), 4, v(4))
    k.emit("v_lshrrev_b32", v(5), 3, v(2))
    k.emit("v_mul_lo_u32", v(5), v(5), s(46))
    k.emit("v_add_u32", v(3), v(4), v(5))
    k.emit("v_lshrrev_b32", v(4), 4, v(2))
    k.emit("v_bfe_u32", v(5), v(2), 2, 2)
    k.emit("v_xor_b32", v(5), v(5), v(4))
    k.emit("v_lshlrev_b32", v(5), 6, v(5))
    k.emit("v_lshl_add_u32", v(5), v(4), 10, v(5))
    k.emit("v_and_b32", v(4), 3, v(2))
    k.emit("v_lshl_add_u32", v(6), v(4), 4, v(5))
    for i in range(4):
        k.emit("s_add_u32", s(53), s(40), 4 * i)
        k.emit("s_lshl_b32", s(54), s(53), 3)
        k.emit("s_mul_i32", s(56 + i), s(54), s(46))
        k.emit("s_lshl_b32", s(60 + i), s(53), 12)
    k.emit("s_lshl_b32", s(64), s(40), 10)
    k.emit("s_mov_b32", s(65), 0)
    k.emit("s_mov_b32", s(66), 0)

    def issue_dma():
        k.emit("s_cmp_lt_u32", s(65), s(45))
        k.emit("s_cselect_b32", s(14), s(51), 0)
        k.emit("s_cselect_b32", s(18), s(50), 0)
        k.emit("s_add_u32", s(67), s(66), s(64))
        prev = None
        for i in range(8):
            k.emit("s_add_u32", "m0", s(67), 4096 * i)
            if prev is not None:
                k.emit("s_add_u32", s(prev[0]), s(prev[0]), prev[1])
            else:
                k.emit("s_add_u32", s(65), s(65), 1)
            if i < 4:
                k.emit("buffer_load_dwordx4", v(3), s(12, 4), s(56 + i), mods="offen lds")
                prev = (56 + i, 128)
            else:
                k.emit("buffer_load_dwordx4", v(6), s(16, 4), s(56 + i), mods="offen lds")
                prev = (56 + i, 65536)
        k.emit("s_add_u32", s(prev[0]), s(prev[0]), prev[1])
        k.emit("s_add_u32", s(66), s(66), SLOT)
        k.emit("s_cmp_eq_u32", s(66), SLOT * NSLOT)
        k.emit("s_cselect_b32", s(66), 0, s(66))

    k.emit("s_lshr_b32", s(68), s(40), 1)
    k.emit("s_and_b32", s(69), s(40), 1)
    k.emit("v_and_b32", v(4), 31, v(2))
    k.emit("s_lshl_b32", s(53), s(68), 6)
    k.emit("v_add_u32", v(4), s(53), v(4))
    k.emit("v_bfe_u32", v(5), v(4), 1, 3)
    k.emit("v_lshrrev_b32", v(7), 5, v(2))
    for t in range(4):
        k.emit("v_add_u32", v(12), 2 * t, v(7))
        k.emit("v_xor_b32", v(12), v(12), v(5))
        k.emit("v_lshlrev_b32", v(12), 4, v(12))
        k.emit("v_lshl_add_u32", v(8 + t), v(4), 7, v(12))
    k.emit("v_bfe_u32", v(4), v(2), 2, 2)
    k.emit("v_lshl_add_u32", v(5), v(7), 3, v(4))
    k.emit("v_lshlrev_b32", v(5), 8, v(5))
    k.emit("v_add_u32", v(5), 16384, v(5))
    k.emit("v_bfe_u32", v(14), v(2), 4, 1)
    k.emit("v_lshl_add_u32", v(5), v(14), 5, v(5))
    bs2_lane(k, 14, 2, 15)
    k.emit("v_add_u32", v(5), v(5), v(14))
    k.emit("s_lshl_b32", s(53), s(69), 1)
    for tn in range(2):
        k.emit("s_add_u32", s(54), s(53), tn)
        k.emit("v_xor_b32", v(14), s(54), v(4))
        k.emit("v_lshl_add_u32", v(12 + tn), v(14), 6, v(5))
    ACC = 64
    for i in range(64):
        k.emit("v_mov_b32", v(ACC + i), 0)

    def reads(t, fs):
        base = 16 + 16 * fs
        for tn in range(2):
            for u in range(2):
                k.emit("ds_read_b64_tr_b16", v(base + 4 * tn + 2 * u, 2), v(12 + tn),
                       mods="offset:%d" % ((16 * t + 4 * u) * 256))
        for tm in range(2):
            k.emit("ds_read_b128", v(base + 8 + 4 * tm, 4), v(8 + t), mods="offset:%d" % (4096 * tm))

    def mfmas(fs):
        base = 16 + 16 * fs
        for tn in range(2):
            for tm in range(2):
                a = ACC + 16 * (tn * 2 + tm)
                k.emit("v_mfma_f32_32x32x16_bf16", v(a, 16), v(base + 4 * tn, 4), v(base + 8 + 4 * tm, 4), v(a, 16))

    for i in range(4):
        issue_dma()
    k.raw("    s_waitcnt vmcnt(24)")
    k.emit("s_barrier")
    reads(0, 0)
    k.emit("s_mov_b32", s(78), 0)
    k.emit("s_mov_b32", s(79), 0)
    k.emit("s_mov_b32", s(81), SLOT)
    k.label("L_g2_loop")
    for t in range(3):
        reads(t + 1, (t + 1) & 1)
        k.raw("    s_waitcnt lgkmcnt(6)")
        mfmas(t & 1)
    k.raw("    s_waitcnt vmcnt(16)")
    k.emit("s_barrier")
    k.emit("s_add_u32", s(79), s(79), SLOT)
    k.emit("s_cmp_eq_u32", s(79), SLOT * NSLOT)
    k.emit("s_cselect_b32", s(79), 0, s(79))
    k.emit("s_cselect_b32", s(80), -SLOT * (NSLOT - 1) & 0xFFFFFFFF, s(81))
    for r in (8, 9, 10, 11, 12, 13):
        k.emit("v_add_u32", v(r), s(80), v(r))
    reads(0, 0)
    issue_dma()
    k.raw("    s_waitcnt lgkmcnt(6)")
    mfmas(1)
    k.emit("s_add_u32", s(78), s(78), 1)
    k.emit("s_cmp_lt_u32", s(78), s(45))
    k.emit("s_cbranch_scc1", "L_g2_loop")
    k.lgq = []
    k.vmq = []
    k.nop(16)
    k.emit("s_lshl_b32", s(53), s(41), 6)
    k.emit("s_lshl_b32", s(54), s(42), 2)
    k.emit("s_add_u32", s(53), s(53), s(54))
    k.emit("s_add_u32", s(53), s(53), s(43))
    k.emit("s_lshl_b32", s(53), s(53), 2)
    k.emit("s_add_u32", s(53), s(53), s(40))
    k.emit("s_lshl_b32", s(53), s(53), 14)
    k.emit("v_lshlrev_b32", v(4), 4, v(2))
    for q in range(16):
        if q % 4 == 0 and q:
            k.emit("s_add_u32", s(53), s(53), 4096)
        k.emit("buffer_store_dwordx4", v(ACC + 4 * q, 4), v(4), s(20, 4), s(53), mods="offen offset:%d" % (1024 * (q % 4)))
    k.raw("    s_waitcnt vmcnt(0)")
    k.label("L_g2_end")
    return k, 128, 84


from gen_attn import gen_attn


def main():
    ks = []
    launches = []
    k, nv, ns = gen_ln()
    ks.append((k, nv, ns))
    launches.append("; @launch kernel=ln_kernel grid=(512,1,1) block=(256,1,1) lds=0")
    k, nv, ns = gen_attn()
    ks.append((k, nv, ns))
    launches.append("; @launch kernel=attn_kernel grid=(256,1,1) block=(512,1,1) lds=163840")
    k, nv, ns = gen_gemm2()
    ks.append((k, nv, ns))
    launches.append("; @launch kernel=gemm2_kernel grid=(256,1,1) block=(256,1,1) lds=163840")
    k, nv, ns = gen_fin()
    ks.append((k, nv, ns))
    launches.append("; @launch kernel=fin_kernel grid=(512,1,1) block=(256,1,1) lds=0")
    out = []
    out.extend(launches)
    out.append('.amdgcn_target "amdgcn-amd-amdhsa--gfx950"')
    out.append(".text")
    descs = []
    for k, nv, ns in ks:
        assert k.maxv < nv, (k.name, k.maxv, nv)
        body, desc = k.text(nv, ns)
        out.append(body)
        descs.append(desc)
        print(k.name, "maxv", k.maxv, k.count, file=sys.stderr)
    out.append('.section .rodata,"a"')
    out.extend(descs)
    path = os.path.join(os.path.dirname(os.path.abspath(__file__)), "..", "cdna_kernels", NAME + ".s")
    with open(path, "w") as f:
        f.write("\n".join(out) + "\n")


if __name__ == "__main__":
    main()
```

```python
import struct
from asmlib import Kern, v, s

XN_OFF = 0
O_OFF = 2 << 20
H_OFF = 18 << 20
H_RGS = 88 * 1024
LOG2E = 1.4426950408889634
SLOT = 32768
NSLOT = 5
G_REG = 16384
U_REG = 22656


def f32(x):
    return "0x%08x" % struct.unpack("<I", struct.pack("<f", x))[0]


import os
STAMP = os.environ.get("STAMP", "0") == "1"


def gen_attn():
    k = Kern("attn_kernel")
    stamps = []

    def stamp(name):
        if not STAMP:
            return
        i = len(stamps)
        stamps.append(name)
        k.raw("    s_memtime s[98:99]")
        k.wait_lg0()
        k.emit("s_mov_b32", s(66 + i), s(98))

    def rawi(text):
        k.raw("    " + text)
        k.pos += 1

    k.emit("s_cmp_ge_u32", s(2), 256)
    k.emit("s_cbranch_scc1", "L_at_end")
    k.emit("s_load_dwordx4", s(4, 4), s(0, 2), 8)
    k.emit("s_load_dwordx2", s(8, 2), s(0, 2), 24)
    k.emit("s_load_dwordx4", s(12, 4), s(0, 2), 48)
    k.emit("s_load_dwordx2", s(10, 2), s(0, 2), 88)
    LANE, VX, VW, VG, VK, VV, T0, VA, VF, T1, T2, T3 = 1, 2, 3, 4, 5, 6, 7, 8, 12, 13, 14, 15
    k.emit("v_lshrrev_b32", v(T0), 6, v(0))
    k.emit("v_and_b32", v(LANE), 63, v(0))
    k.emit("v_readfirstlane_b32", s(48), v(T0))
    MAP = os.environ.get("MAP", "0")
    if MAP == "0":
        k.emit("s_and_b32", s(49), s(2), 7)
        k.emit("s_lshl_b32", s(49), s(49), 2)
        k.emit("s_lshr_b32", s(51), s(2), 3)
        k.emit("s_and_b32", s(51), s(51), 3)
        k.emit("s_add_u32", s(49), s(49), s(51))
        k.emit("s_lshr_b32", s(50), s(2), 5)
    elif MAP == "1":
        k.emit("s_and_b32", s(50), s(2), 7)
        k.emit("s_lshr_b32", s(49), s(2), 3)
    elif MAP == "2":
        k.emit("s_and_b32", s(49), s(2), 1)
        k.emit("s_lshl_b32", s(49), s(49), 4)
        k.emit("s_lshr_b32", s(51), s(2), 3)
        k.emit("s_and_b32", s(51), s(51), 15)
        k.emit("s_add_u32", s(49), s(49), s(51))
        k.emit("s_lshr_b32", s(50), s(2), 1)
        k.emit("s_and_b32", s(50), s(50), 3)
        k.emit("s_lshl_b32", s(50), s(50), 1)
        k.emit("s_lshr_b32", s(51), s(2), 7)
        k.emit("s_add_u32", s(50), s(50), s(51))
    SW1024, SW2048, SW65536, SW768, SW22016 = 52, 53, 54, 55, 56
    k.emit("s_lshl_b32", s(SW1024), s(48), 10)
    k.emit("s_lshl_b32", s(SW2048), s(48), 11)
    k.emit("s_lshl_b32", s(SW65536), s(48), 16)
    k.emit("s_mul_i32", s(SW768), s(48), 768)
    k.emit("s_mul_i32", s(SW22016), s(48), 22016)
    k.raw("    s_waitcnt lgkmcnt(0)")

    def srd_dyn(d, base, off_s, nrec_s=None, nrec=None, add=0):
        k.emit("s_add_u32", s(d), s(base), s(off_s))
        k.emit("s_addc_u32", s(d + 1), s(base + 1), 0)
        if add:
            k.emit("s_add_u32", s(d), s(d), add)
            k.emit("s_addc_u32", s(d + 1), s(d + 1), 0)
        k.emit("s_and_b32", s(d + 1), s(d + 1), 0xFFFF)
        if nrec_s is not None:
            k.emit("s_mov_b32", s(d + 2), s(nrec_s))
        else:
            k.emit("s_mov_b32", s(d + 2), nrec)
        k.emit("s_mov_b32", s(d + 3), 0x00020000)

    XN, WQ, GS, US, KS, VS, OS, HS = 16, 20, 24, 28, 32, 36, 40, 44
    k.emit("s_lshl_b32", s(57), s(50), 18)
    srd_dyn(XN, 10, 57, nrec=256 * 1024, add=XN_OFF)
    k.emit("s_lshl_b32", s(57), s(49), 8)
    k.emit("s_sub_u32", s(58), 4 << 20, s(57))
    srd_dyn(WQ, 8, 57, nrec_s=58)
    k.emit("s_lshl_b32", s(59), s(49), 5)
    SH32 = 59
    k.emit("s_sub_u32", s(58), 512 * 2752, s(SH32))
    srd_dyn(GS, 12, SH32, nrec_s=58)
    srd_dyn(US, 14, SH32, nrec_s=58)
    k.emit("s_lshl_b32", s(58), s(49), 19)
    srd_dyn(KS, 4, 58, nrec=131072, add=1536 * 256)
    srd_dyn(VS, 6, 58, nrec=131072, add=1536 * 256)
    k.emit("s_lshl_b32", s(58), s(50), 21)
    k.emit("s_lshl_b32", s(57), s(49), 13)
    k.emit("s_add_u32", s(58), s(58), s(57))
    k.emit("s_sub_u32", s(60), 8 * 262144, s(57))
    srd_dyn(OS, 10, 58, nrec_s=60, add=O_OFF)
    k.emit("s_mul_i32", s(58), s(50), 8 * H_RGS)
    srd_dyn(HS, 10, 58, nrec=8 * H_RGS, add=H_OFF)

    HH = T3
    k.emit("v_lshrrev_b32", v(HH), 5, v(LANE))
    k.emit("s_lshl_b32", s(57), s(48), 15)
    k.emit("v_lshl_add_u32", v(VX), v(LANE), 4, s(57))
    k.emit("v_lshrrev_b32", v(T0), 4, v(LANE))
    k.emit("v_bfe_u32", v(T1), v(LANE), 2, 2)
    k.emit("v_xor_b32", v(T1), v(T1), v(T0))
    k.emit("v_lshlrev_b32", v(T1), 6, v(T1))
    k.emit("v_and_b32", v(T2), 3, v(LANE))
    k.emit("v_lshl_add_u32", v(T1), v(T2), 4, v(T1))
    k.emit("v_lshl_add_u32", v(VW), v(T0), 13, v(T1))
    k.emit("v_lshl_add_u32", v(VV), v(T0), 8, v(T1))
    k.emit("s_and_b32", s(57), s(48), 3)
    k.emit("s_lshl_b32", s(57), s(57), 2)
    k.emit("v_add_u32", v(T1), s(57), v(T0))
    k.emit("v_and_b32", v(T2), 15, v(LANE))
    k.emit("v_xor_b32", v(T1), v(T1), v(T2))
    k.emit("v_lshlrev_b32", v(T1), 4, v(T1))
    k.emit("v_lshl_add_u32", v(VK), v(T0), 8, v(T1))
    k.emit("v_mul_u32_u24", v(T0), 43, v(LANE))
    k.emit("v_lshrrev_b32", v(T0), 8, v(T0))
    k.emit("v_mul_u32_u24", v(T1), 6, v(T0))
    k.emit("v_sub_u32", v(T1), v(LANE), v(T1))
    k.emit("v_mul_u32_u24", v(T0), 2752, v(T0))
    k.emit("v_lshrrev_b32", v(T2), 1, v(T1))
    k.emit("v_lshl_add_u32", v(T0), v(T2), 10, v(T0))
    k.emit("v_and_b32", v(T1), 1, v(T1))
    k.emit("v_lshl_add_u32", v(VG), v(T1), 4, v(T0))
    k.emit("v_bfe_u32", v(T0), v(LANE), 2, 2)
    k.emit("v_and_b32", v(T2), 1, v(LANE))
    k.emit("v_lshlrev_b32", v(T1), 4, v(T2))
    k.emit("v_and_b32", v(T2), 2, v(LANE))
    k.emit("v_lshl_add_u32", v(T1), v(T2), 2, v(T1))
    k.emit("v_bfe_u32", v(T2), v(LANE), 4, 1)
    k.emit("v_lshl_add_u32", v(T1), v(T2), 5, v(T1))
    k.emit("v_mul_u32_u24", v(VF), U_REG - G_REG - 32, v(T2))
    k.emit("v_add_u32", v(VF), v(VF), v(T1))
    k.emit("v_lshl_add_u32", v(T2), v(HH), 3, v(T0))
    k.emit("v_mul_u32_u24", v(T2), 96, v(T2))
    k.emit("v_add_u32", v(VF), v(VF), v(T2))
    k.emit("v_add_u32", v(VF), G_REG, v(VF))
    k.emit("v_lshl_add_u32", v(T2), v(HH), 3, v(T0))
    k.emit("v_lshl_add_u32", v(T1), v(T2), 8, v(T1))
    for dt in range(4):
        k.emit("v_xor_b32", v(T2), dt, v(T0))
        k.emit("v_lshl_add_u32", v(VA + dt), v(T2), 6, v(T1))

    ACCQ, ACCF, XF, WF = 16, 80, 128, 176
    QF, SP, SACC, KF, KA, MX = 224, 80, 16, 48, 208, 13
    OACC, VFR, TMP = 16, 208, 240

    dma_last = {}
    xn_last = {}

    def dma_stage(st):
        if st > 15:
            return
        slot = (st % NSLOT) * SLOT
        if st < 8:
            k0 = 64 * st
            for j in range(2):
                k.emit("s_add_u32", "m0", s(SW2048), slot + 1024 * j)
                k.emit("s_add_u32", s(61), s(SW65536), k0 * 8192 + j * 32768)
                k.emit("buffer_load_dwordx4", v(VW), s(WQ, 4), s(61), mods="offen lds")
            rawi("s_mov_b32 exec_hi, 0xffff")
            k.emit("s_add_u32", "m0", s(SW768), slot + G_REG)
            k.emit("s_add_u32", s(61), s(SW22016), k0 * 2752)
            k.emit("buffer_load_dwordx4", v(VG), s(GS, 4), s(61), mods="offen lds")
            k.emit("s_add_u32", "m0", s(SW768), slot + U_REG)
            k.emit("s_nop", 0)
            oid = k.emit("buffer_load_dwordx4", v(VG), s(US, 4), s(61), mods="offen lds")
            rawi("s_mov_b32 exec_hi, -1")
        else:
            j = (st - 8) % 4
            srd, vo = (KS, VK) if st < 12 else (VS, VV)
            for i in range(4):
                k.emit("s_add_u32", "m0", s(SW1024), slot + 8192 * i)
                k.emit("s_add_u32", s(61), s(SW1024), j * 32768 + i * 8192)
                oid = k.emit("buffer_load_dwordx4", v(vo), s(srd, 4), s(61), mods="offen lds")
        dma_last[st] = oid

    def xn_loads(st):
        if st > 7:
            return
        base = XF + 16 * (st % 3)
        if os.environ.get("NOXN", "0") == "1":
            xn_last[st] = -1
            return
        k.emit("s_mov_b32", s(65), 4096 * st)
        for t in range(4):
            oid = k.emit("buffer_load_dwordx4", v(base + 4 * t, 4), v(VX), s(XN, 4), s(65),
                         mods="offen offset:%d" % (1024 * t))
        xn_last[st] = oid

    state = {"ready": -1}

    def ensure_stage(st, addr_regs):
        assert st == state["ready"] + 1
        k.wait_vm(dma_last[st])
        k.emit("s_barrier")
        stamp("B%d" % st)
        state["ready"] = st
        if st > 0 and addr_regs:
            delta = ((st % NSLOT) - ((st - 1) % NSLOT)) * SLOT
            for r in addr_regs:
                k.emit("v_add_u32", v(r), delta & 0xFFFFFFFF, v(r))
        xn_loads(st + 1) if st >= 1 else None
        dma_stage(st + 3) if st >= 1 else None

    stamp("start")
    P1A = [VA, VA + 1, VA + 2, VA + 3, VF]
    PRO = os.environ.get("PRO", "2")
    if PRO == "0":
        dma_stage(0)
        xn_loads(0)
        dma_stage(1)
        xn_loads(1)
        dma_stage(2)
        dma_stage(3)
        ensure_stage(0, P1A)
    elif PRO == "1":
        dma_stage(0)
        xn_loads(0)
        ensure_stage(0, P1A)
        dma_stage(1)
        xn_loads(1)
        dma_stage(2)
        dma_stage(3)
    else:
        dma_stage(0)
        xn_loads(0)
        dma_stage(1)
        xn_loads(1)
        ensure_stage(0, P1A)
        dma_stage(2)
        dma_stage(3)

    wfid = {}

    def p1_reads(step, i):
        st, t = divmod(step, 4)
        base = WF + 28 * (step & 1) + 4 * i
        for u in range(2):
            if i < 4:
                oid = k.emit("ds_read_b64_tr_b16", v(base + 2 * u, 2), v(VA + i), mods="offset:%d" % ((16 * t + 4 * u) * 256))
            else:
                oid = k.emit("ds_read_b64_tr_b16", v(base + 2 * u, 2), v(VF),
                             mods="offset:%d" % ((16 * t + 4 * u) * 96 + 32 * (i - 4)))
        wfid[(step, i)] = oid

    for i in range(7):
        p1_reads(0, i)
    for step in range(32):
        st, t = divmod(step, 4)
        if t == 0:
            k.wait_vm(xn_last[st])
        if t == 3:
            ensure_stage(st + 1, P1A if st < 7 else None)
        xb = XF + 16 * (st % 3) + 4 * t
        for i in range(7):
            k.wait_lg(wfid[(step, i)])
            acc = ACCQ + 16 * i if i < 4 else ACCF + 16 * (i - 4)
            c = v(acc, 16) if step > 0 else "0"
            k.emit("v_mfma_f32_32x32x16_bf16", v(acc, 16), v(WF + 28 * (step & 1) + 4 * i, 4), v(xb, 4), c)
            if step < 31:
                p1_reads(step + 1, i)

    stamp("p1end")
    for dt in range(4):
        for p in range(8):
            k.emit("v_cvt_pk_bf16_f32", v(QF + 8 * dt + p), v(ACCQ + 16 * dt + 2 * p), v(ACCQ + 16 * dt + 2 * p + 1))
    k.emit("v_lshrrev_b32", v(T3), 5, v(LANE))
    k.emit("v_and_b32", v(T0), 15, v(LANE))
    k.emit("v_and_b32", v(T1), 31, v(LANE))
    k.emit("v_lshlrev_b32", v(T1), 8, v(T1))
    k.emit("v_add_u32", v(T1), (8 % NSLOT) * SLOT, v(T1))
    for t in range(8):
        k.emit("v_add_u32", v(T2), 2 * t, v(T3))
        k.emit("v_xor_b32", v(T2), v(T2), v(T0))
        k.emit("v_lshl_add_u32", v(KA + t), v(T2), 4, v(T1))
    kfid = {}

    def k_read(j, t):
        oid = k.emit("ds_read_b128", v(KF + 4 * t, 4), v(KA + t), mods="offset:%d" % ((j % 4) * 8192))
        kfid[(j, t)] = oid

    for t in range(8):
        k_read(0, t)
    k.emit("s_mul_i32", s(57), s(48), H_RGS)
    k.emit("v_lshl_add_u32", v(T3), v(LANE), 4, s(57))
    CG = -2.0 * 0.7978845608028654 * LOG2E
    k.emit("s_mov_b32", s(62), f32(0.044715))
    k.emit("s_mov_b32", s(63), f32(CG))
    ET = XF
    for blk in range(3):
        a = ACCF + 16 * blk
        for r in range(8):
            k.emit("v_mul_f32", v(ET + r), v(a + r), v(a + r))
        for r in range(8):
            k.emit("v_fma_f32", v(ET + r), v(ET + r), s(62), "1.0")
        for r in range(8):
            k.emit("v_mul_f32", v(ET + r), v(ET + r), v(a + r))
        for r in range(8):
            k.emit("v_mul_f32", v(ET + r), s(63), v(ET + r))
        for r in range(8):
            k.emit("v_exp_f32", v(ET + r), v(ET + r))
        for r in range(8):
            k.emit("v_add_f32", v(ET + r), "1.0", v(ET + r))
        for r in range(8):
            k.emit("v_rcp_f32", v(ET + r), v(ET + r))
        for r in range(8):
            k.emit("v_mul_f32", v(ET + r), v(ET + r), v(a + r))
        for r in range(8):
            k.emit("v_mul_f32", v(ET + r), v(ET + r), v(a + 8 + r))
        pk = ET + 16 + 4 * blk
        for p in range(4):
            k.emit("v_cvt_pk_bf16_f32", v(pk + p), v(ET + 2 * p), v(ET + 2 * p + 1))
        k.emit("s_lshl_b32", s(61), s(49), 10)
        k.emit("s_add_u32", s(61), s(61), 32768 * blk)
        if blk == 2:
            k.emit("s_cmp_lt_u32", s(49), 22)
            k.emit("s_cselect_b32", s(64), -1, 0)
            for p in range(4):
                k.emit("v_and_b32", v(pk + p), s(64), v(pk + p))
            k.emit("s_cmp_lt_u32", s(49), 24)
            k.emit("s_cselect_b32", s(61), s(61), 0x7FFFFFF0)
        k.emit("buffer_store_dwordx4", v(pk, 4), v(T3), s(HS, 4), s(61), mods="offen")

    stamp("p2start")
    KAR = [KA + t for t in range(8)]

    def post_ops(j):
        a = SACC + 16 * (j & 1)
        ops = []
        for p in range(8):
            ops.append(lambda p=p: k.emit("v_cvt_pk_bf16_f32", v(SP + 8 * j + p), v(a + 2 * p), v(a + 2 * p + 1)))
            m = MX + (p & 1)
            if j == 0 and p < 2:
                ops.append(lambda p=p, m=m: k.emit("v_max_f32", v(m), v(a + 2 * p), v(a + 2 * p + 1)))
            else:
                ops.append(lambda p=p, m=m: k.emit("v_max3_f32", v(m), v(a + 2 * p), v(a + 2 * p + 1), v(m)))
        return ops

    for j in range(16):
        if j % 4 == 3:
            st = 8 + j // 4 + 1
            if st < 12:
                ensure_stage(st, KAR)
            else:
                ensure_stage(st, None)
        pend = post_ops(j - 1) if j > 0 else []
        a = SACC + 16 * (j & 1)
        for t in range(8):
            k.wait_lg(kfid[(j, t)])
            c = v(a, 16) if t > 0 else "0"
            k.emit("v_mfma_f32_32x32x16_bf16", v(a, 16), v(KF + 4 * t, 4), v(QF + 4 * t, 4), c)
            if j < 15:
                k_read(j + 1, t)
            if t >= 3:
                for _ in range(4):
                    if pend:
                        pend.pop(0)()
        assert not pend

    stamp("p2end")
    k.emit("v_lshrrev_b32", v(T3), 5, v(LANE))
    k.emit("v_lshlrev_b32", v(T3), 10, v(T3))
    dlt = ((12 % NSLOT) - (7 % NSLOT)) * SLOT
    for dt in range(4):
        k.emit("v_sub_u32", v(VA + dt), v(VA + dt), v(T3))
        if dlt:
            k.emit("v_add_u32", v(VA + dt), dlt & 0xFFFFFFFF, v(VA + dt))
    vfid = {}
    VAR = [VA + dt for dt in range(4)]

    def v_read(pos):
        j, f = divmod(pos, 8)
        t, dt = divmod(f, 4)
        st = 12 + j // 4
        if st > state["ready"]:
            ensure_stage(st, VAR)
        base = VFR + 4 * (pos % 8)
        for u in range(2):
            oid = k.emit("ds_read_b64_tr_b16", v(base + 2 * u, 2), v(VA + dt),
                         mods="offset:%d" % ((32 * (j % 4) + 16 * t + 8 * u) * 256))
        vfid[pos] = oid

    for pos in range(7):
        v_read(pos)
    for op in post_ops(15):
        op()
    k.emit("v_max_f32", v(MX), v(MX), v(MX + 1))
    k.emit("v_mov_b32", v(MX + 1), v(MX))
    k.emit("v_permlane32_swap_b32", v(MX), v(MX + 1))
    k.emit("v_max_f32", v(MX), v(MX), v(MX + 1))
    CS = LOG2E / (128.0 ** 0.5)
    k.emit("s_mov_b32", s(62), f32(CS))
    NM = T0
    k.emit("v_mul_f32", v(NM), f32(-CS), v(MX))
    SUM0, SUM1 = T1, T2
    k.emit("v_mov_b32", v(SUM0), 0)
    k.emit("v_mov_b32", v(SUM1), 0)

    def soft_ops(j, p):
        r = SP + 8 * j + p
        lo = TMP + 2 * (p % 8)
        hi = lo + 1
        return [
            lambda: k.emit("v_lshlrev_b32", v(lo), 16, v(r)),
            lambda: k.emit("v_and_b32", v(hi), 0xFFFF0000, v(r)),
            lambda: k.emit("v_fma_f32", v(lo), v(lo), s(62), v(NM)),
            lambda: k.emit("v_fma_f32", v(hi), v(hi), s(62), v(NM)),
            lambda: k.emit("v_exp_f32", v(lo), v(lo)),
            lambda: k.emit("v_exp_f32", v(hi), v(hi)),
            lambda: k.emit("v_add_f32", v(SUM0), v(SUM0), v(lo)),
            lambda: k.emit("v_add_f32", v(SUM1), v(SUM1), v(hi)),
            lambda: k.emit("v_cvt_pk_bf16_f32", v(r), v(lo), v(hi)),
        ]

    for p in range(8):
        for op in soft_ops(0, p):
            op()
    stamp("p3start")
    for pos in range(128):
        j, f = divmod(pos, 8)
        t, dt = divmod(f, 4)
        k.wait_lg(vfid[pos])
        a = OACC + 16 * dt
        c = v(a, 16) if pos >= 4 else "0"
        k.emit("v_mfma_f32_32x32x16_bf16", v(a, 16), v(VFR + 4 * (pos % 8), 4), v(SP + 8 * j + 4 * t, 4), c)
        if pos + 7 < 128:
            v_read(pos + 7)
        if j < 15:
            for op in soft_ops(j + 1, f):
                op()

    stamp("p3end")
    k.emit("v_add_f32", v(SUM0), v(SUM0), v(SUM1))
    k.emit("v_mov_b32", v(SUM1), v(SUM0))
    k.emit("v_permlane32_swap_b32", v(SUM0), v(SUM1))
    k.emit("v_add_f32", v(SUM0), v(SUM0), v(SUM1))
    k.emit("v_rcp_f32", v(SUM0), v(SUM0))
    k.emit("s_lshl_b32", s(57), s(48), 18)
    k.emit("v_lshl_add_u32", v(T3), v(LANE), 4, s(57))
    k.emit("s_mov_b32", s(61), 4096)
    for dt in range(4):
        for a2 in range(2):
            base = OACC + 16 * dt + 8 * a2
            for r in range(8):
                k.emit("v_mul_f32", v(base + r), v(base + r), v(SUM0))
            pk = SP + 4 * (2 * dt + a2)
            for p in range(4):
                k.emit("v_cvt_pk_bf16_f32", v(pk + p), v(base + 2 * p), v(base + 2 * p + 1))
            blk = 2 * dt + a2
            k.emit("buffer_store_dwordx4", v(pk, 4), v(T3), s(OS, 4), s(61) if blk >= 4 else 0,
                   mods="offen offset:%d" % (1024 * (blk % 4)))
    if STAMP:
        k.wait_vm0()
        stamp("end")
        k.srd(XN, 10, 1 << 20, add=60 << 20)
        k.emit("s_lshl_b32", s(57), s(2), 3)
        k.emit("s_add_u32", s(57), s(57), s(48))
        k.emit("s_lshl_b32", s(57), s(57), 7)
        k.emit("v_mov_b32", v(T0), 0)
        for i in range(len(stamps)):
            k.emit("v_mov_b32", v(T1), s(66 + i))
            k.emit("buffer_store_dword", v(T1), v(T0), s(XN, 4), s(57), mods="offen offset:%d" % (4 * i))
        print("STAMPS", stamps)
    k.label("L_at_end")
    return k, 256, 100
```

```python
import os
import struct
import sys

sys.path.insert(0, os.path.dirname(os.path.abspath(__file__)))
from asmlib import Kern, v, s

NAME = "recurrent_scan__sliding_block_cached__geglu_ffn__prompt"
XN_OFF = 0
O_OFF = 2 << 20
H_OFF = 18 << 20
H_RGS = 88 * 1024
PART_OFF = 24 << 20
LOG2E = 1.4426950408889634


def f32(x):
    return "0x%08x" % struct.unpack("<I", struct.pack("<f", x))[0]


def wave_allreduce_add(k, val, tmp):
    for x in (1, 2, 4, 8, 16):
        o = k.emit("ds_swizzle_b32", v(tmp), v(val), mods="offset:0x%04x" % ((x << 10) | 0x1F))
        k.wait_lg(o)
        k.emit("v_add_f32", v(val), v(val), v(tmp))
    k.emit("v_mov_b32", v(tmp), v(val))
    k.emit("v_permlane32_swap_b32", v(val), v(tmp))
    k.emit("v_add_f32", v(val), v(val), v(tmp))


def gen_ln():
    k = Kern("ln_kernel")
    k.emit("s_cmp_ge_u32", s(2), 512)
    k.emit("s_cbranch_scc1", "L_ln_end")
    k.emit("s_load_dwordx2", s(4, 2), s(0, 2), 0)
    k.emit("s_load_dwordx2", s(6, 2), s(0, 2), 88)
    k.emit("v_lshlrev_b32", v(1), 4, v(0))
    k.emit("s_lshl_b32", s(3), s(2), 12)
    k.raw("    s_waitcnt lgkmcnt(0)")
    k.srd(8, 4, 2048 * 1024)
    k.srd(12, 6, 2048 * 1024, add=XN_OFF)
    o = k.emit("buffer_load_dwordx4", v(4, 4), v(1), s(8, 4), s(3), mods="offen")
    k.wait_vm(o)
    for i in range(4):
        k.emit("v_lshlrev_b32", v(8 + 2 * i), 16, v(4 + i))
        k.emit("v_and_b32", v(9 + 2 * i), 0xFFFF0000, v(4 + i))
    k.emit("v_add_f32", v(16), v(8), v(9))
    for i in range(2, 8):
        k.emit("v_add_f32", v(16), v(16), v(8 + i))
    wave_allreduce_add(k, 16, 17)
    k.emit("v_mul_f32", v(16), f32(1.0 / 512), v(16))
    k.emit("v_sub_f32", v(18), v(8), v(16))
    k.emit("v_mul_f32", v(19), v(18), v(18))
    for i in range(1, 8):
        k.emit("v_sub_f32", v(18), v(8 + i), v(16))
        k.emit("v_fmac_f32", v(19), v(18), v(18))
    wave_allreduce_add(k, 19, 17)
    k.emit("v_mul_f32", v(19), f32(1.0 / 512), v(19))
    k.emit("v_cvt_pk_bf16_f32", v(20), v(16), v(19))
    k.emit("v_lshlrev_b32", v(16), 16, v(20))
    k.emit("v_and_b32", v(19), 0xFFFF0000, v(20))
    k.emit("v_add_f32", v(19), f32(1e-5), v(19))
    k.emit("v_cvt_pk_bf16_f32", v(20), v(19), v(19))
    k.emit("v_lshlrev_b32", v(19), 16, v(20))
    k.emit("v_sqrt_f32", v(19), v(19))
    k.emit("v_cvt_pk_bf16_f32", v(20), v(19), v(19))
    k.emit("v_lshlrev_b32", v(19), 16, v(20))
    k.emit("v_rcp_f32", v(19), v(19))
    for i in range(4):
        k.emit("v_sub_f32", v(20), v(8 + 2 * i), v(16))
        k.emit("v_sub_f32", v(21), v(9 + 2 * i), v(16))
        k.emit("v_cvt_pk_bf16_f32", v(22), v(20), v(21))
        k.emit("v_lshlrev_b32", v(20), 16, v(22))
        k.emit("v_and_b32", v(21), 0xFFFF0000, v(22))
        k.emit("v_mul_f32", v(20), v(20), v(19))
        k.emit("v_mul_f32", v(21), v(21), v(19))
        k.emit("v_cvt_pk_bf16_f32", v(24 + i), v(20), v(21))
    k.emit("v_and_b32", v(2), 63, v(0))
    k.emit("v_lshrrev_b32", v(3), 1, v(2))
    k.emit("v_lshlrev_b32", v(3), 10, v(3))
    k.emit("v_and_b32", v(2), 1, v(2))
    k.emit("v_lshl_add_u32", v(3), v(2), 9, v(3))
    k.emit("v_lshrrev_b32", v(2), 6, v(0))
    k.emit("v_lshl_add_u32", v(3), v(2), 4, v(3))
    k.emit("s_lshr_b32", s(16), s(2), 3)
    k.emit("s_lshl_b32", s(16), s(16), 15)
    k.emit("s_and_b32", s(17), s(2), 7)
    k.emit("s_lshl_b32", s(17), s(17), 6)
    k.emit("s_add_u32", s(16), s(16), s(17))
    k.emit("buffer_store_dwordx4", v(24, 4), v(3), s(12, 4), s(16), mods="offen")
    if os.environ.get("PREF", "1") == "1":
        k.emit("s_load_dwordx4", s(20, 4), s(0, 2), 8)
        k.emit("s_load_dwordx2", s(24, 2), s(0, 2), 24)
        k.emit("s_load_dwordx4", s(28, 4), s(0, 2), 48)
        k.emit("v_lshrrev_b32", v(2), 6, v(0))
        k.emit("v_readfirstlane_b32", s(18), v(2))
        k.emit("v_and_b32", v(2), 63, v(0))
        k.emit("s_and_b32", s(19), s(2), 7)
        k.emit("s_lshl_b32", s(19), s(19), 2)
        k.emit("s_add_u32", s(19), s(19), s(18))
        k.emit("s_lshr_b32", s(26), s(2), 3)
        k.raw("    s_waitcnt lgkmcnt(0)")
        k.srd(32, 20, 16 << 20)
        k.srd(36, 22, 16 << 20)
        k.srd(40, 24, 4 << 20)
        k.srd(44, 28, 512 * 2752)
        k.srd(48, 30, 512 * 2752)
        k.emit("v_lshlrev_b32", v(4), 4, v(2))
        k.emit("v_lshrrev_b32", v(5), 4, v(2))
        k.emit("v_and_b32", v(6), 15, v(2))
        k.emit("v_lshlrev_b32", v(6), 4, v(6))
        k.emit("v_lshl_add_u32", v(5), v(5), 13, v(6))
        k.emit("v_min_u32", v(6), 47, v(2))
        k.emit("v_mul_u32_u24", v(7), 43, v(6))
        k.emit("v_lshrrev_b32", v(7), 8, v(7))
        k.emit("v_mul_u32_u24", v(8), 6, v(7))
        k.emit("v_sub_u32", v(8), v(6), v(8))
        k.emit("v_mul_u32_u24", v(7), 2752, v(7))
        k.emit("v_lshrrev_b32", v(9), 1, v(8))
        k.emit("v_lshl_add_u32", v(7), v(9), 10, v(7))
        k.emit("v_and_b32", v(8), 1, v(8))
        k.emit("v_lshl_add_u32", v(7), v(8), 4, v(7))
        k.emit("s_lshl_b32", s(27), s(19), 19)
        k.emit("s_lshl_b32", s(52), s(26), 11)
        k.emit("s_add_u32", s(27), s(27), s(52))
        k.emit("s_add_u32", s(27), s(27), 1536 * 256)
        for j in range(2):
            k.emit("buffer_load_dwordx4", v(8 + 4 * j, 4), v(4), s(32, 4), s(27), mods="offen offset:%d" % (1024 * j))
            k.emit("buffer_load_dwordx4", v(16 + 4 * j, 4), v(4), s(36, 4), s(27), mods="offen offset:%d" % (1024 * j))
        k.emit("s_lshl_b32", s(27), s(26), 16)
        k.emit("s_lshl_b32", s(52), s(19), 8)
        k.emit("s_add_u32", s(27), s(27), s(52))
        k.emit("buffer_load_dwordx4", v(28, 4), v(5), s(40, 4), s(27), mods="offen")
        k.emit("s_add_u32", s(27), s(27), 32768)
        k.emit("buffer_load_dwordx4", v(32, 4), v(5), s(40, 4), s(27), mods="offen")
        k.emit("s_mul_i32", s(27), s(26), 8 * 2752)
        k.emit("s_lshl_b32", s(52), s(19), 5)
        k.emit("s_add_u32", s(27), s(27), s(52))
        k.emit("buffer_load_dwordx4", v(36, 4), v(7), s(44, 4), s(27), mods="offen")
        k.emit("buffer_load_dwordx4", v(40, 4), v(7), s(48, 4), s(27), mods="offen")
        k.raw("    s_waitcnt vmcnt(0)")
    k.label("L_ln_end")
    return k, 44, 56


def gen_fin():
    k = Kern("fin_kernel")
    k.emit("s_cmp_ge_u32", s(2), 512)
    k.emit("s_cbranch_scc1", "L_fin_end")
    k.emit("s_load_dwordx2", s(4, 2), s(0, 2), 0)
    k.emit("s_load_dwordx2", s(6, 2), s(0, 2), 72)
    k.emit("s_load_dwordx2", s(16, 2), s(0, 2), 88)
    k.emit("v_and_b32", v(1), 63, v(0))
    k.emit("v_lshrrev_b32", v(2), 6, v(0))
    k.emit("v_and_b32", v(3), 1, v(2))
    k.emit("v_lshrrev_b32", v(4), 1, v(2))
    k.emit("s_and_b32", s(20), s(2), 1)
    k.emit("s_lshr_b32", s(21), s(2), 1)
    k.emit("s_and_b32", s(21), s(21), 3)
    k.emit("s_lshr_b32", s(22), s(2), 3)
    k.emit("s_lshr_b32", s(23), s(2), 1)
    k.emit("s_lshl_b32", s(23), s(23), 14)
    k.emit("s_lshl_b32", s(24), s(20), 13)
    k.emit("s_add_u32", s(23), s(23), s(24))
    k.emit("v_lshlrev_b32", v(5), 12, v(4))
    k.emit("v_lshl_add_u32", v(5), v(3), 11, v(5))
    k.emit("v_lshl_add_u32", v(5), v(1), 4, v(5))
    k.emit("s_lshr_b32", s(25), s(22), 2)
    k.emit("s_and_b32", s(26), s(22), 3)
    k.emit("s_lshr_b32", s(27), s(21), 1)
    k.emit("s_and_b32", s(28), s(21), 1)
    k.emit("s_lshl_b32", s(25), s(25), 7)
    k.emit("s_lshl_b32", s(27), s(27), 6)
    k.emit("s_add_u32", s(25), s(25), s(27))
    k.emit("s_lshl_b32", s(25), s(25), 10)
    k.emit("s_lshl_b32", s(26), s(26), 7)
    k.emit("s_lshl_b32", s(28), s(28), 6)
    k.emit("s_add_u32", s(26), s(26), s(28))
    k.emit("s_lshl_b32", s(29), s(20), 5)
    k.emit("s_add_u32", s(26), s(26), s(29))
    k.emit("s_lshl_b32", s(26), s(26), 1)
    k.emit("s_add_u32", s(25), s(25), s(26))
    k.emit("v_and_b32", v(6), 31, v(1))
    k.emit("v_lshl_add_u32", v(6), v(4), 5, v(6))
    k.emit("v_lshlrev_b32", v(6), 10, v(6))
    k.emit("v_lshl_add_u32", v(6), v(3), 5, v(6))
    k.emit("v_lshrrev_b32", v(7), 5, v(1))
    k.emit("v_lshl_add_u32", v(6), v(7), 4, v(6))
    k.raw("    s_waitcnt lgkmcnt(0)")
    k.srd(8, 4, 2048 * 1024)
    k.srd(12, 6, 2048 * 1024)
    k.srd(32, 16, 16 << 20, add=PART_OFF)
    ids = []
    for sp in range(4):
        k.emit("s_add_u32", s(36 + sp), s(23), sp * (4 << 20))
    for sp in range(4):
        for j in range(2):
            ids.append(k.emit("buffer_load_dwordx4", v(8 + sp * 8 + 4 * j, 4), v(5), s(32, 4), s(36 + sp),
                              mods="offen offset:%d" % (1024 * j)))
    ox = k.emit("buffer_load_dwordx4", v(40, 4), v(6), s(8, 4), s(25), mods="offen")
    k.wait_vm(ids[5])
    for i in range(8):
        k.emit("v_add_f32", v(8 + i), v(8 + i), v(16 + i))
        k.emit("v_add_f32", v(8 + i), v(8 + i), v(24 + i))
    k.wait_vm(ids[7])
    for i in range(4):
        k.emit("v_cvt_pk_bf16_f32", v(44 + i), v(8 + 2 * i), v(9 + 2 * i))
        k.emit("v_cvt_pk_bf16_f32", v(48 + i), v(32 + 2 * i), v(33 + 2 * i))
    for i in range(4):
        k.emit("v_lshlrev_b32", v(8 + 2 * i), 16, v(44 + i))
        k.emit("v_and_b32", v(9 + 2 * i), 0xFFFF0000, v(44 + i))
        k.emit("v_lshlrev_b32", v(32 + 2 * i), 16, v(48 + i))
        k.emit("v_and_b32", v(33 + 2 * i), 0xFFFF0000, v(48 + i))
    for i in range(8):
        k.emit("v_mul_f32", v(16 + i), f32(-LOG2E), v(32 + i))
    for i in range(8):
        k.emit("v_exp_f32", v(16 + i), v(16 + i))
    for i in range(8):
        k.emit("v_add_f32", v(16 + i), 1.0, v(16 + i))
    for i in range(8):
        k.emit("v_rcp_f32", v(16 + i), v(16 + i))
    for i in range(8):
        k.emit("v_mul_f32", v(16 + i), v(16 + i), v(32 + i))
    for i in range(4):
        k.emit("v_cvt_pk_bf16_f32", v(48 + i), v(16 + 2 * i), v(17 + 2 * i))
    for i in range(4):
        k.emit("v_lshlrev_b32", v(16 + 2 * i), 16, v(48 + i))
        k.emit("v_and_b32", v(17 + 2 * i), 0xFFFF0000, v(48 + i))
    for i in range(8):
        k.emit("v_mul_f32", v(8 + i), v(8 + i), v(16 + i))
    for i in range(4):
        k.emit("v_cvt_pk_bf16_f32", v(44 + i), v(8 + 2 * i), v(9 + 2 * i))
    k.wait_vm(ox)
    for i in range(4):
        k.emit("v_lshlrev_b32", v(8 + 2 * i), 16, v(44 + i))
        k.emit("v_and_b32", v(9 + 2 * i), 0xFFFF0000, v(44 + i))
        k.emit("v_lshlrev_b32", v(16 + 2 * i), 16, v(40 + i))
        k.emit("v_and_b32", v(17 + 2 * i), 0xFFFF0000, v(40 + i))
    for i in range(8):
        k.emit("v_add_f32", v(8 + i), v(8 + i), v(16 + i))
    for i in range(4):
        k.emit("v_cvt_pk_bf16_f32", v(44 + i), v(8 + 2 * i), v(9 + 2 * i))
    k.emit("buffer_store_dwordx4", v(44, 4), v(6), s(12, 4), s(25), mods="offen")
    k.label("L_fin_end")
    return k, 52, 44


def bs2_lane(k, dst, lane, tmp):
    k.emit("v_and_b32", v(tmp), 1, v(lane))
    k.emit("v_lshlrev_b32", v(dst), 4, v(tmp))
    k.emit("v_and_b32", v(tmp), 2, v(lane))
    k.emit("v_lshl_add_u32", v(dst), v(tmp), 2, v(dst))


def gen_gemm2():
    k = Kern("gemm2_kernel")
    SLOT = 32768
    NSLOT = 5
    k.emit("s_cmp_ge_u32", s(2), 256)
    k.emit("s_cbranch_scc1", "L_g2_end")
    k.emit("s_load_dwordx2", s(4, 2), s(0, 2), 32)
    k.emit("s_load_dwordx2", s(6, 2), s(0, 2), 64)
    k.emit("s_load_dwordx2", s(8, 2), s(0, 2), 88)
    k.emit("v_lshrrev_b32", v(1), 6, v(0))
    k.emit("v_and_b32", v(2), 63, v(0))
    k.emit("v_readfirstlane_b32", s(40), v(1))
    k.emit("s_and_b32", s(41), s(2), 3)
    k.emit("s_lshr_b32", s(42), s(2), 2)
    k.emit("s_and_b32", s(42), s(42), 1)
    k.emit("s_lshr_b32", s(43), s(2), 5)
    k.emit("s_lshl_b32", s(42), s(42), 3)
    k.emit("s_add_u32", s(42), s(42), s(43))
    k.emit("s_lshr_b32", s(43), s(2), 3)
    k.emit("s_and_b32", s(43), s(43), 3)
    k.emit("s_mov_b32", s(44), 0)
    k.emit("s_mov_b32", s(45), 22)
    k.emit("s_cmp_eq_u32", s(41), 1)
    k.emit("s_cselect_b32", s(44), 1408, s(44))
    k.emit("s_cselect_b32", s(45), 21, s(45))
    k.emit("s_cmp_eq_u32", s(41), 2)
    k.emit("s_cselect_b32", s(44), 2752, s(44))
    k.emit("s_cselect_b32", s(45), 21, s(45))
    k.emit("s_mov_b32", s(46), 262144)
    k.emit("s_mov_b32", s(47), O_OFF)
    k.emit("s_cmp_eq_u32", s(41), 3)
    k.emit("s_cselect_b32", s(46), H_RGS, s(46))
    k.emit("s_cselect_b32", s(47), H_OFF, s(47))
    k.emit("s_mul_i32", s(48), s(42), s(46))
    k.emit("s_lshl_b32", s(48), s(48), 2)
    k.emit("s_add_u32", s(47), s(47), s(48))
    k.emit("s_lshl_b32", s(48), s(44), 6)
    k.emit("s_add_u32", s(47), s(47), s(48))
    k.emit("s_lshl_b32", s(49), s(44), 10)
    k.emit("s_lshl_b32", s(48), s(43), 8)
    k.emit("s_add_u32", s(49), s(49), s(48))
    k.raw("    s_waitcnt lgkmcnt(0)")
    k.emit("s_mov_b32", s(50), 4096 * 1024)
    k.emit("s_cmp_eq_u32", s(41), 3)
    k.emit("s_cselect_b32", s(4), s(6), s(4))
    k.emit("s_cselect_b32", s(5), s(7), s(5))
    k.emit("s_cselect_b32", s(50), 1376 * 1024, s(50))
    k.emit("s_sub_u32", s(50), s(50), s(49))
    k.emit("s_add_u32", s(12), s(8), s(47))
    k.emit("s_addc_u32", s(13), s(9), 0)
    k.emit("s_and_b32", s(13), s(13), 0xFFFF)
    k.emit("s_lshl_b32", s(51), s(46), 2)
    k.emit("s_mov_b32", s(14), s(51))
    k.emit("s_mov_b32", s(15), 0x00020000)
    k.emit("s_add_u32", s(16), s(4), s(49))
    k.emit("s_addc_u32", s(17), s(5), 0)
    k.emit("s_and_b32", s(17), s(17), 0xFFFF)
    k.emit("s_mov_b32", s(18), s(50))
    k.emit("s_mov_b32", s(19), 0x00020000)
    k.srd(20, 8, 16 << 20, add=PART_OFF)
    k.emit("v_lshlrev_b32", v(3), 4, v(2))
    k.emit("v_lshrrev_b32", v(4), 4, v(2))
    k.emit("v_bfe_u32", v(5), v(2), 2, 2)
    k.emit("v_xor_b32", v(5), v(5), v(4))
    k.emit("v_lshlrev_b32", v(5), 6, v(5))
    k.emit("v_lshl_add_u32", v(5), v(4), 10, v(5))
    k.emit("v_and_b32", v(4), 3, v(2))
    k.emit("v_lshl_add_u32", v(6), v(4), 4, v(5))
    for i in range(4):
        k.emit("s_add_u32", s(53), s(40), 4 * i)
        k.emit("s_mul_i32", s(56 + i), s(40), s(46))
        k.emit("s_add_u32", s(56 + i), s(56 + i), 1024 * i)
        k.emit("s_lshl_b32", s(60 + i), s(53), 12)
    k.emit("s_lshl_b32", s(64), s(40), 10)
    k.emit("s_lshl_b32", s(82), s(40), 12)
    k.emit("s_mov_b32", s(65), 0)
    k.emit("s_mov_b32", s(66), 0)

    def issue_dma():
        k.emit("s_cmp_lt_u32", s(65), s(45))
        k.emit("s_cselect_b32", s(14), s(51), 0)
        k.emit("s_cselect_b32", s(18), s(50), 0)
        k.emit("s_add_u32", s(67), s(66), s(64))
        k.emit("s_add_u32", s(83), s(66), s(82))
        prev = None
        for i in range(8):
            if i < 4:
                k.emit("s_add_u32", "m0", s(83), 1024 * i)
            else:
                k.emit("s_add_u32", "m0", s(67), 4096 * i)
            if prev is not None:
                k.emit("s_add_u32", s(prev[0]), s(prev[0]), prev[1])
            else:
                k.emit("s_add_u32", s(65), s(65), 1)
            if i < 4:
                k.emit("buffer_load_dwordx4", v(3), s(12, 4), s(56 + i), mods="offen lds")
                prev = (56 + i, 4096)
            else:
                k.emit("buffer_load_dwordx4", v(6), s(16, 4), s(56 + i), mods="offen lds")
                prev = (56 + i, 65536)
        k.emit("s_add_u32", s(prev[0]), s(prev[0]), prev[1])
        k.emit("s_add_u32", s(66), s(66), SLOT)
        k.emit("s_cmp_eq_u32", s(66), SLOT * NSLOT)
        k.emit("s_cselect_b32", s(66), 0, s(66))

    k.emit("s_lshr_b32", s(68), s(40), 1)
    k.emit("s_and_b32", s(69), s(40), 1)
    k.emit("v_lshrrev_b32", v(7), 5, v(2))
    k.emit("s_lshl_b32", s(53), s(68), 13)
    k.emit("v_lshl_add_u32", v(8), v(2), 4, s(53))
    k.emit("v_bfe_u32", v(4), v(2), 2, 2)
    k.emit("v_lshl_add_u32", v(5), v(7), 3, v(4))
    k.emit("v_lshlrev_b32", v(5), 8, v(5))
    k.emit("v_add_u32", v(5), 16384, v(5))
    k.emit("v_bfe_u32", v(14), v(2), 4, 1)
    k.emit("v_lshl_add_u32", v(5), v(14), 5, v(5))
    bs2_lane(k, 14, 2, 15)
    k.emit("v_add_u32", v(5), v(5), v(14))
    k.emit("s_lshl_b32", s(53), s(69), 1)
    for tn in range(2):
        k.emit("s_add_u32", s(54), s(53), tn)
        k.emit("v_xor_b32", v(14), s(54), v(4))
        k.emit("v_lshl_add_u32", v(12 + tn), v(14), 6, v(5))
    ACC = 64
    for i in range(64):
        k.emit("v_mov_b32", v(ACC + i), 0)

    def reads(t, fs):
        base = 16 + 16 * fs
        for tn in range(2):
            for u in range(2):
                k.emit("ds_read_b64_tr_b16", v(base + 4 * tn + 2 * u, 2), v(12 + tn),
                       mods="offset:%d" % ((16 * t + 4 * u) * 256))
        for tm in range(2):
            k.emit("ds_read_b128", v(base + 8 + 4 * tm, 4), v(8), mods="offset:%d" % (4096 * tm + 1024 * t))

    def mfmas(fs):
        base = 16 + 16 * fs
        for tn in range(2):
            for tm in range(2):
                a = ACC + 16 * (tn * 2 + tm)
                k.emit("v_mfma_f32_32x32x16_bf16", v(a, 16), v(base + 4 * tn, 4), v(base + 8 + 4 * tm, 4), v(a, 16))

    for i in range(4):
        issue_dma()
    k.raw("    s_waitcnt vmcnt(24)")
    k.emit("s_barrier")
    reads(0, 0)
    k.emit("s_mov_b32", s(78), 0)
    k.emit("s_mov_b32", s(79), 0)
    k.emit("s_mov_b32", s(81), SLOT)
    k.label("L_g2_loop")
    for t in range(3):
        reads(t + 1, (t + 1) & 1)
        k.raw("    s_waitcnt lgkmcnt(6)")
        mfmas(t & 1)
    k.raw("    s_waitcnt vmcnt(16)")
    k.emit("s_barrier")
    k.emit("s_add_u32", s(79), s(79), SLOT)
    k.emit("s_cmp_eq_u32", s(79), SLOT * NSLOT)
    k.emit("s_cselect_b32", s(79), 0, s(79))
    k.emit("s_cselect_b32", s(80), -SLOT * (NSLOT - 1) & 0xFFFFFFFF, s(81))
    for r in (8, 12, 13):
        k.emit("v_add_u32", v(r), s(80), v(r))
    reads(0, 0)
    issue_dma()
    k.raw("    s_waitcnt lgkmcnt(6)")
    mfmas(1)
    k.emit("s_add_u32", s(78), s(78), 1)
    k.emit("s_cmp_lt_u32", s(78), s(45))
    k.emit("s_cbranch_scc1", "L_g2_loop")
    k.lgq = []
    k.vmq = []
    k.nop(16)
    k.emit("s_lshl_b32", s(53), s(41), 6)
    k.emit("s_lshl_b32", s(54), s(42), 2)
    k.emit("s_add_u32", s(53), s(53), s(54))
    k.emit("s_add_u32", s(53), s(53), s(43))
    k.emit("s_lshl_b32", s(53), s(53), 2)
    k.emit("s_add_u32", s(53), s(53), s(40))
    k.emit("s_lshl_b32", s(53), s(53), 14)
    k.emit("v_lshlrev_b32", v(4), 4, v(2))
    for q in range(16):
        if q % 4 == 0 and q:
            k.emit("s_add_u32", s(53), s(53), 4096)
        k.emit("buffer_store_dwordx4", v(ACC + 4 * q, 4), v(4), s(20, 4), s(53), mods="offen offset:%d" % (1024 * (q % 4)))
    k.raw("    s_waitcnt vmcnt(0)")
    k.label("L_g2_end")
    return k, 128, 88


from gen_attn import gen_attn


def main():
    ks = []
    launches = []
    k, nv, ns = gen_ln()
    ks.append((k, nv, ns))
    launches.append("; @launch kernel=ln_kernel grid=(512,1,1) block=(256,1,1) lds=0")
    k, nv, ns = gen_attn()
    ks.append((k, nv, ns))
    launches.append("; @launch kernel=attn_kernel grid=(256,1,1) block=(512,1,1) lds=163840")
    k, nv, ns = gen_gemm2()
    ks.append((k, nv, ns))
    launches.append("; @launch kernel=gemm2_kernel grid=(256,1,1) block=(256,1,1) lds=163840")
    k, nv, ns = gen_fin()
    ks.append((k, nv, ns))
    launches.append("; @launch kernel=fin_kernel grid=(512,1,1) block=(256,1,1) lds=0")
    out = []
    out.extend(launches)
    out.append('.amdgcn_target "amdgcn-amd-amdhsa--gfx950"')
    out.append(".text")
    descs = []
    for k, nv, ns in ks:
        assert k.maxv < nv, (k.name, k.maxv, nv)
        body, desc = k.text(nv, ns)
        out.append(body)
        descs.append(desc)
        print(k.name, "maxv", k.maxv, k.count, file=sys.stderr)
    out.append('.section .rodata,"a"')
    out.extend(descs)
    path = os.path.join(os.path.dirname(os.path.abspath(__file__)), "..", "cdna_kernels", NAME + ".s")
    with open(path, "w") as f:
        f.write("\n".join(out) + "\n")


if __name__ == "__main__":
    main()
```

```python
import struct
from asmlib import Kern, v, s

XN_OFF = 0
O_OFF = 2 << 20
H_OFF = 18 << 20
H_RGS = 88 * 1024
LOG2E = 1.4426950408889634
SLOT = 32768
NSLOT = 5
G_REG = 16384
U_REG = 22656


def f32(x):
    return "0x%08x" % struct.unpack("<I", struct.pack("<f", x))[0]


import os
STAMP = os.environ.get("STAMP", "0") == "1"


def gen_attn():
    k = Kern("attn_kernel")
    stamps = []

    def stamp(name):
        if not STAMP:
            return
        i = len(stamps)
        stamps.append(name)
        k.raw("    s_memtime s[98:99]")
        k.wait_lg0()
        k.emit("s_mov_b32", s(66 + i), s(98))

    def rawi(text):
        k.raw("    " + text)
        k.pos += 1

    k.emit("s_cmp_ge_u32", s(2), 256)
    k.emit("s_cbranch_scc1", "L_at_end")
    k.emit("s_load_dwordx4", s(4, 4), s(0, 2), 8)
    k.emit("s_load_dwordx2", s(8, 2), s(0, 2), 24)
    k.emit("s_load_dwordx4", s(12, 4), s(0, 2), 48)
    k.emit("s_load_dwordx2", s(10, 2), s(0, 2), 88)
    LANE, VX, VW, VG, VK, VV, T0, VA, VF, T1, T2, T3 = 1, 2, 3, 4, 5, 6, 7, 8, 12, 13, 14, 15
    k.emit("v_lshrrev_b32", v(T0), 6, v(0))
    k.emit("v_and_b32", v(LANE), 63, v(0))
    k.emit("v_readfirstlane_b32", s(48), v(T0))
    MAP = os.environ.get("MAP", "0")
    if MAP == "0":
        k.emit("s_and_b32", s(49), s(2), 7)
        k.emit("s_lshl_b32", s(49), s(49), 2)
        k.emit("s_lshr_b32", s(51), s(2), 3)
        k.emit("s_and_b32", s(51), s(51), 3)
        k.emit("s_add_u32", s(49), s(49), s(51))
        k.emit("s_lshr_b32", s(50), s(2), 5)
    elif MAP == "1":
        k.emit("s_and_b32", s(50), s(2), 7)
        k.emit("s_lshr_b32", s(49), s(2), 3)
    elif MAP == "2":
        k.emit("s_and_b32", s(49), s(2), 1)
        k.emit("s_lshl_b32", s(49), s(49), 4)
        k.emit("s_lshr_b32", s(51), s(2), 3)
        k.emit("s_and_b32", s(51), s(51), 15)
        k.emit("s_add_u32", s(49), s(49), s(51))
        k.emit("s_lshr_b32", s(50), s(2), 1)
        k.emit("s_and_b32", s(50), s(50), 3)
        k.emit("s_lshl_b32", s(50), s(50), 1)
        k.emit("s_lshr_b32", s(51), s(2), 7)
        k.emit("s_add_u32", s(50), s(50), s(51))
    SW1024, SW2048, SW65536, SW768, SW22016 = 52, 53, 54, 55, 56
    k.emit("s_lshl_b32", s(SW1024), s(48), 10)
    k.emit("s_lshl_b32", s(SW2048), s(48), 11)
    k.emit("s_lshl_b32", s(SW65536), s(48), 16)
    k.emit("s_mul_i32", s(SW768), s(48), 768)
    k.emit("s_mul_i32", s(SW22016), s(48), 22016)
    k.raw("    s_waitcnt lgkmcnt(0)")

    def srd_dyn(d, base, off_s, nrec_s=None, nrec=None, add=0):
        k.emit("s_add_u32", s(d), s(base), s(off_s))
        k.emit("s_addc_u32", s(d + 1), s(base + 1), 0)
        if add:
            k.emit("s_add_u32", s(d), s(d), add)
            k.emit("s_addc_u32", s(d + 1), s(d + 1), 0)
        k.emit("s_and_b32", s(d + 1), s(d + 1), 0xFFFF)
        if nrec_s is not None:
            k.emit("s_mov_b32", s(d + 2), s(nrec_s))
        else:
            k.emit("s_mov_b32", s(d + 2), nrec)
        k.emit("s_mov_b32", s(d + 3), 0x00020000)

    XN, WQ, GS, US, KS, VS, OS, HS = 16, 20, 24, 28, 32, 36, 40, 44
    k.emit("s_lshl_b32", s(57), s(50), 18)
    srd_dyn(XN, 10, 57, nrec=256 * 1024, add=XN_OFF)
    k.emit("s_lshl_b32", s(57), s(49), 8)
    k.emit("s_sub_u32", s(58), 4 << 20, s(57))
    srd_dyn(WQ, 8, 57, nrec_s=58)
    k.emit("s_lshl_b32", s(59), s(49), 5)
    SH32 = 59
    k.emit("s_sub_u32", s(58), 512 * 2752, s(SH32))
    srd_dyn(GS, 12, SH32, nrec_s=58)
    srd_dyn(US, 14, SH32, nrec_s=58)
    k.emit("s_lshl_b32", s(58), s(49), 19)
    srd_dyn(KS, 4, 58, nrec=131072, add=1536 * 256)
    srd_dyn(VS, 6, 58, nrec=131072, add=1536 * 256)
    k.emit("s_lshl_b32", s(58), s(50), 21)
    k.emit("s_lshl_b32", s(57), s(49), 13)
    k.emit("s_add_u32", s(58), s(58), s(57))
    k.emit("s_sub_u32", s(60), 8 * 262144, s(57))
    srd_dyn(OS, 10, 58, nrec_s=60, add=O_OFF)
    k.emit("s_mul_i32", s(58), s(50), 8 * H_RGS)
    srd_dyn(HS, 10, 58, nrec=8 * H_RGS, add=H_OFF)

    HH = T3
    k.emit("v_lshrrev_b32", v(HH), 5, v(LANE))
    k.emit("s_lshl_b32", s(57), s(48), 15)
    k.emit("v_lshl_add_u32", v(VX), v(LANE), 4, s(57))
    k.emit("v_lshrrev_b32", v(T0), 4, v(LANE))
    k.emit("v_bfe_u32", v(T1), v(LANE), 2, 2)
    k.emit("v_xor_b32", v(T1), v(T1), v(T0))
    k.emit("v_lshlrev_b32", v(T1), 6, v(T1))
    k.emit("v_and_b32", v(T2), 3, v(LANE))
    k.emit("v_lshl_add_u32", v(T1), v(T2), 4, v(T1))
    k.emit("v_lshl_add_u32", v(VW), v(T0), 13, v(T1))
    k.emit("v_lshl_add_u32", v(VV), v(T0), 8, v(T1))
    k.emit("s_and_b32", s(57), s(48), 3)
    k.emit("s_lshl_b32", s(57), s(57), 2)
    k.emit("v_add_u32", v(T1), s(57), v(T0))
    k.emit("v_and_b32", v(T2), 15, v(LANE))
    k.emit("v_xor_b32", v(T1), v(T1), v(T2))
    k.emit("v_lshlrev_b32", v(T1), 4, v(T1))
    k.emit("v_lshl_add_u32", v(VK), v(T0), 8, v(T1))
    k.emit("v_mul_u32_u24", v(T0), 43, v(LANE))
    k.emit("v_lshrrev_b32", v(T0), 8, v(T0))
    k.emit("v_mul_u32_u24", v(T1), 6, v(T0))
    k.emit("v_sub_u32", v(T1), v(LANE), v(T1))
    k.emit("v_mul_u32_u24", v(T0), 2752, v(T0))
    k.emit("v_lshrrev_b32", v(T2), 1, v(T1))
    k.emit("v_lshl_add_u32", v(T0), v(T2), 10, v(T0))
    k.emit("v_and_b32", v(T1), 1, v(T1))
    k.emit("v_lshl_add_u32", v(VG), v(T1), 4, v(T0))
    k.emit("v_bfe_u32", v(T0), v(LANE), 2, 2)
    k.emit("v_and_b32", v(T2), 1, v(LANE))
    k.emit("v_lshlrev_b32", v(T1), 4, v(T2))
    k.emit("v_and_b32", v(T2), 2, v(LANE))
    k.emit("v_lshl_add_u32", v(T1), v(T2), 2, v(T1))
    k.emit("v_bfe_u32", v(T2), v(LANE), 4, 1)
    k.emit("v_lshl_add_u32", v(T1), v(T2), 5, v(T1))
    k.emit("v_mul_u32_u24", v(VF), U_REG - G_REG - 32, v(T2))
    k.emit("v_add_u32", v(VF), v(VF), v(T1))
    k.emit("v_lshl_add_u32", v(T2), v(HH), 3, v(T0))
    k.emit("v_mul_u32_u24", v(T2), 96, v(T2))
    k.emit("v_add_u32", v(VF), v(VF), v(T2))
    k.emit("v_add_u32", v(VF), G_REG, v(VF))
    k.emit("v_lshl_add_u32", v(T2), v(HH), 3, v(T0))
    k.emit("v_lshl_add_u32", v(T1), v(T2), 8, v(T1))
    for dt in range(4):
        k.emit("v_xor_b32", v(T2), dt, v(T0))
        k.emit("v_lshl_add_u32", v(VA + dt), v(T2), 6, v(T1))

    ACCQ, ACCF, XF, WF = 16, 80, 128, 176
    QF, SP, SACC, KF, KA, MX = 224, 80, 16, 48, 208, 13
    OACC, VFR, TMP = 16, 208, 240

    dma_last = {}
    xn_last = {}
    SR8, SR4 = 90, 91
    k.emit("s_and_b32", s(SR8), s(49), 3)
    k.emit("s_lshl_b32", s(SR8), s(SR8), 1)
    k.emit("s_add_u32", s(SR8), s(SR8), s(50))
    k.emit("s_add_u32", s(SR4), s(49), s(50))
    if os.environ.get("AROT", "1") == "0":
        k.emit("s_mov_b32", s(SR8), 0)
        k.emit("s_mov_b32", s(SR4), 0)

    def dma_stage(st):
        if st > 15:
            return
        slot = (st % NSLOT) * SLOT
        if st < 8:
            k.emit("s_add_u32", s(92), s(SR8), st)
            k.emit("s_and_b32", s(92), s(92), 7)
            k.emit("s_lshl_b32", s(93), s(92), 19)
            k.emit("s_add_u32", s(93), s(93), s(SW65536))
            for j in range(2):
                k.emit("s_add_u32", "m0", s(SW2048), slot + 1024 * j)
                k.emit("s_add_u32", s(61), s(93), j * 32768)
                k.emit("buffer_load_dwordx4", v(VW), s(WQ, 4), s(61), mods="offen lds")
            rawi("s_mov_b32 exec_hi, 0xffff")
            k.emit("s_add_u32", "m0", s(SW768), slot + G_REG)
            k.emit("s_mul_i32", s(61), s(92), 64 * 2752)
            k.emit("s_add_u32", s(61), s(61), s(SW22016))
            k.emit("buffer_load_dwordx4", v(VG), s(GS, 4), s(61), mods="offen lds")
            k.emit("s_add_u32", "m0", s(SW768), slot + U_REG)
            k.emit("s_nop", 0)
            oid = k.emit("buffer_load_dwordx4", v(VG), s(US, 4), s(61), mods="offen lds")
            rawi("s_mov_b32 exec_hi, -1")
        else:
            j = (st - 8) % 4
            srd, vo = (KS, VK) if st < 12 else (VS, VV)
            k.emit("s_add_u32", s(92), s(SR4), j)
            k.emit("s_and_b32", s(92), s(92), 3)
            k.emit("s_lshl_b32", s(92), s(92), 15)
            k.emit("s_add_u32", s(92), s(92), s(SW1024))
            for i in range(4):
                k.emit("s_add_u32", "m0", s(SW1024), slot + 8192 * i)
                k.emit("s_add_u32", s(61), s(92), i * 8192)
                oid = k.emit("buffer_load_dwordx4", v(vo), s(srd, 4), s(61), mods="offen lds")
        dma_last[st] = oid

    def xn_loads(st):
        if st > 7:
            return
        base = XF + 16 * (st % 3)
        if os.environ.get("NOXN", "0") == "1":
            xn_last[st] = -1
            return
        k.emit("s_add_u32", s(65), s(SR8), st)
        k.emit("s_and_b32", s(65), s(65), 7)
        k.emit("s_lshl_b32", s(65), s(65), 12)
        for t in range(4):
            oid = k.emit("buffer_load_dwordx4", v(base + 4 * t, 4), v(VX), s(XN, 4), s(65),
                         mods="offen offset:%d" % (1024 * t))
        xn_last[st] = oid

    state = {"ready": -1}

    def ensure_stage(st, addr_regs):
        assert st == state["ready"] + 1
        k.wait_vm(dma_last[st])
        k.emit("s_barrier")
        stamp("B%d" % st)
        state["ready"] = st
        if st > 0 and addr_regs:
            delta = ((st % NSLOT) - ((st - 1) % NSLOT)) * SLOT
            for r in addr_regs:
                k.emit("v_add_u32", v(r), delta & 0xFFFFFFFF, v(r))
        xn_loads(st + 1) if st >= 1 else None
        dma_stage(st + 3) if st >= 1 else None

    stamp("start")
    P1A = [VA, VA + 1, VA + 2, VA + 3, VF]
    PRO = os.environ.get("PRO", "2")
    if PRO == "0":
        dma_stage(0)
        xn_loads(0)
        dma_stage(1)
        xn_loads(1)
        dma_stage(2)
        dma_stage(3)
        ensure_stage(0, P1A)
    elif PRO == "1":
        dma_stage(0)
        xn_loads(0)
        ensure_stage(0, P1A)
        dma_stage(1)
        xn_loads(1)
        dma_stage(2)
        dma_stage(3)
    else:
        dma_stage(0)
        xn_loads(0)
        dma_stage(1)
        xn_loads(1)
        ensure_stage(0, P1A)
        dma_stage(2)
        dma_stage(3)

    wfid = {}

    def p1_reads(step, i):
        st, t = divmod(step, 4)
        base = WF + 28 * (step & 1) + 4 * i
        for u in range(2):
            if i < 4:
                oid = k.emit("ds_read_b64_tr_b16", v(base + 2 * u, 2), v(VA + i), mods="offset:%d" % ((16 * t + 4 * u) * 256))
            else:
                oid = k.emit("ds_read_b64_tr_b16", v(base + 2 * u, 2), v(VF),
                             mods="offset:%d" % ((16 * t + 4 * u) * 96 + 32 * (i - 4)))
        wfid[(step, i)] = oid

    for i in range(7):
        p1_reads(0, i)
    for step in range(32):
        st, t = divmod(step, 4)
        if t == 0:
            k.wait_vm(xn_last[st])
        if t == 3:
            ensure_stage(st + 1, P1A if st < 7 else None)
        xb = XF + 16 * (st % 3) + 4 * t
        for i in range(7):
            k.wait_lg(wfid[(step, i)])
            acc = ACCQ + 16 * i if i < 4 else ACCF + 16 * (i - 4)
            c = v(acc, 16) if step > 0 else "0"
            k.emit("v_mfma_f32_32x32x16_bf16", v(acc, 16), v(WF + 28 * (step & 1) + 4 * i, 4), v(xb, 4), c)
            if step < 31:
                p1_reads(step + 1, i)

    stamp("p1end")
    for dt in range(4):
        for p in range(8):
            k.emit("v_cvt_pk_bf16_f32", v(QF + 8 * dt + p), v(ACCQ + 16 * dt + 2 * p), v(ACCQ + 16 * dt + 2 * p + 1))
    k.emit("v_lshrrev_b32", v(T3), 5, v(LANE))
    k.emit("v_and_b32", v(T0), 15, v(LANE))
    k.emit("v_and_b32", v(T1), 31, v(LANE))
    k.emit("v_lshlrev_b32", v(T1), 8, v(T1))
    k.emit("v_add_u32", v(T1), (8 % NSLOT) * SLOT, v(T1))
    for t in range(8):
        k.emit("v_add_u32", v(T2), 2 * t, v(T3))
        k.emit("v_xor_b32", v(T2), v(T2), v(T0))
        k.emit("v_lshl_add_u32", v(KA + t), v(T2), 4, v(T1))
    kfid = {}

    def k_read(j, t):
        oid = k.emit("ds_read_b128", v(KF + 4 * t, 4), v(KA + t), mods="offset:%d" % ((j % 4) * 8192))
        kfid[(j, t)] = oid

    for t in range(8):
        k_read(0, t)
    k.emit("s_mul_i32", s(57), s(48), H_RGS)
    k.emit("v_lshl_add_u32", v(T3), v(LANE), 4, s(57))
    CG = -2.0 * 0.7978845608028654 * LOG2E
    k.emit("s_mov_b32", s(62), f32(0.044715))
    k.emit("s_mov_b32", s(63), f32(CG))
    ET = XF
    for blk in range(3):
        a = ACCF + 16 * blk
        for r in range(8):
            k.emit("v_mul_f32", v(ET + r), v(a + r), v(a + r))
        for r in range(8):
            k.emit("v_fma_f32", v(ET + r), v(ET + r), s(62), "1.0")
        for r in range(8):
            k.emit("v_mul_f32", v(ET + r), v(ET + r), v(a + r))
        for r in range(8):
            k.emit("v_mul_f32", v(ET + r), s(63), v(ET + r))
        for r in range(8):
            k.emit("v_exp_f32", v(ET + r), v(ET + r))
        for r in range(8):
            k.emit("v_add_f32", v(ET + r), "1.0", v(ET + r))
        for r in range(8):
            k.emit("v_rcp_f32", v(ET + r), v(ET + r))
        for r in range(8):
            k.emit("v_mul_f32", v(ET + r), v(ET + r), v(a + r))
        for r in range(8):
            k.emit("v_mul_f32", v(ET + r), v(ET + r), v(a + 8 + r))
        pk = ET + 16 + 4 * blk
        for p in range(4):
            k.emit("v_cvt_pk_bf16_f32", v(pk + p), v(ET + 2 * p), v(ET + 2 * p + 1))
        k.emit("s_lshl_b32", s(61), s(49), 10)
        k.emit("s_add_u32", s(61), s(61), 32768 * blk)
        if blk == 2:
            k.emit("s_cmp_lt_u32", s(49), 22)
            k.emit("s_cselect_b32", s(64), -1, 0)
            for p in range(4):
                k.emit("v_and_b32", v(pk + p), s(64), v(pk + p))
            k.emit("s_cmp_lt_u32", s(49), 24)
            k.emit("s_cselect_b32", s(61), s(61), 0x7FFFFFF0)
        k.emit("buffer_store_dwordx4", v(pk, 4), v(T3), s(HS, 4), s(61), mods="offen")

    stamp("p2start")
    KAR = [KA + t for t in range(8)]

    def post_ops(j):
        a = SACC + 16 * (j & 1)
        ops = []
        for p in range(8):
            ops.append(lambda p=p: k.emit("v_cvt_pk_bf16_f32", v(SP + 8 * j + p), v(a + 2 * p), v(a + 2 * p + 1)))
            m = MX + (p & 1)
            if j == 0 and p < 2:
                ops.append(lambda p=p, m=m: k.emit("v_max_f32", v(m), v(a + 2 * p), v(a + 2 * p + 1)))
            else:
                ops.append(lambda p=p, m=m: k.emit("v_max3_f32", v(m), v(a + 2 * p), v(a + 2 * p + 1), v(m)))
        return ops

    for j in range(16):
        if j % 4 == 3:
            st = 8 + j // 4 + 1
            if st < 12:
                ensure_stage(st, KAR)
            else:
                ensure_stage(st, None)
        pend = post_ops(j - 1) if j > 0 else []
        a = SACC + 16 * (j & 1)
        for t in range(8):
            k.wait_lg(kfid[(j, t)])
            c = v(a, 16) if t > 0 else "0"
            k.emit("v_mfma_f32_32x32x16_bf16", v(a, 16), v(KF + 4 * t, 4), v(QF + 4 * t, 4), c)
            if j < 15:
                k_read(j + 1, t)
            if t >= 3:
                for _ in range(4):
                    if pend:
                        pend.pop(0)()
        assert not pend

    stamp("p2end")
    k.emit("v_lshrrev_b32", v(T3), 5, v(LANE))
    k.emit("v_lshlrev_b32", v(T3), 10, v(T3))
    dlt = ((12 % NSLOT) - (7 % NSLOT)) * SLOT
    for dt in range(4):
        k.emit("v_sub_u32", v(VA + dt), v(VA + dt), v(T3))
        if dlt:
            k.emit("v_add_u32", v(VA + dt), dlt & 0xFFFFFFFF, v(VA + dt))
    vfid = {}
    VAR = [VA + dt for dt in range(4)]

    def v_read(pos):
        j, f = divmod(pos, 8)
        t, dt = divmod(f, 4)
        st = 12 + j // 4
        if st > state["ready"]:
            ensure_stage(st, VAR)
        base = VFR + 4 * (pos % 8)
        for u in range(2):
            oid = k.emit("ds_read_b64_tr_b16", v(base + 2 * u, 2), v(VA + dt),
                         mods="offset:%d" % ((32 * (j % 4) + 16 * t + 8 * u) * 256))
        vfid[pos] = oid

    for pos in range(7):
        v_read(pos)
    for op in post_ops(15):
        op()
    k.emit("v_max_f32", v(MX), v(MX), v(MX + 1))
    k.emit("v_mov_b32", v(MX + 1), v(MX))
    k.emit("v_permlane32_swap_b32", v(MX), v(MX + 1))
    k.emit("v_max_f32", v(MX), v(MX), v(MX + 1))
    CS = LOG2E / (128.0 ** 0.5)
    k.emit("s_mov_b32", s(62), f32(CS))
    NM = T0
    k.emit("v_mul_f32", v(NM), f32(-CS), v(MX))
    SUM0, SUM1 = T1, T2
    k.emit("v_mov_b32", v(SUM0), 0)
    k.emit("v_mov_b32", v(SUM1), 0)

    def soft_ops(j, p):
        r = SP + 8 * j + p
        lo = TMP + 2 * (p % 8)
        hi = lo + 1
        return [
            lambda: k.emit("v_lshlrev_b32", v(lo), 16, v(r)),
            lambda: k.emit("v_and_b32", v(hi), 0xFFFF0000, v(r)),
            lambda: k.emit("v_fma_f32", v(lo), v(lo), s(62), v(NM)),
            lambda: k.emit("v_fma_f32", v(hi), v(hi), s(62), v(NM)),
            lambda: k.emit("v_exp_f32", v(lo), v(lo)),
            lambda: k.emit("v_exp_f32", v(hi), v(hi)),
            lambda: k.emit("v_add_f32", v(SUM0), v(SUM0), v(lo)),
            lambda: k.emit("v_add_f32", v(SUM1), v(SUM1), v(hi)),
            lambda: k.emit("v_cvt_pk_bf16_f32", v(r), v(lo), v(hi)),
        ]

    for p in range(8):
        for op in soft_ops(0, p):
            op()
    stamp("p3start")
    for pos in range(128):
        j, f = divmod(pos, 8)
        t, dt = divmod(f, 4)
        k.wait_lg(vfid[pos])
        a = OACC + 16 * dt
        c = v(a, 16) if pos >= 4 else "0"
        k.emit("v_mfma_f32_32x32x16_bf16", v(a, 16), v(VFR + 4 * (pos % 8), 4), v(SP + 8 * j + 4 * t, 4), c)
        if pos + 7 < 128:
            v_read(pos + 7)
        if j < 15:
            for op in soft_ops(j + 1, f):
                op()

    stamp("p3end")
    k.emit("v_add_f32", v(SUM0), v(SUM0), v(SUM1))
    k.emit("v_mov_b32", v(SUM1), v(SUM0))
    k.emit("v_permlane32_swap_b32", v(SUM0), v(SUM1))
    k.emit("v_add_f32", v(SUM0), v(SUM0), v(SUM1))
    k.emit("v_rcp_f32", v(SUM0), v(SUM0))
    k.emit("s_lshl_b32", s(57), s(48), 18)
    k.emit("v_lshl_add_u32", v(T3), v(LANE), 4, s(57))
    k.emit("s_mov_b32", s(61), 4096)
    for dt in range(4):
        for a2 in range(2):
            base = OACC + 16 * dt + 8 * a2
            for r in range(8):
                k.emit("v_mul_f32", v(base + r), v(base + r), v(SUM0))
            pk = SP + 4 * (2 * dt + a2)
            for p in range(4):
                k.emit("v_cvt_pk_bf16_f32", v(pk + p), v(base + 2 * p), v(base + 2 * p + 1))
            blk = 2 * dt + a2
            k.emit("buffer_store_dwordx4", v(pk, 4), v(T3), s(OS, 4), s(61) if blk >= 4 else 0,
                   mods="offen offset:%d" % (1024 * (blk % 4)))
    if STAMP:
        k.wait_vm0()
        stamp("end")
        k.srd(XN, 10, 1 << 20, add=60 << 20)
        k.emit("s_lshl_b32", s(57), s(2), 3)
        k.emit("s_add_u32", s(57), s(57), s(48))
        k.emit("s_lshl_b32", s(57), s(57), 7)
        k.emit("v_mov_b32", v(T0), 0)
        for i in range(len(stamps)):
            k.emit("v_mov_b32", v(T1), s(66 + i))
            k.emit("buffer_store_dword", v(T1), v(T0), s(XN, 4), s(57), mods="offen offset:%d" % (4 * i))
        print("STAMPS", stamps)
    k.label("L_at_end")
    return k, 256, 100
```

```python
import os
import struct
import sys

sys.path.insert(0, os.path.dirname(os.path.abspath(__file__)))
from asmlib import Kern, v, s

NAME = "recurrent_scan__sliding_block_cached__geglu_ffn__prompt"
XN_OFF = 0
O_OFF = 2 << 20
H_OFF = 18 << 20
H_RGS = 88 * 1024
PART_OFF = 24 << 20
LOG2E = 1.4426950408889634


def f32(x):
    return "0x%08x" % struct.unpack("<I", struct.pack("<f", x))[0]


def wave_allreduce_add(k, val, tmp):
    for x in (1, 2, 4, 8, 16):
        o = k.emit("ds_swizzle_b32", v(tmp), v(val), mods="offset:0x%04x" % ((x << 10) | 0x1F))
        k.wait_lg(o)
        k.emit("v_add_f32", v(val), v(val), v(tmp))
    k.emit("v_mov_b32", v(tmp), v(val))
    k.emit("v_permlane32_swap_b32", v(val), v(tmp))
    k.emit("v_add_f32", v(val), v(val), v(tmp))


def gen_ln():
    k = Kern("ln_kernel")
    k.emit("s_cmp_ge_u32", s(2), 512)
    k.emit("s_cbranch_scc1", "L_ln_end")
    k.emit("s_load_dwordx2", s(4, 2), s(0, 2), 0)
    k.emit("s_load_dwordx2", s(6, 2), s(0, 2), 88)
    k.emit("v_lshlrev_b32", v(1), 4, v(0))
    k.emit("s_lshl_b32", s(3), s(2), 12)
    k.raw("    s_waitcnt lgkmcnt(0)")
    k.srd(8, 4, 2048 * 1024)
    k.srd(12, 6, 2048 * 1024, add=XN_OFF)
    o = k.emit("buffer_load_dwordx4", v(4, 4), v(1), s(8, 4), s(3), mods="offen")
    k.wait_vm(o)
    for i in range(4):
        k.emit("v_lshlrev_b32", v(8 + 2 * i), 16, v(4 + i))
        k.emit("v_and_b32", v(9 + 2 * i), 0xFFFF0000, v(4 + i))
    k.emit("v_add_f32", v(16), v(8), v(9))
    for i in range(2, 8):
        k.emit("v_add_f32", v(16), v(16), v(8 + i))
    wave_allreduce_add(k, 16, 17)
    k.emit("v_mul_f32", v(16), f32(1.0 / 512), v(16))
    k.emit("v_sub_f32", v(18), v(8), v(16))
    k.emit("v_mul_f32", v(19), v(18), v(18))
    for i in range(1, 8):
        k.emit("v_sub_f32", v(18), v(8 + i), v(16))
        k.emit("v_fmac_f32", v(19), v(18), v(18))
    wave_allreduce_add(k, 19, 17)
    k.emit("v_mul_f32", v(19), f32(1.0 / 512), v(19))
    k.emit("v_cvt_pk_bf16_f32", v(20), v(16), v(19))
    k.emit("v_lshlrev_b32", v(16), 16, v(20))
    k.emit("v_and_b32", v(19), 0xFFFF0000, v(20))
    k.emit("v_add_f32", v(19), f32(1e-5), v(19))
    k.emit("v_cvt_pk_bf16_f32", v(20), v(19), v(19))
    k.emit("v_lshlrev_b32", v(19), 16, v(20))
    k.emit("v_sqrt_f32", v(19), v(19))
    k.emit("v_cvt_pk_bf16_f32", v(20), v(19), v(19))
    k.emit("v_lshlrev_b32", v(19), 16, v(20))
    k.emit("v_rcp_f32", v(19), v(19))
    for i in range(4):
        k.emit("v_sub_f32", v(20), v(8 + 2 * i), v(16))
        k.emit("v_sub_f32", v(21), v(9 + 2 * i), v(16))
        k.emit("v_cvt_pk_bf16_f32", v(22), v(20), v(21))
        k.emit("v_lshlrev_b32", v(20), 16, v(22))
        k.emit("v_and_b32", v(21), 0xFFFF0000, v(22))
        k.emit("v_mul_f32", v(20), v(20), v(19))
        k.emit("v_mul_f32", v(21), v(21), v(19))
        k.emit("v_cvt_pk_bf16_f32", v(24 + i), v(20), v(21))
    k.emit("v_and_b32", v(2), 63, v(0))
    k.emit("v_lshrrev_b32", v(3), 1, v(2))
    k.emit("v_lshlrev_b32", v(3), 10, v(3))
    k.emit("v_and_b32", v(2), 1, v(2))
    k.emit("v_lshl_add_u32", v(3), v(2), 9, v(3))
    k.emit("v_lshrrev_b32", v(2), 6, v(0))
    k.emit("v_lshl_add_u32", v(3), v(2), 4, v(3))
    k.emit("s_lshr_b32", s(16), s(2), 3)
    k.emit("s_lshl_b32", s(16), s(16), 15)
    k.emit("s_and_b32", s(17), s(2), 7)
    k.emit("s_lshl_b32", s(17), s(17), 6)
    k.emit("s_add_u32", s(16), s(16), s(17))
    k.emit("buffer_store_dwordx4", v(24, 4), v(3), s(12, 4), s(16), mods="offen")
    if os.environ.get("PREF", "0") == "1":
        k.emit("s_load_dwordx4", s(20, 4), s(0, 2), 8)
        k.emit("s_load_dwordx2", s(24, 2), s(0, 2), 24)
        k.emit("s_load_dwordx4", s(28, 4), s(0, 2), 48)
        k.emit("v_lshrrev_b32", v(2), 6, v(0))
        k.emit("v_readfirstlane_b32", s(18), v(2))
        k.emit("v_and_b32", v(2), 63, v(0))
        k.emit("s_and_b32", s(19), s(2), 7)
        k.emit("s_lshl_b32", s(19), s(19), 2)
        k.emit("s_add_u32", s(19), s(19), s(18))
        k.emit("s_lshr_b32", s(26), s(2), 3)
        k.raw("    s_waitcnt lgkmcnt(0)")
        k.srd(32, 20, 16 << 20)
        k.srd(36, 22, 16 << 20)
        k.srd(40, 24, 4 << 20)
        k.srd(44, 28, 512 * 2752)
        k.srd(48, 30, 512 * 2752)
        k.emit("v_lshlrev_b32", v(4), 4, v(2))
        k.emit("v_lshrrev_b32", v(5), 4, v(2))
        k.emit("v_and_b32", v(6), 15, v(2))
        k.emit("v_lshlrev_b32", v(6), 4, v(6))
        k.emit("v_lshl_add_u32", v(5), v(5), 13, v(6))
        k.emit("v_min_u32", v(6), 47, v(2))
        k.emit("v_mul_u32_u24", v(7), 43, v(6))
        k.emit("v_lshrrev_b32", v(7), 8, v(7))
        k.emit("v_mul_u32_u24", v(8), 6, v(7))
        k.emit("v_sub_u32", v(8), v(6), v(8))
        k.emit("v_mul_u32_u24", v(7), 2752, v(7))
        k.emit("v_lshrrev_b32", v(9), 1, v(8))
        k.emit("v_lshl_add_u32", v(7), v(9), 10, v(7))
        k.emit("v_and_b32", v(8), 1, v(8))
        k.emit("v_lshl_add_u32", v(7), v(8), 4, v(7))
        k.emit("s_lshl_b32", s(27), s(19), 19)
        k.emit("s_lshl_b32", s(52), s(26), 11)
        k.emit("s_add_u32", s(27), s(27), s(52))
        k.emit("s_add_u32", s(27), s(27), 1536 * 256)
        for j in range(2):
            k.emit("buffer_load_dwordx4", v(8 + 4 * j, 4), v(4), s(32, 4), s(27), mods="offen offset:%d" % (1024 * j))
            k.emit("buffer_load_dwordx4", v(16 + 4 * j, 4), v(4), s(36, 4), s(27), mods="offen offset:%d" % (1024 * j))
        k.emit("s_lshl_b32", s(27), s(26), 16)
        k.emit("s_lshl_b32", s(52), s(19), 8)
        k.emit("s_add_u32", s(27), s(27), s(52))
        k.emit("buffer_load_dwordx4", v(28, 4), v(5), s(40, 4), s(27), mods="offen")
        k.emit("s_add_u32", s(27), s(27), 32768)
        k.emit("buffer_load_dwordx4", v(32, 4), v(5), s(40, 4), s(27), mods="offen")
        k.emit("s_mul_i32", s(27), s(26), 8 * 2752)
        k.emit("s_lshl_b32", s(52), s(19), 5)
        k.emit("s_add_u32", s(27), s(27), s(52))
        k.emit("buffer_load_dwordx4", v(36, 4), v(7), s(44, 4), s(27), mods="offen")
        k.emit("buffer_load_dwordx4", v(40, 4), v(7), s(48, 4), s(27), mods="offen")
        k.raw("    s_waitcnt vmcnt(0)")
    k.label("L_ln_end")
    return k, 44, 56


def gen_fin():
    k = Kern("fin_kernel")
    k.emit("s_cmp_ge_u32", s(2), 512)
    k.emit("s_cbranch_scc1", "L_fin_end")
    k.emit("s_load_dwordx2", s(4, 2), s(0, 2), 0)
    k.emit("s_load_dwordx2", s(6, 2), s(0, 2), 72)
    k.emit("s_load_dwordx2", s(16, 2), s(0, 2), 88)
    k.emit("v_and_b32", v(1), 63, v(0))
    k.emit("v_lshrrev_b32", v(2), 6, v(0))
    k.emit("v_and_b32", v(3), 1, v(2))
    k.emit("v_lshrrev_b32", v(4), 1, v(2))
    k.emit("s_and_b32", s(20), s(2), 1)
    k.emit("s_lshr_b32", s(21), s(2), 1)
    k.emit("s_and_b32", s(21), s(21), 3)
    k.emit("s_lshr_b32", s(22), s(2), 3)
    k.emit("s_lshr_b32", s(23), s(2), 1)
    k.emit("s_lshl_b32", s(23), s(23), 14)
    k.emit("s_lshl_b32", s(24), s(20), 13)
    k.emit("s_add_u32", s(23), s(23), s(24))
    k.emit("v_lshlrev_b32", v(5), 12, v(4))
    k.emit("v_lshl_add_u32", v(5), v(3), 11, v(5))
    k.emit("v_lshl_add_u32", v(5), v(1), 4, v(5))
    k.emit("s_lshr_b32", s(25), s(22), 2)
    k.emit("s_and_b32", s(26), s(22), 3)
    k.emit("s_lshr_b32", s(27), s(21), 1)
    k.emit("s_and_b32", s(28), s(21), 1)
    k.emit("s_lshl_b32", s(25), s(25), 7)
    k.emit("s_lshl_b32", s(27), s(27), 6)
    k.emit("s_add_u32", s(25), s(25), s(27))
    k.emit("s_lshl_b32", s(25), s(25), 10)
    k.emit("s_lshl_b32", s(26), s(26), 7)
    k.emit("s_lshl_b32", s(28), s(28), 6)
    k.emit("s_add_u32", s(26), s(26), s(28))
    k.emit("s_lshl_b32", s(29), s(20), 5)
    k.emit("s_add_u32", s(26), s(26), s(29))
    k.emit("s_lshl_b32", s(26), s(26), 1)
    k.emit("s_add_u32", s(25), s(25), s(26))
    k.emit("v_and_b32", v(6), 31, v(1))
    k.emit("v_lshl_add_u32", v(6), v(4), 5, v(6))
    k.emit("v_lshlrev_b32", v(6), 10, v(6))
    k.emit("v_lshl_add_u32", v(6), v(3), 5, v(6))
    k.emit("v_lshrrev_b32", v(7), 5, v(1))
    k.emit("v_lshl_add_u32", v(6), v(7), 4, v(6))
    k.raw("    s_waitcnt lgkmcnt(0)")
    k.srd(8, 4, 2048 * 1024)
    k.srd(12, 6, 2048 * 1024)
    k.srd(32, 16, 16 << 20, add=PART_OFF)
    ids = []
    for sp in range(4):
        k.emit("s_add_u32", s(36 + sp), s(23), sp * (4 << 20))
    for sp in range(4):
        for j in range(2):
            ids.append(k.emit("buffer_load_dwordx4", v(8 + sp * 8 + 4 * j, 4), v(5), s(32, 4), s(36 + sp),
                              mods="offen offset:%d" % (1024 * j)))
    ox = k.emit("buffer_load_dwordx4", v(40, 4), v(6), s(8, 4), s(25), mods="offen")
    k.wait_vm(ids[5])
    for i in range(8):
        k.emit("v_add_f32", v(8 + i), v(8 + i), v(16 + i))
        k.emit("v_add_f32", v(8 + i), v(8 + i), v(24 + i))
    k.wait_vm(ids[7])
    for i in range(4):
        k.emit("v_cvt_pk_bf16_f32", v(44 + i), v(8 + 2 * i), v(9 + 2 * i))
        k.emit("v_cvt_pk_bf16_f32", v(48 + i), v(32 + 2 * i), v(33 + 2 * i))
    for i in range(4):
        k.emit("v_lshlrev_b32", v(8 + 2 * i), 16, v(44 + i))
        k.emit("v_and_b32", v(9 + 2 * i), 0xFFFF0000, v(44 + i))
        k.emit("v_lshlrev_b32", v(32 + 2 * i), 16, v(48 + i))
        k.emit("v_and_b32", v(33 + 2 * i), 0xFFFF0000, v(48 + i))
    for i in range(8):
        k.emit("v_mul_f32", v(16 + i), f32(-LOG2E), v(32 + i))
    for i in range(8):
        k.emit("v_exp_f32", v(16 + i), v(16 + i))
    for i in range(8):
        k.emit("v_add_f32", v(16 + i), 1.0, v(16 + i))
    for i in range(8):
        k.emit("v_rcp_f32", v(16 + i), v(16 + i))
    for i in range(8):
        k.emit("v_mul_f32", v(16 + i), v(16 + i), v(32 + i))
    for i in range(4):
        k.emit("v_cvt_pk_bf16_f32", v(48 + i), v(16 + 2 * i), v(17 + 2 * i))
    for i in range(4):
        k.emit("v_lshlrev_b32", v(16 + 2 * i), 16, v(48 + i))
        k.emit("v_and_b32", v(17 + 2 * i), 0xFFFF0000, v(48 + i))
    for i in range(8):
        k.emit("v_mul_f32", v(8 + i), v(8 + i), v(16 + i))
    for i in range(4):
        k.emit("v_cvt_pk_bf16_f32", v(44 + i), v(8 + 2 * i), v(9 + 2 * i))
    k.wait_vm(ox)
    for i in range(4):
        k.emit("v_lshlrev_b32", v(8 + 2 * i), 16, v(44 + i))
        k.emit("v_and_b32", v(9 + 2 * i), 0xFFFF0000, v(44 + i))
        k.emit("v_lshlrev_b32", v(16 + 2 * i), 16, v(40 + i))
        k.emit("v_and_b32", v(17 + 2 * i), 0xFFFF0000, v(40 + i))
    for i in range(8):
        k.emit("v_add_f32", v(8 + i), v(8 + i), v(16 + i))
    for i in range(4):
        k.emit("v_cvt_pk_bf16_f32", v(44 + i), v(8 + 2 * i), v(9 + 2 * i))
    k.emit("buffer_store_dwordx4", v(44, 4), v(6), s(12, 4), s(25), mods="offen")
    k.label("L_fin_end")
    return k, 52, 44


def bs2_lane(k, dst, lane, tmp):
    k.emit("v_and_b32", v(tmp), 1, v(lane))
    k.emit("v_lshlrev_b32", v(dst), 4, v(tmp))
    k.emit("v_and_b32", v(tmp), 2, v(lane))
    k.emit("v_lshl_add_u32", v(dst), v(tmp), 2, v(dst))


def gen_gemm2():
    k = Kern("gemm2_kernel")
    SLOT = 32768
    NSLOT = 5
    k.emit("s_cmp_ge_u32", s(2), 256)
    k.emit("s_cbranch_scc1", "L_g2_end")
    k.emit("s_load_dwordx2", s(4, 2), s(0, 2), 32)
    k.emit("s_load_dwordx2", s(6, 2), s(0, 2), 64)
    k.emit("s_load_dwordx2", s(8, 2), s(0, 2), 88)
    k.emit("v_lshrrev_b32", v(1), 6, v(0))
    k.emit("v_and_b32", v(2), 63, v(0))
    k.emit("v_readfirstlane_b32", s(40), v(1))
    k.emit("s_lshr_b32", s(39), s(40), 2)
    k.emit("s_and_b32", s(40), s(40), 3)
    k.emit("s_and_b32", s(41), s(2), 3)
    k.emit("s_lshr_b32", s(42), s(2), 2)
    k.emit("s_and_b32", s(42), s(42), 1)
    k.emit("s_lshr_b32", s(43), s(2), 5)
    k.emit("s_lshl_b32", s(42), s(42), 3)
    k.emit("s_add_u32", s(42), s(42), s(43))
    k.emit("s_lshr_b32", s(43), s(2), 3)
    k.emit("s_and_b32", s(43), s(43), 3)
    k.emit("s_mov_b32", s(44), 0)
    k.emit("s_mov_b32", s(45), 22)
    k.emit("s_cmp_eq_u32", s(41), 1)
    k.emit("s_cselect_b32", s(44), 1408, s(44))
    k.emit("s_cselect_b32", s(45), 21, s(45))
    k.emit("s_cmp_eq_u32", s(41), 2)
    k.emit("s_cselect_b32", s(44), 2752, s(44))
    k.emit("s_cselect_b32", s(45), 21, s(45))
    k.emit("s_mov_b32", s(46), 262144)
    k.emit("s_mov_b32", s(47), O_OFF)
    k.emit("s_cmp_eq_u32", s(41), 3)
    k.emit("s_cselect_b32", s(46), H_RGS, s(46))
    k.emit("s_cselect_b32", s(47), H_OFF, s(47))
    k.emit("s_mul_i32", s(48), s(42), s(46))
    k.emit("s_lshl_b32", s(48), s(48), 2)
    k.emit("s_add_u32", s(47), s(47), s(48))
    k.emit("s_lshl_b32", s(48), s(44), 6)
    k.emit("s_add_u32", s(47), s(47), s(48))
    k.emit("s_lshl_b32", s(49), s(44), 10)
    k.emit("s_lshl_b32", s(48), s(43), 8)
    k.emit("s_add_u32", s(49), s(49), s(48))
    k.raw("    s_waitcnt lgkmcnt(0)")
    k.emit("s_mov_b32", s(50), 4096 * 1024)
    k.emit("s_cmp_eq_u32", s(41), 3)
    k.emit("s_cselect_b32", s(4), s(6), s(4))
    k.emit("s_cselect_b32", s(5), s(7), s(5))
    k.emit("s_cselect_b32", s(50), 1376 * 1024, s(50))
    k.emit("s_sub_u32", s(50), s(50), s(49))
    k.emit("s_add_u32", s(12), s(8), s(47))
    k.emit("s_addc_u32", s(13), s(9), 0)
    k.emit("s_and_b32", s(13), s(13), 0xFFFF)
    k.emit("s_lshl_b32", s(51), s(46), 2)
    k.emit("s_mov_b32", s(14), s(51))
    k.emit("s_mov_b32", s(15), 0x00020000)
    k.emit("s_add_u32", s(16), s(4), s(49))
    k.emit("s_addc_u32", s(17), s(5), 0)
    k.emit("s_and_b32", s(17), s(17), 0xFFFF)
    k.emit("s_mov_b32", s(18), s(50))
    k.emit("s_mov_b32", s(19), 0x00020000)
    k.srd(20, 8, 16 << 20, add=PART_OFF)
    k.emit("v_lshlrev_b32", v(3), 4, v(2))
    k.emit("v_lshrrev_b32", v(4), 4, v(2))
    k.emit("v_bfe_u32", v(5), v(2), 2, 2)
    k.emit("v_xor_b32", v(5), v(5), v(4))
    k.emit("v_lshlrev_b32", v(5), 6, v(5))
    k.emit("v_lshl_add_u32", v(5), v(4), 10, v(5))
    k.emit("v_and_b32", v(4), 3, v(2))
    k.emit("v_lshl_add_u32", v(6), v(4), 4, v(5))
    for i in range(4):
        k.emit("s_add_u32", s(53), s(40), 4 * i)
        k.emit("s_mul_i32", s(56 + i), s(40), s(46))
        k.emit("s_add_u32", s(56 + i), s(56 + i), 1024 * i)
        k.emit("s_lshl_b32", s(60 + i), s(53), 12)
    k.emit("s_lshl_b32", s(64), s(40), 10)
    k.emit("s_lshl_b32", s(82), s(40), 12)
    k.emit("s_mov_b32", s(65), 0)
    k.emit("s_mov_b32", s(66), 0)

    ROT = int(os.environ.get("ROT", "1"))
    k.emit("s_lshr_b32", s(84), s(2), 3)
    k.emit("s_mul_i32", s(84), s(84), ROT)
    for _ in range(12):
        k.emit("s_cmp_ge_u32", s(84), s(45))
        k.emit("s_cselect_b32", s(85), s(45), 0)
        k.emit("s_sub_u32", s(84), s(84), s(85))

    def issue_dma():
        k.emit("s_cmp_lt_u32", s(65), s(45))
        k.emit("s_cselect_b32", s(14), s(51), 0)
        k.emit("s_cselect_b32", s(18), s(50), 0)
        if os.environ.get("NOACT") == "1":
            k.emit("s_mov_b32", s(14), 0)
        if os.environ.get("NOWT") == "1":
            k.emit("s_mov_b32", s(18), 0)
        k.emit("s_add_u32", s(67), s(66), s(64))
        k.emit("s_add_u32", s(83), s(66), s(82))
        k.emit("s_lshl_b32", s(85), s(84), 12)
        k.emit("s_lshl_b32", s(86), s(84), 16)
        for i in range(8):
            if i < 4:
                k.emit("s_add_u32", "m0", s(83), 1024 * i)
                k.emit("s_add_u32", s(87), s(56 + i), s(85))
                k.emit("buffer_load_dwordx4", v(3), s(12, 4), s(87), mods="offen lds")
            else:
                k.emit("s_add_u32", "m0", s(67), 4096 * i)
                k.emit("s_add_u32", s(87), s(56 + i), s(86))
                k.emit("buffer_load_dwordx4", v(6), s(16, 4), s(87), mods="offen lds")
        k.emit("s_add_u32", s(65), s(65), 1)
        k.emit("s_add_u32", s(84), s(84), 1)
        k.emit("s_cmp_eq_u32", s(84), s(45))
        k.emit("s_cselect_b32", s(84), 0, s(84))
        k.emit("s_add_u32", s(66), s(66), SLOT)
        k.emit("s_cmp_eq_u32", s(66), SLOT * NSLOT)
        k.emit("s_cselect_b32", s(66), 0, s(66))

    k.emit("s_cmp_eq_u32", s(39), 0)
    k.emit("s_cbranch_scc1", "L_g2_compute")
    for i in range(4):
        issue_dma()
    k.raw("    s_waitcnt vmcnt(24)")
    k.emit("s_barrier")
    k.emit("s_mov_b32", s(78), 0)
    k.label("L_g2_lloop")
    k.raw("    s_waitcnt vmcnt(16)")
    k.emit("s_barrier")
    issue_dma()
    k.emit("s_add_u32", s(78), s(78), 1)
    k.emit("s_cmp_lt_u32", s(78), s(45))
    k.emit("s_cbranch_scc1", "L_g2_lloop")
    k.raw("    s_waitcnt vmcnt(0)")
    k.emit("s_endpgm")
    k.label("L_g2_compute")
    k.emit("s_lshr_b32", s(68), s(40), 1)
    k.emit("s_and_b32", s(69), s(40), 1)
    k.emit("v_lshrrev_b32", v(7), 5, v(2))
    k.emit("s_lshl_b32", s(53), s(68), 13)
    k.emit("v_lshl_add_u32", v(8), v(2), 4, s(53))
    k.emit("v_bfe_u32", v(4), v(2), 2, 2)
    k.emit("v_lshl_add_u32", v(5), v(7), 3, v(4))
    k.emit("v_lshlrev_b32", v(5), 8, v(5))
    k.emit("v_add_u32", v(5), 16384, v(5))
    k.emit("v_bfe_u32", v(14), v(2), 4, 1)
    k.emit("v_lshl_add_u32", v(5), v(14), 5, v(5))
    bs2_lane(k, 14, 2, 15)
    k.emit("v_add_u32", v(5), v(5), v(14))
    k.emit("s_lshl_b32", s(53), s(69), 1)
    for tn in range(2):
        k.emit("s_add_u32", s(54), s(53), tn)
        k.emit("v_xor_b32", v(14), s(54), v(4))
        k.emit("v_lshl_add_u32", v(12 + tn), v(14), 6, v(5))
    ACC = 80
    for i in range(64):
        k.emit("v_mov_b32", v(ACC + i), 0)

    def reads(t, fs):
        base = 16 + 16 * fs
        for tn in range(2):
            for u in range(2):
                k.emit("ds_read_b64_tr_b16", v(base + 4 * tn + 2 * u, 2), v(12 + tn),
                       mods="offset:%d" % ((16 * t + 4 * u) * 256))
        for tm in range(2):
            k.emit("ds_read_b128", v(base + 8 + 4 * tm, 4), v(8), mods="offset:%d" % (4096 * tm + 1024 * t))

    def mfmas(fs):
        base = 16 + 16 * fs
        for tn in range(2):
            for tm in range(2):
                a = ACC + 16 * (tn * 2 + tm)
                k.emit("v_mfma_f32_32x32x16_bf16", v(a, 16), v(base + 4 * tn, 4), v(base + 8 + 4 * tm, 4), v(a, 16))

    STAMP = os.environ.get("STAMP2", "0") == "1"

    def stamp(idx):
        if STAMP:
            k.raw("    s_memtime s[98:99]" if os.environ.get("REALTIME") != "1" else "    s_memrealtime s[98:99]")
            k.raw("    s_waitcnt lgkmcnt(0)")
            k.emit("s_mov_b32", s(idx), s(98))

    stamp(90)
    k.emit("s_barrier")
    stamp(91)
    reads(0, 0)
    reads(1, 1)
    k.emit("s_mov_b32", s(78), 0)
    k.emit("s_mov_b32", s(79), 0)
    k.emit("s_mov_b32", s(81), SLOT)
    k.label("L_g2_loop")
    for t in range(2):
        reads(t + 2, t + 2)
        k.raw("    s_waitcnt lgkmcnt(12)")
        mfmas(t)
    k.emit("s_barrier")
    k.emit("s_add_u32", s(79), s(79), SLOT)
    k.emit("s_cmp_eq_u32", s(79), SLOT * NSLOT)
    k.emit("s_cselect_b32", s(79), 0, s(79))
    k.emit("s_cselect_b32", s(80), -SLOT * (NSLOT - 1) & 0xFFFFFFFF, s(81))
    for r in (8, 12, 13):
        k.emit("v_add_u32", v(r), s(80), v(r))
    reads(0, 0)
    k.raw("    s_waitcnt lgkmcnt(12)")
    mfmas(2)
    reads(1, 1)
    k.raw("    s_waitcnt lgkmcnt(12)")
    mfmas(3)
    k.emit("s_add_u32", s(78), s(78), 1)
    k.emit("s_cmp_lt_u32", s(78), s(45))
    k.emit("s_cbranch_scc1", "L_g2_loop")
    k.lgq = []
    k.vmq = []
    stamp(92)
    k.nop(16)
    k.emit("s_lshl_b32", s(53), s(41), 6)
    k.emit("s_lshl_b32", s(54), s(42), 2)
    k.emit("s_add_u32", s(53), s(53), s(54))
    k.emit("s_add_u32", s(53), s(53), s(43))
    k.emit("s_lshl_b32", s(53), s(53), 2)
    k.emit("s_add_u32", s(53), s(53), s(40))
    k.emit("s_lshl_b32", s(53), s(53), 14)
    k.emit("v_lshlrev_b32", v(4), 4, v(2))
    for q in range(16):
        if q % 4 == 0 and q:
            k.emit("s_add_u32", s(53), s(53), 4096)
        k.emit("buffer_store_dwordx4", v(ACC + 4 * q, 4), v(4), s(20, 4), s(53), mods="offen offset:%d" % (1024 * (q % 4)))
    k.raw("    s_waitcnt vmcnt(0)")
    if STAMP:
        stamp(93)
        k.srd(20, 8, 1 << 20, add=61 << 20)
        k.emit("s_lshl_b32", s(57), s(2), 2)
        k.emit("s_add_u32", s(57), s(57), s(40))
        k.emit("s_lshl_b32", s(57), s(57), 4)
        k.emit("v_mov_b32", v(4), 0)
        for i in range(4):
            k.emit("v_mov_b32", v(5), s(90 + i))
            k.emit("buffer_store_dword", v(5), v(4), s(20, 4), s(57), mods="offen offset:%d" % (4 * i))
    k.label("L_g2_end")
    return k, 144, 100


from gen_attn import gen_attn


def main():
    ks = []
    launches = []
    k, nv, ns = gen_ln()
    ks.append((k, nv, ns))
    launches.append("; @launch kernel=ln_kernel grid=(512,1,1) block=(256,1,1) lds=0")
    k, nv, ns = gen_attn()
    ks.append((k, nv, ns))
    launches.append("; @launch kernel=attn_kernel grid=(256,1,1) block=(512,1,1) lds=163840")
    k, nv, ns = gen_gemm2()
    ks.append((k, nv, ns))
    launches.append("; @launch kernel=gemm2_kernel grid=(256,1,1) block=(512,1,1) lds=163840")
    k, nv, ns = gen_fin()
    ks.append((k, nv, ns))
    launches.append("; @launch kernel=fin_kernel grid=(512,1,1) block=(256,1,1) lds=0")
    out = []
    out.extend(launches)
    out.append('.amdgcn_target "amdgcn-amd-amdhsa--gfx950"')
    out.append(".text")
    descs = []
    for k, nv, ns in ks:
        assert k.maxv < nv, (k.name, k.maxv, nv)
        body, desc = k.text(nv, ns)
        out.append(body)
        descs.append(desc)
        print(k.name, "maxv", k.maxv, k.count, file=sys.stderr)
    out.append('.section .rodata,"a"')
    out.extend(descs)
    path = os.path.join(os.path.dirname(os.path.abspath(__file__)), "..", "cdna_kernels", NAME + ".s")
    with open(path, "w") as f:
        f.write("\n".join(out) + "\n")


if __name__ == "__main__":
    main()
```

```python
import struct
from asmlib import Kern, v, s

XN_OFF = 0
O_OFF = 2 << 20
H_OFF = 18 << 20
H_RGS = 88 * 1024
LOG2E = 1.4426950408889634
SLOT = 32768
NSLOT = 5
G_REG = 16384
U_REG = 22656


def f32(x):
    return "0x%08x" % struct.unpack("<I", struct.pack("<f", x))[0]


import os
STAMP = os.environ.get("STAMP", "0") == "1"


def gen_attn():
    k = Kern("attn_kernel")
    stamps = []

    def stamp(name):
        if not STAMP:
            return
        i = len(stamps)
        stamps.append(name)
        k.raw("    s_memtime s[98:99]" if os.environ.get("REALTIME") != "1" else "    s_memrealtime s[98:99]")
        k.wait_lg0()
        k.emit("s_mov_b32", s(66 + i), s(98))

    def rawi(text):
        k.raw("    " + text)
        k.pos += 1

    k.emit("s_cmp_ge_u32", s(2), 256)
    k.emit("s_cbranch_scc1", "L_at_end")
    k.emit("s_load_dwordx4", s(4, 4), s(0, 2), 8)
    k.emit("s_load_dwordx2", s(8, 2), s(0, 2), 24)
    k.emit("s_load_dwordx4", s(12, 4), s(0, 2), 48)
    k.emit("s_load_dwordx2", s(10, 2), s(0, 2), 88)
    LANE, VX, VW, VG, VK, VV, T0, VA, VF, T1, T2, T3 = 1, 2, 3, 4, 5, 6, 7, 8, 12, 13, 14, 15
    k.emit("v_lshrrev_b32", v(T0), 6, v(0))
    k.emit("v_and_b32", v(LANE), 63, v(0))
    k.emit("v_readfirstlane_b32", s(48), v(T0))
    MAP = os.environ.get("MAP", "0")
    if MAP == "0":
        k.emit("s_and_b32", s(49), s(2), 7)
        k.emit("s_lshl_b32", s(49), s(49), 2)
        k.emit("s_lshr_b32", s(51), s(2), 3)
        k.emit("s_and_b32", s(51), s(51), 3)
        k.emit("s_add_u32", s(49), s(49), s(51))
        k.emit("s_lshr_b32", s(50), s(2), 5)
    elif MAP == "1":
        k.emit("s_and_b32", s(50), s(2), 7)
        k.emit("s_lshr_b32", s(49), s(2), 3)
    elif MAP == "2":
        k.emit("s_and_b32", s(49), s(2), 1)
        k.emit("s_lshl_b32", s(49), s(49), 4)
        k.emit("s_lshr_b32", s(51), s(2), 3)
        k.emit("s_and_b32", s(51), s(51), 15)
        k.emit("s_add_u32", s(49), s(49), s(51))
        k.emit("s_lshr_b32", s(50), s(2), 1)
        k.emit("s_and_b32", s(50), s(50), 3)
        k.emit("s_lshl_b32", s(50), s(50), 1)
        k.emit("s_lshr_b32", s(51), s(2), 7)
        k.emit("s_add_u32", s(50), s(50), s(51))
    SW1024, SW2048, SW65536, SW768, SW22016 = 52, 53, 54, 55, 56
    k.emit("s_lshl_b32", s(SW1024), s(48), 10)
    k.emit("s_lshl_b32", s(SW2048), s(48), 11)
    k.emit("s_lshl_b32", s(SW65536), s(48), 16)
    k.emit("s_mul_i32", s(SW768), s(48), 768)
    k.emit("s_mul_i32", s(SW22016), s(48), 22016)
    k.raw("    s_waitcnt lgkmcnt(0)")

    def srd_dyn(d, base, off_s, nrec_s=None, nrec=None, add=0):
        k.emit("s_add_u32", s(d), s(base), s(off_s))
        k.emit("s_addc_u32", s(d + 1), s(base + 1), 0)
        if add:
            k.emit("s_add_u32", s(d), s(d), add)
            k.emit("s_addc_u32", s(d + 1), s(d + 1), 0)
        k.emit("s_and_b32", s(d + 1), s(d + 1), 0xFFFF)
        if nrec_s is not None:
            k.emit("s_mov_b32", s(d + 2), s(nrec_s))
        else:
            k.emit("s_mov_b32", s(d + 2), nrec)
        k.emit("s_mov_b32", s(d + 3), 0x00020000)

    XN, WQ, GS, US, KS, VS, OS, HS = 16, 20, 24, 28, 32, 36, 40, 44
    k.emit("s_lshl_b32", s(57), s(50), 18)
    srd_dyn(XN, 10, 57, nrec=256 * 1024, add=XN_OFF)
    k.emit("s_lshl_b32", s(57), s(49), 8)
    k.emit("s_sub_u32", s(58), 4 << 20, s(57))
    srd_dyn(WQ, 8, 57, nrec_s=58)
    k.emit("s_lshl_b32", s(59), s(49), 5)
    SH32 = 59
    k.emit("s_sub_u32", s(58), 512 * 2752, s(SH32))
    srd_dyn(GS, 12, SH32, nrec_s=58)
    srd_dyn(US, 14, SH32, nrec_s=58)
    k.emit("s_lshl_b32", s(58), s(49), 19)
    srd_dyn(KS, 4, 58, nrec=131072, add=1536 * 256)
    srd_dyn(VS, 6, 58, nrec=131072, add=1536 * 256)
    k.emit("s_lshl_b32", s(58), s(50), 21)
    k.emit("s_lshl_b32", s(57), s(49), 13)
    k.emit("s_add_u32", s(58), s(58), s(57))
    k.emit("s_sub_u32", s(60), 8 * 262144, s(57))
    srd_dyn(OS, 10, 58, nrec_s=60, add=O_OFF)
    k.emit("s_mul_i32", s(58), s(50), 8 * H_RGS)
    srd_dyn(HS, 10, 58, nrec=8 * H_RGS, add=H_OFF)

    HH = T3
    k.emit("v_lshrrev_b32", v(HH), 5, v(LANE))
    k.emit("s_lshl_b32", s(57), s(48), 15)
    k.emit("v_lshl_add_u32", v(VX), v(LANE), 4, s(57))
    k.emit("v_lshrrev_b32", v(T0), 4, v(LANE))
    k.emit("v_bfe_u32", v(T1), v(LANE), 2, 2)
    k.emit("v_xor_b32", v(T1), v(T1), v(T0))
    k.emit("v_lshlrev_b32", v(T1), 6, v(T1))
    k.emit("v_and_b32", v(T2), 3, v(LANE))
    k.emit("v_lshl_add_u32", v(T1), v(T2), 4, v(T1))
    k.emit("v_lshl_add_u32", v(VW), v(T0), 13, v(T1))
    k.emit("v_lshl_add_u32", v(VV), v(T0), 8, v(T1))
    k.emit("s_and_b32", s(57), s(48), 3)
    k.emit("s_lshl_b32", s(57), s(57), 2)
    k.emit("v_add_u32", v(T1), s(57), v(T0))
    k.emit("v_and_b32", v(T2), 15, v(LANE))
    k.emit("v_xor_b32", v(T1), v(T1), v(T2))
    k.emit("v_lshlrev_b32", v(T1), 4, v(T1))
    k.emit("v_lshl_add_u32", v(VK), v(T0), 8, v(T1))
    k.emit("v_mul_u32_u24", v(T0), 43, v(LANE))
    k.emit("v_lshrrev_b32", v(T0), 8, v(T0))
    k.emit("v_mul_u32_u24", v(T1), 6, v(T0))
    k.emit("v_sub_u32", v(T1), v(LANE), v(T1))
    k.emit("v_mul_u32_u24", v(T0), 2752, v(T0))
    k.emit("v_lshrrev_b32", v(T2), 1, v(T1))
    k.emit("v_lshl_add_u32", v(T0), v(T2), 10, v(T0))
    k.emit("v_and_b32", v(T1), 1, v(T1))
    k.emit("v_lshl_add_u32", v(VG), v(T1), 4, v(T0))
    k.emit("v_bfe_u32", v(T0), v(LANE), 2, 2)
    k.emit("v_and_b32", v(T2), 1, v(LANE))
    k.emit("v_lshlrev_b32", v(T1), 4, v(T2))
    k.emit("v_and_b32", v(T2), 2, v(LANE))
    k.emit("v_lshl_add_u32", v(T1), v(T2), 2, v(T1))
    k.emit("v_bfe_u32", v(T2), v(LANE), 4, 1)
    k.emit("v_lshl_add_u32", v(T1), v(T2), 5, v(T1))
    k.emit("v_mul_u32_u24", v(VF), U_REG - G_REG - 32, v(T2))
    k.emit("v_add_u32", v(VF), v(VF), v(T1))
    k.emit("v_lshl_add_u32", v(T2), v(HH), 3, v(T0))
    k.emit("v_mul_u32_u24", v(T2), 96, v(T2))
    k.emit("v_add_u32", v(VF), v(VF), v(T2))
    k.emit("v_add_u32", v(VF), G_REG, v(VF))
    k.emit("v_lshl_add_u32", v(T2), v(HH), 3, v(T0))
    k.emit("v_lshl_add_u32", v(T1), v(T2), 8, v(T1))
    for dt in range(4):
        k.emit("v_xor_b32", v(T2), dt, v(T0))
        k.emit("v_lshl_add_u32", v(VA + dt), v(T2), 6, v(T1))

    ACCQ, ACCF, XF, WF = 16, 80, 128, 176
    QF, SACC, PP, KF, KA = 224, 80, 112, 128, 208
    OACC, VFR, TMP = 16, 160, 192
    MT, MREF, NM, NM1, SUM0, SUM1, FF, FT, THR = 216, 217, 218, 219, 220, 221, 222, 223, 0

    dma_last = {}
    xn_last = {}
    SR8, SR4 = 90, 91
    k.emit("s_and_b32", s(SR8), s(49), 3)
    k.emit("s_lshl_b32", s(SR8), s(SR8), 1)
    k.emit("s_add_u32", s(SR8), s(SR8), s(50))
    k.emit("s_add_u32", s(SR4), s(49), s(50))
    if os.environ.get("AROT", "1") == "0":
        k.emit("s_mov_b32", s(SR8), 0)
        k.emit("s_mov_b32", s(SR4), 0)

    pend_vm = []

    def dma_ops(st):
        ops = []
        if st > 15:
            return ops
        slot = (st % NSLOT) * SLOT
        if st < 8:
            def wq(j):
                if j == 0:
                    k.emit("s_add_u32", s(92), s(SR8), st)
                    k.emit("s_and_b32", s(92), s(92), 7)
                    k.emit("s_lshl_b32", s(93), s(92), 19)
                    k.emit("s_add_u32", s(93), s(93), s(SW65536))
                k.emit("s_add_u32", "m0", s(SW2048), slot + 1024 * j)
                k.emit("s_add_u32", s(61), s(93), j * 32768)
                k.emit("buffer_load_dwordx4", v(VW), s(WQ, 4), s(61), mods="offen lds")

            def gu(which):
                rawi("s_mov_b32 exec_hi, 0xffff")
                k.emit("s_add_u32", "m0", s(SW768), slot + (G_REG if which == 0 else U_REG))
                k.emit("s_mul_i32", s(61), s(92), 64 * 2752)
                k.emit("s_add_u32", s(61), s(61), s(SW22016))
                oid = k.emit("buffer_load_dwordx4", v(VG), s(GS if which == 0 else US, 4), s(61), mods="offen lds")
                rawi("s_mov_b32 exec_hi, -1")
                dma_last[st] = oid

            ops = [lambda: wq(0), lambda: wq(1), lambda: gu(0), lambda: gu(1)]
        else:
            j = st - 8

            def kv(i):
                if i == 0:
                    k.emit("s_add_u32", s(92), s(SR4), j)
                    k.emit("s_and_b32", s(92), s(92), 7)
                    k.emit("s_lshl_b32", s(92), s(92), 14)
                    k.emit("s_add_u32", s(92), s(92), s(SW1024))
                srd, vo = (KS, VK) if i < 2 else (VS, VV)
                k.emit("s_add_u32", "m0", s(SW1024), slot + 8192 * i)
                k.emit("s_add_u32", s(61), s(92), (i & 1) * 8192)
                oid = k.emit("buffer_load_dwordx4", v(vo), s(srd, 4), s(61), mods="offen lds")
                dma_last[st] = oid

            ops = [lambda i=i: kv(i) for i in range(4)]
        return ops

    def xn_ops(st):
        if st > 7:
            return []
        base = XF + 16 * (st % 3)

        def one(t):
            if t == 0:
                k.emit("s_add_u32", s(65), s(SR8), st)
                k.emit("s_and_b32", s(65), s(65), 7)
                k.emit("s_lshl_b32", s(65), s(65), 12)
            oid = k.emit("buffer_load_dwordx4", v(base + 4 * t, 4), v(VX), s(XN, 4), s(65),
                         mods="offen offset:%d" % (1024 * t))
            xn_last[st] = oid

        return [lambda t=t: one(t) for t in range(4)]

    def dma_stage(st):
        for op in dma_ops(st):
            op()

    def xn_loads(st):
        for op in xn_ops(st):
            op()

    def pump(n=1):
        for _ in range(n):
            if pend_vm:
                pend_vm.pop(0)()

    def flush_vm():
        while pend_vm:
            pend_vm.pop(0)()

    state = {"ready": -1}

    def ensure_stage(st, addr_regs):
        assert st == state["ready"] + 1
        flush_vm()
        k.wait_vm(dma_last[st])
        k.emit("s_barrier")
        stamp("B%d" % st)
        state["ready"] = st
        if st > 0 and addr_regs:
            delta = ((st % NSLOT) - ((st - 1) % NSLOT)) * SLOT
            for r in addr_regs:
                k.emit("v_add_u32", v(r), delta & 0xFFFFFFFF, v(r))
        if st >= 1:
            pend_vm.extend(xn_ops(st + 1))
            pend_vm.extend(dma_ops(st + 3))

    stamp("start")
    P1A = [VA, VA + 1, VA + 2, VA + 3, VF]
    PRO = os.environ.get("PRO", "2")
    if PRO == "0":
        dma_stage(0)
        xn_loads(0)
        dma_stage(1)
        xn_loads(1)
        dma_stage(2)
        dma_stage(3)
        ensure_stage(0, P1A)
    elif PRO == "1":
        dma_stage(0)
        xn_loads(0)
        ensure_stage(0, P1A)
        dma_stage(1)
        xn_loads(1)
        dma_stage(2)
        dma_stage(3)
    else:
        dma_stage(0)
        xn_loads(0)
        dma_stage(1)
        xn_loads(1)
        ensure_stage(0, P1A)
        dma_stage(2)
        dma_stage(3)

    wfid = {}

    def p1_reads(step, i):
        st, t = divmod(step, 4)
        base = WF + 28 * (step & 1) + 4 * i
        for u in range(2):
            if i < 4:
                oid = k.emit("ds_read_b64_tr_b16", v(base + 2 * u, 2), v(VA + i), mods="offset:%d" % ((16 * t + 4 * u) * 256))
            else:
                oid = k.emit("ds_read_b64_tr_b16", v(base + 2 * u, 2), v(VF),
                             mods="offset:%d" % ((16 * t + 4 * u) * 96 + 32 * (i - 4)))
        wfid[(step, i)] = oid

    for i in range(7):
        p1_reads(0, i)
    for step in range(32):
        st, t = divmod(step, 4)
        if t == 0:
            flush_vm() if xn_last.get(st) is None else None
            k.wait_vm(xn_last[st])
        if t == 3:
            ensure_stage(st + 1, P1A if st < 7 else None)
        xb = XF + 16 * (st % 3) + 4 * t
        for i in range(7):
            k.wait_lg(wfid[(step, i)])
            acc = ACCQ + 16 * i if i < 4 else ACCF + 16 * (i - 4)
            c = v(acc, 16) if step > 0 else "0"
            k.emit("v_mfma_f32_32x32x16_bf16", v(acc, 16), v(WF + 28 * (step & 1) + 4 * i, 4), v(xb, 4), c)
            if step < 31:
                p1_reads(step + 1, i)
            if i in (1, 4):
                pump()

    stamp("p1end")
    for dt in range(4):
        for p in range(8):
            k.emit("v_cvt_pk_bf16_f32", v(QF + 8 * dt + p), v(ACCQ + 16 * dt + 2 * p), v(ACCQ + 16 * dt + 2 * p + 1))
    k.emit("v_lshrrev_b32", v(T3), 5, v(LANE))
    k.emit("v_and_b32", v(T0), 15, v(LANE))
    k.emit("v_and_b32", v(T1), 31, v(LANE))
    k.emit("v_lshlrev_b32", v(T1), 8, v(T1))
    k.emit("v_add_u32", v(T1), (8 % NSLOT) * SLOT, v(T1))
    for t in range(8):
        k.emit("v_add_u32", v(T2), 2 * t, v(T3))
        k.emit("v_xor_b32", v(T2), v(T2), v(T0))
        k.emit("v_lshl_add_u32", v(KA + t), v(T2), 4, v(T1))
    kfid = {}

    def k_read(j, t):
        oid = k.emit("ds_read_b128", v(KF + 4 * t, 4), v(KA + t), mods="offset:%d" % ((j % 2) * 8192))
        kfid[(j, t)] = oid

    for t in range(8):
        k_read(0, t)
    k.emit("s_mul_i32", s(57), s(48), H_RGS)
    k.emit("v_lshl_add_u32", v(T3), v(LANE), 4, s(57))
    CG = -2.0 * 0.7978845608028654 * LOG2E
    k.emit("s_mov_b32", s(62), f32(0.044715))
    k.emit("s_mov_b32", s(63), f32(CG))
    ET = VFR
    for blk in range(3):
        a = ACCF + 16 * blk
        for r in range(8):
            k.emit("v_mul_f32", v(ET + r), v(a + r), v(a + r))
        for r in range(8):
            k.emit("v_fma_f32", v(ET + r), v(ET + r), s(62), "1.0")
        for r in range(8):
            k.emit("v_mul_f32", v(ET + r), v(ET + r), v(a + r))
        for r in range(8):
            k.emit("v_mul_f32", v(ET + r), s(63), v(ET + r))
        for r in range(8):
            k.emit("v_exp_f32", v(ET + r), v(ET + r))
        for r in range(8):
            k.emit("v_add_f32", v(ET + r), "1.0", v(ET + r))
        for r in range(8):
            k.emit("v_rcp_f32", v(ET + r), v(ET + r))
        for r in range(8):
            k.emit("v_mul_f32", v(ET + r), v(ET + r), v(a + r))
        for r in range(8):
            k.emit("v_mul_f32", v(ET + r), v(ET + r), v(a + 8 + r))
        pk = ET + 16 + 4 * blk
        for p in range(4):
            k.emit("v_cvt_pk_bf16_f32", v(pk + p), v(ET + 2 * p), v(ET + 2 * p + 1))
        k.emit("s_lshl_b32", s(61), s(49), 10)
        k.emit("s_add_u32", s(61), s(61), 32768 * blk)
        if blk == 2:
            k.emit("s_cmp_lt_u32", s(49), 22)
            k.emit("s_cselect_b32", s(64), -1, 0)
            for p in range(4):
                k.emit("v_and_b32", v(pk + p), s(64), v(pk + p))
            k.emit("s_cmp_lt_u32", s(49), 24)
            k.emit("s_cselect_b32", s(61), s(61), 0x7FFFFFF0)
        k.emit("buffer_store_dwordx4", v(pk, 4), v(T3), s(HS, 4), s(61), mods="offen")

    stamp("p2start")
    KAR = [KA + t for t in range(8)]
    VAR = [VA + dt for dt in range(4)]
    CS = LOG2E / (128.0 ** 0.5)
    TLAZY = 16.0
    k.emit("s_mov_b32", s(62), f32(CS))
    k.emit("s_mov_b32", s(63), f32(TLAZY / CS))
    k.emit("s_mov_b32", s(94), f32(CS))
    k.emit("s_mov_b32", s(95), f32(CS))
    k.emit("v_lshrrev_b32", v(T3), 5, v(LANE))
    k.emit("v_lshlrev_b32", v(T3), 10, v(T3))
    dlt = ((8 % NSLOT) - (7 % NSLOT)) * SLOT + 16384
    for dt in range(4):
        k.emit("v_sub_u32", v(VA + dt), v(VA + dt), v(T3))
        k.emit("v_add_u32", v(VA + dt), dlt & 0xFFFFFFFF, v(VA + dt))
    k.emit("v_mov_b32", v(SUM0), 0)
    k.emit("v_mov_b32", v(SUM1), 0)
    vfid = {}
    vstage = {"cur": 8}

    def wait_lg_safe(oid):
        if oid not in k.lgq:
            return
        n = len(k.lgq) - 1 - k.lgq.index(oid)
        if n > 15:
            k.emit("s_waitcnt", "lgkmcnt(15)")
            k.lgq = k.lgq[-15:]
            return
        k.wait_lg(oid)

    def v_read(j, f):
        st = 8 + j // 2
        if st > vstage["cur"]:
            delta = ((st % NSLOT) - ((st - 1) % NSLOT)) * SLOT
            for r in VAR:
                k.emit("v_add_u32", v(r), delta & 0xFFFFFFFF, v(r))
            vstage["cur"] = st
        t, dt = divmod(f, 4)
        base = VFR + 4 * f
        for u in range(2):
            oid = k.emit("ds_read_b64_tr_b16", v(base + 2 * u, 2), v(VA + dt),
                         mods="offset:%d" % ((32 * (j % 2) + 16 * t + 8 * u) * 256))
        vfid[(j, f)] = oid

    def k_read2(j, t):
        st = 8 + j // 2
        if st > state["ready"]:
            ensure_stage(st, KAR)
        k_read(j, t)

    def qk_mfma(j, t):
        wait_lg_safe(kfid[(j, t)])
        a = SACC + 16 * (j & 1)
        c = v(a, 16) if t > 0 else "0"
        k.emit("v_mfma_f32_32x32x16_bf16", v(a, 16), v(KF + 4 * t, 4), v(QF + 4 * t, 4), c)

    def pv_mfma(j, f):
        t, dt = divmod(f, 4)
        wait_lg_safe(vfid[(j, f)])
        a = OACC + 16 * dt
        c = v(a, 16) if (j > 0 or t > 0) else "0"
        k.emit("v_mfma_f32_32x32x16_bf16", v(a, 16), v(VFR + 4 * f, 4), v(PP + 8 * (j & 1) + 4 * t, 4), c)

    def max_ops(j):
        a = SACC + 16 * (j & 1)
        ops = [lambda: k.emit("v_max3_f32", v(MT), v(a), v(a + 1), v(a + 2))]
        for p in range(6):
            ops.append(lambda p=p: k.emit("v_max3_f32", v(MT), v(a + 3 + 2 * p), v(a + 4 + 2 * p), v(MT)))
        ops.append(lambda: k.emit("v_max_f32", v(MT), v(a + 15), v(MT)))
        return ops

    def exp_ops(j, p):
        a = SACC + 16 * (j & 1)
        lo = TMP + 2 * p
        hi = lo + 1
        PK = os.environ.get("PK", "0")
        ops = []
        if PK in ("1", "3"):
            ops.append(lambda: k.emit("v_pk_fma_f32", v(lo, 2), v(a + 2 * p, 2), s(94, 2), v(NM, 2)))
        else:
            ops.append(lambda: k.emit("v_fma_f32", v(lo), v(a + 2 * p), s(62), v(NM)))
            ops.append(lambda: k.emit("v_fma_f32", v(hi), v(a + 2 * p + 1), s(62), v(NM)))
        ops.append(lambda: k.emit("v_exp_f32", v(lo), v(lo)))
        ops.append(lambda: k.emit("v_exp_f32", v(hi), v(hi)))
        if PK in ("2", "3"):
            ops.append(lambda: k.emit("v_pk_add_f32", v(SUM0, 2), v(SUM0, 2), v(lo, 2)))
        else:
            ops.append(lambda: k.emit("v_add_f32", v(SUM0), v(SUM0), v(lo)))
            ops.append(lambda: k.emit("v_add_f32", v(SUM1), v(SUM1), v(hi)))
        ops.append(lambda: k.emit("v_cvt_pk_bf16_f32", v(PP + 8 * (j & 1) + p), v(lo), v(hi)))
        return ops

    def new_ref(first):
        k.emit("v_mov_b32", v(FT), v(MT))
        k.emit("v_permlane32_swap_b32", v(MT), v(FT))
        k.emit("v_max_f32", v(MT), v(MT), v(FT))
        if first:
            k.emit("v_mov_b32", v(MREF), v(MT))
        else:
            k.emit("v_max_f32", v(MREF), v(MREF), v(MT))
            k.emit("v_mov_b32", v(FF), v(NM))
        k.emit("v_mul_f32", v(NM), f32(-CS), v(MREF))
        k.emit("v_mul_f32", v(NM1), f32(-CS), v(MREF))
        k.emit("v_add_f32", v(THR), s(63), v(MREF))
        if not first:
            k.emit("v_sub_f32", v(FF), v(NM), v(FF))
            k.emit("v_exp_f32", v(FF), v(FF))

    rare = []
    for t in range(8):
        qk_mfma(0, t)
    for j in range(16):
        mops = max_ops(j)
        for f in range(8):
            if j >= 1:
                pv_mfma(j - 1, f)
            if j + 1 <= 15:
                k_read2(j + 1, f)
            if f in (1, 5):
                pump()
            if f >= 3 or j == 0:
                for _ in range(2):
                    if mops:
                        mops.pop(0)()
        while mops:
            mops.pop(0)()
        if j == 0:
            new_ref(True)
        else:
            k.emit("v_cmp_gt_f32", "vcc", v(MT), v(THR))
            k.nop(5)
            k.emit("s_cbranch_vccnz", "L_at_rare%d" % j)
            k.label("L_at_back%d" % j)
            rare.append(j)
        for f in range(8):
            if j + 1 <= 15:
                qk_mfma(j + 1, f)
            v_read(j, f)
            for op in exp_ops(j, f):
                op()
    for f in range(8):
        pv_mfma(15, f)

    stamp("p3end")
    k.emit("v_add_f32", v(SUM0), v(SUM0), v(SUM1))
    k.emit("v_mov_b32", v(SUM1), v(SUM0))
    k.emit("v_permlane32_swap_b32", v(SUM0), v(SUM1))
    k.emit("v_add_f32", v(SUM0), v(SUM0), v(SUM1))
    k.emit("v_rcp_f32", v(SUM0), v(SUM0))
    k.emit("s_lshl_b32", s(57), s(48), 18)
    k.emit("v_lshl_add_u32", v(T3), v(LANE), 4, s(57))
    k.emit("s_mov_b32", s(61), 4096)
    for dt in range(4):
        for a2 in range(2):
            base = OACC + 16 * dt + 8 * a2
            for r in range(8):
                k.emit("v_mul_f32", v(base + r), v(base + r), v(SUM0))
            pk = KF + 4 * (2 * dt + a2)
            for p in range(4):
                k.emit("v_cvt_pk_bf16_f32", v(pk + p), v(base + 2 * p), v(base + 2 * p + 1))
            blk = 2 * dt + a2
            k.emit("buffer_store_dwordx4", v(pk, 4), v(T3), s(OS, 4), s(61) if blk >= 4 else 0,
                   mods="offen offset:%d" % (1024 * (blk % 4)))
    if STAMP:
        k.wait_vm0()
        stamp("end")
        k.srd(XN, 10, 1 << 20, add=60 << 20)
        k.emit("s_lshl_b32", s(57), s(2), 3)
        k.emit("s_add_u32", s(57), s(57), s(48))
        k.emit("s_lshl_b32", s(57), s(57), 7)
        k.emit("v_mov_b32", v(T0), 0)
        for i in range(len(stamps)):
            k.emit("v_mov_b32", v(T1), s(66 + i))
            k.emit("buffer_store_dword", v(T1), v(T0), s(XN, 4), s(57), mods="offen offset:%d" % (4 * i))
        print("STAMPS", stamps)
    k.emit("s_branch", "L_at_end")
    for j in rare:
        k.label("L_at_rare%d" % j)
        k.nop(16)
        new_ref(False)
        for r in range(64):
            k.emit("v_mul_f32", v(OACC + r), v(OACC + r), v(FF))
        k.emit("v_mul_f32", v(SUM0), v(SUM0), v(FF))
        k.emit("v_mul_f32", v(SUM1), v(SUM1), v(FF))
        k.nop(4)
        k.emit("s_branch", "L_at_back%d" % j)
    k.label("L_at_end")
    return k, 256, 100
```

```python
import os
import struct
import sys

sys.path.insert(0, os.path.dirname(os.path.abspath(__file__)))
from asmlib import Kern, v, s

NAME = "recurrent_scan__sliding_block_cached__geglu_ffn__prompt"
XN_OFF = 0
O_OFF = 2 << 20
H_OFF = 18 << 20
H_RGS = 88 * 1024
PART_OFF = 24 << 20
LOG2E = 1.4426950408889634


def f32(x):
    return "0x%08x" % struct.unpack("<I", struct.pack("<f", x))[0]


def wave_allreduce_add(k, val, tmp):
    for x in (1, 2, 4, 8, 16):
        o = k.emit("ds_swizzle_b32", v(tmp), v(val), mods="offset:0x%04x" % ((x << 10) | 0x1F))
        k.wait_lg(o)
        k.emit("v_add_f32", v(val), v(val), v(tmp))
    k.emit("v_mov_b32", v(tmp), v(val))
    k.emit("v_permlane32_swap_b32", v(val), v(tmp))
    k.emit("v_add_f32", v(val), v(val), v(tmp))


def gen_ln():
    k = Kern("ln_kernel")
    k.emit("s_cmp_ge_u32", s(2), 512)
    k.emit("s_cbranch_scc1", "L_ln_end")
    k.emit("s_load_dwordx2", s(4, 2), s(0, 2), 0)
    k.emit("s_load_dwordx2", s(6, 2), s(0, 2), 88)
    k.emit("v_lshlrev_b32", v(1), 4, v(0))
    k.emit("s_lshl_b32", s(3), s(2), 12)
    k.raw("    s_waitcnt lgkmcnt(0)")
    k.srd(8, 4, 2048 * 1024)
    k.srd(12, 6, 2048 * 1024, add=XN_OFF)
    o = k.emit("buffer_load_dwordx4", v(44, 4), v(1), s(8, 4), s(3), mods="offen")
    if os.environ.get("PREF", "0") == "1":
        k.emit("s_load_dwordx2", s(24, 2), s(0, 2), 24)
        k.emit("s_load_dwordx4", s(28, 4), s(0, 2), 48)
        k.emit("v_lshrrev_b32", v(2), 6, v(0))
        k.emit("v_readfirstlane_b32", s(18), v(2))
        k.emit("v_and_b32", v(2), 63, v(0))
        k.emit("s_and_b32", s(19), s(2), 7)
        k.emit("s_lshl_b32", s(19), s(19), 2)
        k.emit("s_add_u32", s(19), s(19), s(18))
        k.emit("s_lshr_b32", s(26), s(2), 3)
        k.raw("    s_waitcnt lgkmcnt(0)")
        k.srd(40, 24, 4 << 20)
        k.srd(44, 28, 512 * 2752)
        k.srd(48, 30, 512 * 2752)
        k.emit("v_lshrrev_b32", v(5), 4, v(2))
        k.emit("v_and_b32", v(6), 15, v(2))
        k.emit("v_lshlrev_b32", v(6), 4, v(6))
        k.emit("v_lshl_add_u32", v(5), v(5), 13, v(6))
        k.emit("v_min_u32", v(6), 47, v(2))
        k.emit("v_mul_u32_u24", v(7), 43, v(6))
        k.emit("v_lshrrev_b32", v(7), 8, v(7))
        k.emit("v_mul_u32_u24", v(8), 6, v(7))
        k.emit("v_sub_u32", v(8), v(6), v(8))
        k.emit("v_mul_u32_u24", v(7), 2752, v(7))
        k.emit("v_lshrrev_b32", v(9), 1, v(8))
        k.emit("v_lshl_add_u32", v(7), v(9), 10, v(7))
        k.emit("v_and_b32", v(8), 1, v(8))
        k.emit("v_lshl_add_u32", v(7), v(8), 4, v(7))
        k.emit("s_lshl_b32", s(27), s(26), 16)
        k.emit("s_lshl_b32", s(52), s(19), 8)
        k.emit("s_add_u32", s(27), s(27), s(52))
        k.emit("buffer_load_dwordx4", v(28, 4), v(5), s(40, 4), s(27), mods="offen")
        k.emit("s_add_u32", s(27), s(27), 32768)
        k.emit("buffer_load_dwordx4", v(32, 4), v(5), s(40, 4), s(27), mods="offen")
        k.emit("s_mul_i32", s(27), s(26), 8 * 2752)
        k.emit("s_lshl_b32", s(52), s(19), 5)
        k.emit("s_add_u32", s(27), s(27), s(52))
        k.emit("buffer_load_dwordx4", v(36, 4), v(7), s(44, 4), s(27), mods="offen")
        k.emit("buffer_load_dwordx4", v(40, 4), v(7), s(48, 4), s(27), mods="offen")
    k.wait_vm(o)
    for i in range(4):
        k.emit("v_mov_b32", v(4 + i), v(44 + i))
    for i in range(4):
        k.emit("v_lshlrev_b32", v(8 + 2 * i), 16, v(4 + i))
        k.emit("v_and_b32", v(9 + 2 * i), 0xFFFF0000, v(4 + i))
    k.emit("v_add_f32", v(16), v(8), v(9))
    for i in range(2, 8):
        k.emit("v_add_f32", v(16), v(16), v(8 + i))
    wave_allreduce_add(k, 16, 17)
    k.emit("v_mul_f32", v(16), f32(1.0 / 512), v(16))
    k.emit("v_sub_f32", v(18), v(8), v(16))
    k.emit("v_mul_f32", v(19), v(18), v(18))
    for i in range(1, 8):
        k.emit("v_sub_f32", v(18), v(8 + i), v(16))
        k.emit("v_fmac_f32", v(19), v(18), v(18))
    wave_allreduce_add(k, 19, 17)
    k.emit("v_mul_f32", v(19), f32(1.0 / 512), v(19))
    k.emit("v_cvt_pk_bf16_f32", v(20), v(16), v(19))
    k.emit("v_lshlrev_b32", v(16), 16, v(20))
    k.emit("v_and_b32", v(19), 0xFFFF0000, v(20))
    k.emit("v_add_f32", v(19), f32(1e-5), v(19))
    k.emit("v_cvt_pk_bf16_f32", v(20), v(19), v(19))
    k.emit("v_lshlrev_b32", v(19), 16, v(20))
    k.emit("v_sqrt_f32", v(19), v(19))
    k.emit("v_cvt_pk_bf16_f32", v(20), v(19), v(19))
    k.emit("v_lshlrev_b32", v(19), 16, v(20))
    k.emit("v_rcp_f32", v(19), v(19))
    for i in range(4):
        k.emit("v_sub_f32", v(20), v(8 + 2 * i), v(16))
        k.emit("v_sub_f32", v(21), v(9 + 2 * i), v(16))
        k.emit("v_cvt_pk_bf16_f32", v(22), v(20), v(21))
        k.emit("v_lshlrev_b32", v(20), 16, v(22))
        k.emit("v_and_b32", v(21), 0xFFFF0000, v(22))
        k.emit("v_mul_f32", v(20), v(20), v(19))
        k.emit("v_mul_f32", v(21), v(21), v(19))
        k.emit("v_cvt_pk_bf16_f32", v(24 + i), v(20), v(21))
    k.emit("v_and_b32", v(2), 63, v(0))
    k.emit("v_lshrrev_b32", v(3), 1, v(2))
    k.emit("v_lshlrev_b32", v(3), 10, v(3))
    k.emit("v_and_b32", v(2), 1, v(2))
    k.emit("v_lshl_add_u32", v(3), v(2), 9, v(3))
    k.emit("v_lshrrev_b32", v(2), 6, v(0))
    k.emit("v_lshl_add_u32", v(3), v(2), 4, v(3))
    k.emit("s_lshr_b32", s(16), s(2), 3)
    k.emit("s_lshl_b32", s(16), s(16), 15)
    k.emit("s_and_b32", s(17), s(2), 7)
    k.emit("s_lshl_b32", s(17), s(17), 6)
    k.emit("s_add_u32", s(16), s(16), s(17))
    k.emit("buffer_store_dwordx4", v(24, 4), v(3), s(12, 4), s(16), mods="offen")
    k.label("L_ln_end")
    return k, 48, 56


def gen_fin():
    k = Kern("fin_kernel")
    k.emit("s_cmp_ge_u32", s(2), 512)
    k.emit("s_cbranch_scc1", "L_fin_end")
    k.emit("s_load_dwordx2", s(4, 2), s(0, 2), 0)
    k.emit("s_load_dwordx2", s(6, 2), s(0, 2), 72)
    k.emit("s_load_dwordx2", s(16, 2), s(0, 2), 88)
    k.emit("v_and_b32", v(1), 63, v(0))
    k.emit("v_lshrrev_b32", v(2), 6, v(0))
    k.emit("v_and_b32", v(3), 1, v(2))
    k.emit("v_lshrrev_b32", v(4), 1, v(2))
    k.emit("s_and_b32", s(20), s(2), 1)
    k.emit("s_lshr_b32", s(21), s(2), 1)
    k.emit("s_and_b32", s(21), s(21), 3)
    k.emit("s_lshr_b32", s(22), s(2), 3)
    k.emit("s_lshr_b32", s(23), s(2), 1)
    k.emit("s_lshl_b32", s(23), s(23), 14)
    k.emit("s_lshl_b32", s(24), s(20), 13)
    k.emit("s_add_u32", s(23), s(23), s(24))
    k.emit("v_lshlrev_b32", v(5), 12, v(4))
    k.emit("v_lshl_add_u32", v(5), v(3), 11, v(5))
    k.emit("v_lshl_add_u32", v(5), v(1), 4, v(5))
    k.emit("s_lshr_b32", s(25), s(22), 2)
    k.emit("s_and_b32", s(26), s(22), 3)
    k.emit("s_lshr_b32", s(27), s(21), 1)
    k.emit("s_and_b32", s(28), s(21), 1)
    k.emit("s_lshl_b32", s(25), s(25), 7)
    k.emit("s_lshl_b32", s(27), s(27), 6)
    k.emit("s_add_u32", s(25), s(25), s(27))
    k.emit("s_lshl_b32", s(25), s(25), 10)
    k.emit("s_lshl_b32", s(26), s(26), 7)
    k.emit("s_lshl_b32", s(28), s(28), 6)
    k.emit("s_add_u32", s(26), s(26), s(28))
    k.emit("s_lshl_b32", s(29), s(20), 5)
    k.emit("s_add_u32", s(26), s(26), s(29))
    k.emit("s_lshl_b32", s(26), s(26), 1)
    k.emit("s_add_u32", s(25), s(25), s(26))
    k.emit("v_and_b32", v(6), 31, v(1))
    k.emit("v_lshl_add_u32", v(6), v(4), 5, v(6))
    k.emit("v_lshlrev_b32", v(6), 10, v(6))
    k.emit("v_lshl_add_u32", v(6), v(3), 5, v(6))
    k.emit("v_lshrrev_b32", v(7), 5, v(1))
    k.emit("v_lshl_add_u32", v(6), v(7), 4, v(6))
    k.raw("    s_waitcnt lgkmcnt(0)")
    k.srd(8, 4, 2048 * 1024)
    k.srd(12, 6, 2048 * 1024)
    k.srd(32, 16, 16 << 20, add=PART_OFF)
    ids = []
    for sp in range(4):
        k.emit("s_add_u32", s(36 + sp), s(23), sp * (4 << 20))
    for sp in range(4):
        for j in range(2):
            ids.append(k.emit("buffer_load_dwordx4", v(8 + sp * 8 + 4 * j, 4), v(5), s(32, 4), s(36 + sp),
                              mods="offen offset:%d" % (1024 * j)))
    ox = k.emit("buffer_load_dwordx4", v(40, 4), v(6), s(8, 4), s(25), mods="offen")
    k.wait_vm(ids[5])
    for i in range(8):
        k.emit("v_add_f32", v(8 + i), v(8 + i), v(16 + i))
        k.emit("v_add_f32", v(8 + i), v(8 + i), v(24 + i))
    k.wait_vm(ids[7])
    for i in range(4):
        k.emit("v_cvt_pk_bf16_f32", v(44 + i), v(8 + 2 * i), v(9 + 2 * i))
        k.emit("v_cvt_pk_bf16_f32", v(48 + i), v(32 + 2 * i), v(33 + 2 * i))
    for i in range(4):
        k.emit("v_lshlrev_b32", v(8 + 2 * i), 16, v(44 + i))
        k.emit("v_and_b32", v(9 + 2 * i), 0xFFFF0000, v(44 + i))
        k.emit("v_lshlrev_b32", v(32 + 2 * i), 16, v(48 + i))
        k.emit("v_and_b32", v(33 + 2 * i), 0xFFFF0000, v(48 + i))
    for i in range(8):
        k.emit("v_mul_f32", v(16 + i), f32(-LOG2E), v(32 + i))
    for i in range(8):
        k.emit("v_exp_f32", v(16 + i), v(16 + i))
    for i in range(8):
        k.emit("v_add_f32", v(16 + i), 1.0, v(16 + i))
    for i in range(8):
        k.emit("v_rcp_f32", v(16 + i), v(16 + i))
    for i in range(8):
        k.emit("v_mul_f32", v(16 + i), v(16 + i), v(32 + i))
    for i in range(4):
        k.emit("v_cvt_pk_bf16_f32", v(48 + i), v(16 + 2 * i), v(17 + 2 * i))
    for i in range(4):
        k.emit("v_lshlrev_b32", v(16 + 2 * i), 16, v(48 + i))
        k.emit("v_and_b32", v(17 + 2 * i), 0xFFFF0000, v(48 + i))
    for i in range(8):
        k.emit("v_mul_f32", v(8 + i), v(8 + i), v(16 + i))
    for i in range(4):
        k.emit("v_cvt_pk_bf16_f32", v(44 + i), v(8 + 2 * i), v(9 + 2 * i))
    k.wait_vm(ox)
    for i in range(4):
        k.emit("v_lshlrev_b32", v(8 + 2 * i), 16, v(44 + i))
        k.emit("v_and_b32", v(9 + 2 * i), 0xFFFF0000, v(44 + i))
        k.emit("v_lshlrev_b32", v(16 + 2 * i), 16, v(40 + i))
        k.emit("v_and_b32", v(17 + 2 * i), 0xFFFF0000, v(40 + i))
    for i in range(8):
        k.emit("v_add_f32", v(8 + i), v(8 + i), v(16 + i))
    for i in range(4):
        k.emit("v_cvt_pk_bf16_f32", v(44 + i), v(8 + 2 * i), v(9 + 2 * i))
    k.emit("buffer_store_dwordx4", v(44, 4), v(6), s(12, 4), s(25), mods="offen")
    k.label("L_fin_end")
    return k, 52, 44


def bs2_lane(k, dst, lane, tmp):
    k.emit("v_and_b32", v(tmp), 1, v(lane))
    k.emit("v_lshlrev_b32", v(dst), 4, v(tmp))
    k.emit("v_and_b32", v(tmp), 2, v(lane))
    k.emit("v_lshl_add_u32", v(dst), v(tmp), 2, v(dst))


def gen_gemm2():
    k = Kern("gemm2_kernel")
    SLOT = 32768
    NSLOT = 5
    k.emit("s_cmp_ge_u32", s(2), 256)
    k.emit("s_cbranch_scc1", "L_g2_end")
    k.emit("s_load_dwordx2", s(4, 2), s(0, 2), 32)
    k.emit("s_load_dwordx2", s(6, 2), s(0, 2), 64)
    k.emit("s_load_dwordx2", s(8, 2), s(0, 2), 88)
    k.emit("v_lshrrev_b32", v(1), 6, v(0))
    k.emit("v_and_b32", v(2), 63, v(0))
    k.emit("v_readfirstlane_b32", s(40), v(1))
    k.emit("s_lshr_b32", s(39), s(40), 2)
    k.emit("s_and_b32", s(40), s(40), 3)
    k.emit("s_and_b32", s(41), s(2), 3)
    k.emit("s_lshr_b32", s(42), s(2), 2)
    k.emit("s_and_b32", s(42), s(42), 1)
    k.emit("s_lshr_b32", s(43), s(2), 5)
    k.emit("s_lshl_b32", s(42), s(42), 3)
    k.emit("s_add_u32", s(42), s(42), s(43))
    k.emit("s_lshr_b32", s(43), s(2), 3)
    k.emit("s_and_b32", s(43), s(43), 3)
    k.emit("s_mov_b32", s(44), 0)
    k.emit("s_mov_b32", s(45), 22)
    k.emit("s_cmp_eq_u32", s(41), 1)
    k.emit("s_cselect_b32", s(44), 1408, s(44))
    k.emit("s_cselect_b32", s(45), 21, s(45))
    k.emit("s_cmp_eq_u32", s(41), 2)
    k.emit("s_cselect_b32", s(44), 2752, s(44))
    k.emit("s_cselect_b32", s(45), 21, s(45))
    k.emit("s_mov_b32", s(46), 262144)
    k.emit("s_mov_b32", s(47), O_OFF)
    k.emit("s_cmp_eq_u32", s(41), 3)
    k.emit("s_cselect_b32", s(46), H_RGS, s(46))
    k.emit("s_cselect_b32", s(47), H_OFF, s(47))
    k.emit("s_mul_i32", s(48), s(42), s(46))
    k.emit("s_lshl_b32", s(48), s(48), 2)
    k.emit("s_add_u32", s(47), s(47), s(48))
    k.emit("s_lshl_b32", s(48), s(44), 6)
    k.emit("s_add_u32", s(47), s(47), s(48))
    k.emit("s_lshl_b32", s(49), s(44), 10)
    k.emit("s_lshl_b32", s(48), s(43), 8)
    k.emit("s_add_u32", s(49), s(49), s(48))
    k.raw("    s_waitcnt lgkmcnt(0)")
    k.emit("s_mov_b32", s(50), 4096 * 1024)
    k.emit("s_cmp_eq_u32", s(41), 3)
    k.emit("s_cselect_b32", s(4), s(6), s(4))
    k.emit("s_cselect_b32", s(5), s(7), s(5))
    k.emit("s_cselect_b32", s(50), 1376 * 1024, s(50))
    k.emit("s_sub_u32", s(50), s(50), s(49))
    k.emit("s_add_u32", s(12), s(8), s(47))
    k.emit("s_addc_u32", s(13), s(9), 0)
    k.emit("s_and_b32", s(13), s(13), 0xFFFF)
    k.emit("s_lshl_b32", s(51), s(46), 2)
    k.emit("s_mov_b32", s(14), s(51))
    k.emit("s_mov_b32", s(15), 0x00020000)
    k.emit("s_add_u32", s(16), s(4), s(49))
    k.emit("s_addc_u32", s(17), s(5), 0)
    k.emit("s_and_b32", s(17), s(17), 0xFFFF)
    k.emit("s_mov_b32", s(18), s(50))
    k.emit("s_mov_b32", s(19), 0x00020000)
    k.srd(20, 8, 16 << 20, add=PART_OFF)
    k.emit("v_lshlrev_b32", v(3), 4, v(2))
    k.emit("v_lshrrev_b32", v(4), 4, v(2))
    k.emit("v_bfe_u32", v(5), v(2), 2, 2)
    k.emit("v_xor_b32", v(5), v(5), v(4))
    k.emit("v_lshlrev_b32", v(5), 6, v(5))
    k.emit("v_lshl_add_u32", v(5), v(4), 10, v(5))
    k.emit("v_and_b32", v(4), 3, v(2))
    k.emit("v_lshl_add_u32", v(6), v(4), 4, v(5))
    for i in range(4):
        k.emit("s_add_u32", s(53), s(40), 4 * i)
        k.emit("s_mul_i32", s(56 + i), s(40), s(46))
        k.emit("s_add_u32", s(56 + i), s(56 + i), 1024 * i)
        k.emit("s_lshl_b32", s(60 + i), s(53), 12)
    k.emit("s_lshl_b32", s(64), s(40), 10)
    k.emit("s_lshl_b32", s(82), s(40), 12)
    k.emit("s_mov_b32", s(65), 0)
    k.emit("s_mov_b32", s(66), 0)

    ROT = int(os.environ.get("ROT", "1"))
    k.emit("s_lshr_b32", s(84), s(2), 3)
    k.emit("s_mul_i32", s(84), s(84), ROT)
    for _ in range(12):
        k.emit("s_cmp_ge_u32", s(84), s(45))
        k.emit("s_cselect_b32", s(85), s(45), 0)
        k.emit("s_sub_u32", s(84), s(84), s(85))

    def issue_dma():
        k.emit("s_cmp_lt_u32", s(65), s(45))
        k.emit("s_cselect_b32", s(14), s(51), 0)
        k.emit("s_cselect_b32", s(18), s(50), 0)
        if os.environ.get("NOACT") == "1":
            k.emit("s_mov_b32", s(14), 0)
        if os.environ.get("NOWT") == "1":
            k.emit("s_mov_b32", s(18), 0)
        k.emit("s_add_u32", s(67), s(66), s(64))
        k.emit("s_add_u32", s(83), s(66), s(82))
        k.emit("s_lshl_b32", s(85), s(84), 12)
        k.emit("s_lshl_b32", s(86), s(84), 16)
        for i in range(8):
            if i < 4:
                k.emit("s_add_u32", "m0", s(83), 1024 * i)
                k.emit("s_add_u32", s(87), s(56 + i), s(85))
                k.emit("buffer_load_dwordx4", v(3), s(12, 4), s(87), mods="offen lds")
            else:
                k.emit("s_add_u32", "m0", s(67), 4096 * i)
                k.emit("s_add_u32", s(87), s(56 + i), s(86))
                k.emit("buffer_load_dwordx4", v(6), s(16, 4), s(87), mods="offen lds")
        k.emit("s_add_u32", s(65), s(65), 1)
        k.emit("s_add_u32", s(84), s(84), 1)
        k.emit("s_cmp_eq_u32", s(84), s(45))
        k.emit("s_cselect_b32", s(84), 0, s(84))
        k.emit("s_add_u32", s(66), s(66), SLOT)
        k.emit("s_cmp_eq_u32", s(66), SLOT * NSLOT)
        k.emit("s_cselect_b32", s(66), 0, s(66))

    k.emit("s_cmp_eq_u32", s(39), 0)
    k.emit("s_cbranch_scc1", "L_g2_compute")
    for i in range(4):
        issue_dma()
    k.raw("    s_waitcnt vmcnt(24)")
    k.emit("s_barrier")
    k.emit("s_mov_b32", s(78), 0)
    k.label("L_g2_lloop")
    k.raw("    s_waitcnt vmcnt(16)")
    k.emit("s_barrier")
    issue_dma()
    k.emit("s_add_u32", s(78), s(78), 1)
    k.emit("s_cmp_lt_u32", s(78), s(45))
    k.emit("s_cbranch_scc1", "L_g2_lloop")
    k.raw("    s_waitcnt vmcnt(0)")
    k.emit("s_endpgm")
    k.label("L_g2_compute")
    k.emit("s_lshr_b32", s(68), s(40), 1)
    k.emit("s_and_b32", s(69), s(40), 1)
    k.emit("v_lshrrev_b32", v(7), 5, v(2))
    k.emit("s_lshl_b32", s(53), s(68), 13)
    k.emit("v_lshl_add_u32", v(8), v(2), 4, s(53))
    k.emit("v_bfe_u32", v(4), v(2), 2, 2)
    k.emit("v_lshl_add_u32", v(5), v(7), 3, v(4))
    k.emit("v_lshlrev_b32", v(5), 8, v(5))
    k.emit("v_add_u32", v(5), 16384, v(5))
    k.emit("v_bfe_u32", v(14), v(2), 4, 1)
    k.emit("v_lshl_add_u32", v(5), v(14), 5, v(5))
    bs2_lane(k, 14, 2, 15)
    k.emit("v_add_u32", v(5), v(5), v(14))
    k.emit("s_lshl_b32", s(53), s(69), 1)
    for tn in range(2):
        k.emit("s_add_u32", s(54), s(53), tn)
        k.emit("v_xor_b32", v(14), s(54), v(4))
        k.emit("v_lshl_add_u32", v(12 + tn), v(14), 6, v(5))
    ACC = 80
    for i in range(64):
        k.emit("v_mov_b32", v(ACC + i), 0)

    def reads(t, fs):
        base = 16 + 16 * fs
        for tn in range(2):
            for u in range(2):
                k.emit("ds_read_b64_tr_b16", v(base + 4 * tn + 2 * u, 2), v(12 + tn),
                       mods="offset:%d" % ((16 * t + 4 * u) * 256))
        for tm in range(2):
            k.emit("ds_read_b128", v(base + 8 + 4 * tm, 4), v(8), mods="offset:%d" % (4096 * tm + 1024 * t))

    def mfmas(fs):
        base = 16 + 16 * fs
        for tn in range(2):
            for tm in range(2):
                a = ACC + 16 * (tn * 2 + tm)
                k.emit("v_mfma_f32_32x32x16_bf16", v(a, 16), v(base + 4 * tn, 4), v(base + 8 + 4 * tm, 4), v(a, 16))

    STAMP = os.environ.get("STAMP2", "0") == "1"

    def stamp(idx):
        if STAMP:
            k.raw("    s_memtime s[98:99]" if os.environ.get("REALTIME") != "1" else "    s_memrealtime s[98:99]")
            k.raw("    s_waitcnt lgkmcnt(0)")
            k.emit("s_mov_b32", s(idx), s(98))

    stamp(90)
    k.emit("s_barrier")
    stamp(91)
    reads(0, 0)
    reads(1, 1)
    k.emit("s_mov_b32", s(78), 0)
    k.emit("s_mov_b32", s(79), 0)
    k.emit("s_mov_b32", s(81), SLOT)
    k.label("L_g2_loop")
    for t in range(2):
        reads(t + 2, t + 2)
        k.raw("    s_waitcnt lgkmcnt(12)")
        mfmas(t)
    k.emit("s_barrier")
    k.emit("s_add_u32", s(79), s(79), SLOT)
    k.emit("s_cmp_eq_u32", s(79), SLOT * NSLOT)
    k.emit("s_cselect_b32", s(79), 0, s(79))
    k.emit("s_cselect_b32", s(80), -SLOT * (NSLOT - 1) & 0xFFFFFFFF, s(81))
    for r in (8, 12, 13):
        k.emit("v_add_u32", v(r), s(80), v(r))
    reads(0, 0)
    k.raw("    s_waitcnt lgkmcnt(12)")
    mfmas(2)
    reads(1, 1)
    k.raw("    s_waitcnt lgkmcnt(12)")
    mfmas(3)
    k.emit("s_add_u32", s(78), s(78), 1)
    k.emit("s_cmp_lt_u32", s(78), s(45))
    k.emit("s_cbranch_scc1", "L_g2_loop")
    k.lgq = []
    k.vmq = []
    stamp(92)
    k.nop(16)
    k.emit("s_lshl_b32", s(53), s(41), 6)
    k.emit("s_lshl_b32", s(54), s(42), 2)
    k.emit("s_add_u32", s(53), s(53), s(54))
    k.emit("s_add_u32", s(53), s(53), s(43))
    k.emit("s_lshl_b32", s(53), s(53), 2)
    k.emit("s_add_u32", s(53), s(53), s(40))
    k.emit("s_lshl_b32", s(53), s(53), 14)
    k.emit("v_lshlrev_b32", v(4), 4, v(2))
    for q in range(16):
        if q % 4 == 0 and q:
            k.emit("s_add_u32", s(53), s(53), 4096)
        k.emit("buffer_store_dwordx4", v(ACC + 4 * q, 4), v(4), s(20, 4), s(53), mods="offen offset:%d" % (1024 * (q % 4)))
    k.raw("    s_waitcnt vmcnt(0)")
    if STAMP:
        stamp(93)
        k.srd(20, 8, 1 << 20, add=61 << 20)
        k.emit("s_lshl_b32", s(57), s(2), 2)
        k.emit("s_add_u32", s(57), s(57), s(40))
        k.emit("s_lshl_b32", s(57), s(57), 4)
        k.emit("v_mov_b32", v(4), 0)
        for i in range(4):
            k.emit("v_mov_b32", v(5), s(90 + i))
            k.emit("buffer_store_dword", v(5), v(4), s(20, 4), s(57), mods="offen offset:%d" % (4 * i))
    k.label("L_g2_end")
    return k, 144, 100


from gen_attn import gen_attn


def main():
    ks = []
    launches = []
    k, nv, ns = gen_ln()
    ks.append((k, nv, ns))
    launches.append("; @launch kernel=ln_kernel grid=(512,1,1) block=(256,1,1) lds=0")
    k, nv, ns = gen_attn()
    ks.append((k, nv, ns))
    launches.append("; @launch kernel=attn_kernel grid=(256,1,1) block=(512,1,1) lds=163840")
    k, nv, ns = gen_gemm2()
    ks.append((k, nv, ns))
    launches.append("; @launch kernel=gemm2_kernel grid=(256,1,1) block=(512,1,1) lds=163840")
    k, nv, ns = gen_fin()
    ks.append((k, nv, ns))
    launches.append("; @launch kernel=fin_kernel grid=(512,1,1) block=(256,1,1) lds=0")
    out = []
    out.extend(launches)
    out.append('.amdgcn_target "amdgcn-amd-amdhsa--gfx950"')
    out.append(".text")
    descs = []
    for k, nv, ns in ks:
        assert k.maxv < nv, (k.name, k.maxv, nv)
        body, desc = k.text(nv, ns)
        out.append(body)
        descs.append(desc)
        print(k.name, "maxv", k.maxv, k.count, file=sys.stderr)
    out.append('.section .rodata,"a"')
    out.extend(descs)
    path = os.path.join(os.path.dirname(os.path.abspath(__file__)), "..", "cdna_kernels", NAME + ".s")
    with open(path, "w") as f:
        f.write("\n".join(out) + "\n")


if __name__ == "__main__":
    main()
```

```python
import os
import struct
from asmlib import Kern, v, s

O_OFF = 2 << 20
H_OFF = 18 << 20
H_RGS = 88 * 1024
LOG2E = 1.4426950408889634
SLOT = 32768
NSLOT = 5


def f32(x):
    return "0x%08x" % struct.unpack("<I", struct.pack("<f", x))[0]


def gen_g3():
    k = Kern("outp_kernel")
    k.emit("s_cmp_ge_u32", s(2), 256)
    k.emit("s_cbranch_scc1", "L_g3_end")
    k.emit("s_load_dwordx2", s(4, 2), s(0, 2), 32)
    k.emit("s_load_dwordx2", s(6, 2), s(0, 2), 64)
    k.emit("s_load_dwordx2", s(8, 2), s(0, 2), 88)
    k.emit("s_load_dwordx2", s(10, 2), s(0, 2), 0)
    k.emit("s_load_dwordx2", s(36, 2), s(0, 2), 72)
    k.emit("v_lshrrev_b32", v(1), 6, v(0))
    k.emit("v_and_b32", v(2), 63, v(0))
    k.emit("v_readfirstlane_b32", s(40), v(1))
    k.emit("s_lshr_b32", s(39), s(40), 2)
    k.emit("s_and_b32", s(40), s(40), 3)
    k.emit("s_and_b32", s(41), s(2), 7)
    k.emit("s_lshr_b32", s(44), s(2), 3)
    k.emit("s_lshr_b32", s(42), s(44), 3)
    k.emit("s_lshl_b32", s(41), s(41), 2)
    k.emit("s_add_u32", s(42), s(42), s(41))
    k.emit("s_and_b32", s(43), s(44), 7)
    k.raw("    s_waitcnt lgkmcnt(0)")
    k.emit("s_cmp_eq_u32", s(39), 0)
    k.emit("s_cbranch_scc1", "L_g3_compute")

    k.emit("s_lshl_b32", s(45), s(42), 19)
    k.emit("s_add_u32", s(46), s(8), s(45))
    k.emit("s_addc_u32", s(47), s(9), 0)
    k.emit("s_add_u32", s(46), s(46), O_OFF)
    k.emit("s_addc_u32", s(47), s(47), 0)
    k.emit("s_and_b32", s(47), s(47), 0xFFFF)
    k.emit("s_mul_i32", s(45), s(42), 2 * H_RGS)
    k.emit("s_add_u32", s(48), s(8), s(45))
    k.emit("s_addc_u32", s(49), s(9), 0)
    k.emit("s_add_u32", s(48), s(48), H_OFF)
    k.emit("s_addc_u32", s(49), s(49), 0)
    k.emit("s_and_b32", s(49), s(49), 0xFFFF)
    k.emit("s_lshl_b32", s(45), s(43), 7)
    k.emit("s_add_u32", s(50), s(4), s(45))
    k.emit("s_addc_u32", s(51), s(5), 0)
    k.emit("s_and_b32", s(51), s(51), 0xFFFF)
    k.emit("s_add_u32", s(52), s(6), s(45))
    k.emit("s_addc_u32", s(53), s(7), 0)
    k.emit("s_and_b32", s(53), s(53), 0xFFFF)
    k.emit("s_sub_u32", s(54), 4096 * 1024, s(45))
    k.emit("s_sub_u32", s(55), 1376 * 1024, s(45))
    k.emit("s_mov_b32", s(15), 0x00020000)
    k.emit("s_mov_b32", s(19), 0x00020000)
    k.emit("v_lshlrev_b32", v(3), 4, v(2))
    k.emit("v_lshrrev_b32", v(4), 3, v(2))
    k.emit("v_bfe_u32", v(5), v(2), 2, 1)
    k.emit("v_bfe_u32", v(6), v(2), 4, 1)
    k.emit("v_xor_b32", v(5), v(5), v(6))
    k.emit("v_lshlrev_b32", v(5), 6, v(5))
    k.emit("v_lshl_add_u32", v(5), v(4), 10, v(5))
    k.emit("v_and_b32", v(4), 3, v(2))
    k.emit("v_lshl_add_u32", v(6), v(4), 4, v(5))
    k.emit("s_lshr_b32", s(56), s(40), 1)
    k.emit("s_and_b32", s(57), s(40), 1)
    k.emit("s_lshl_b32", s(57), s(57), 12)
    k.emit("s_lshl_b32", s(58), s(56), 18)
    k.emit("s_add_u32", s(58), s(58), s(57))
    k.emit("s_mul_i32", s(59), s(56), H_RGS)
    k.emit("s_add_u32", s(59), s(59), s(57))
    k.emit("s_lshl_b32", s(60), s(40), 12)
    k.emit("s_lshl_b32", s(61), s(40), 15)
    k.emit("s_lshl_b32", s(62), s(40), 12)
    k.emit("s_add_u32", s(62), s(62), 16384)
    k.emit("s_mov_b32", s(65), 0)
    k.emit("s_mov_b32", s(66), 0)
    RM = int(os.environ.get("G3ROT", "3"))
    k.emit("s_and_b32", s(67), s(44), RM)
    k.emit("s_and_b32", s(68), s(44), RM)
    for _ in range(2):
        k.emit("s_cmp_ge_u32", s(68), 11)
        k.emit("s_cselect_b32", s(69), 11, 0)
        k.emit("s_sub_u32", s(68), s(68), s(69))

    def issue():
        k.emit("s_cmp_lt_u32", s(65), 32)
        k.emit("s_cselect_b32", s(12), s(46), s(48))
        k.emit("s_cselect_b32", s(13), s(47), s(49))
        k.emit("s_cselect_b32", s(16), s(50), s(52))
        k.emit("s_cselect_b32", s(17), s(51), s(53))
        k.emit("s_cselect_b32", s(18), s(54), s(55))
        k.emit("s_cselect_b32", s(70), s(67), s(68))
        k.emit("s_cselect_b32", s(71), s(58), s(59))
        k.emit("s_mov_b32", s(14), 2 * 262144)
        k.emit("s_cmp_lt_u32", s(65), 43)
        k.emit("s_cselect_b32", s(14), s(14), 0)
        k.emit("s_cselect_b32", s(18), s(18), 0)
        k.emit("s_lshl_b32", s(72), s(70), 13)
        k.emit("s_add_u32", s(71), s(71), s(72))
        k.emit("s_lshl_b32", s(72), s(70), 17)
        k.emit("s_add_u32", s(72), s(72), s(61))
        k.emit("s_add_u32", s(73), s(66), s(60))
        k.emit("s_add_u32", s(74), s(66), s(62))
        for i in range(4):
            k.emit("s_add_u32", "m0", s(73), 1024 * i)
            k.emit("s_add_u32", s(75), s(71), 1024 * i)
            k.emit("buffer_load_dwordx4", v(3), s(12, 4), s(75), mods="offen lds")
        for i in range(4):
            k.emit("s_add_u32", "m0", s(74), 1024 * i)
            k.emit("s_add_u32", s(75), s(72), 8192 * i)
            k.emit("buffer_load_dwordx4", v(6), s(16, 4), s(75), mods="offen lds")
        k.emit("s_cmp_lt_u32", s(65), 32)
        k.emit("s_cselect_b32", s(76), 1, 0)
        k.emit("s_cselect_b32", s(77), 0, 1)
        k.emit("s_add_u32", s(67), s(67), s(76))
        k.emit("s_and_b32", s(67), s(67), 31)
        k.emit("s_add_u32", s(68), s(68), s(77))
        k.emit("s_cmp_eq_u32", s(68), 11)
        k.emit("s_cselect_b32", s(68), 0, s(68))
        k.emit("s_add_u32", s(65), s(65), 1)
        k.emit("s_add_u32", s(66), s(66), SLOT)
        k.emit("s_cmp_eq_u32", s(66), SLOT * NSLOT)
        k.emit("s_cselect_b32", s(66), 0, s(66))

    for i in range(4):
        issue()
    k.raw("    s_waitcnt vmcnt(24)")
    k.emit("s_barrier")
    k.emit("s_mov_b32", s(78), 0)
    k.label("L_g3_lloop")
    k.raw("    s_waitcnt vmcnt(16)")
    k.emit("s_barrier")
    issue()
    k.emit("s_add_u32", s(78), s(78), 1)
    k.emit("s_cmp_lt_u32", s(78), 44)
    k.emit("s_cbranch_scc1", "L_g3_lloop")
    k.raw("    s_waitcnt vmcnt(0)")
    k.emit("s_endpgm")

    k.label("L_g3_compute")
    k.emit("s_lshl_b32", s(45), s(40), 11)
    k.emit("v_lshl_add_u32", v(8), v(2), 4, s(45))
    k.emit("v_lshrrev_b32", v(7), 5, v(2))
    k.emit("v_bfe_u32", v(4), v(2), 2, 2)
    k.emit("v_lshl_add_u32", v(5), v(7), 3, v(4))
    k.emit("s_lshl_b32", s(45), s(40), 5)
    k.emit("v_add_u32", v(5), s(45), v(5))
    k.emit("v_lshlrev_b32", v(5), 7, v(5))
    k.emit("v_add_u32", v(5), 16384, v(5))
    k.emit("v_bfe_u32", v(14), v(2), 4, 1)
    k.emit("v_lshl_add_u32", v(5), v(14), 5, v(5))
    k.emit("v_and_b32", v(15), 1, v(2))
    k.emit("v_lshlrev_b32", v(14), 4, v(15))
    k.emit("v_and_b32", v(15), 2, v(2))
    k.emit("v_lshl_add_u32", v(14), v(15), 2, v(14))
    k.emit("v_add_u32", v(5), v(5), v(14))
    k.emit("v_lshrrev_b32", v(4), 1, v(4))
    for tn in range(2):
        k.emit("v_xor_b32", v(14), tn, v(4))
        k.emit("v_lshl_add_u32", v(12 + tn), v(14), 6, v(5))
    FR = 16
    ACS, ACF = 80, 144
    for i in range(128):
        k.emit("v_mov_b32", v(ACS + i), 0)

    def read_ops(fs):
        ops = []
        for t in range(2):
            base = FR + 32 * fs + 16 * t
            for tn in range(2):
                for u in range(2):
                    ops.append(lambda base=base, tn=tn, u=u, t=t: k.emit(
                        "ds_read_b64_tr_b16", v(base + 4 * tn + 2 * u, 2), v(12 + tn), mods="offset:%d" % ((16 * t + 4 * u) * 128)))
            for tm in range(2):
                ops.append(lambda base=base, tm=tm, t=t: k.emit(
                    "ds_read_b128", v(base + 8 + 4 * tm, 4), v(8), mods="offset:%d" % (8192 * tm + 1024 * t)))
        return ops

    def stage(acc, fs):
        k.emit("s_barrier")
        k.emit("s_add_u32", s(79), s(79), SLOT)
        k.emit("s_cmp_eq_u32", s(79), SLOT * NSLOT)
        k.emit("s_cselect_b32", s(79), 0, s(79))
        k.emit("s_cselect_b32", s(80), -SLOT * (NSLOT - 1) & 0xFFFFFFFF, s(81))
        for r in (8, 12, 13):
            k.emit("v_add_u32", v(r), s(80), v(r))
        k.raw("    s_waitcnt lgkmcnt(0)")
        rops = read_ops(fs ^ 1)
        n = 0
        for t in range(2):
            base = FR + 32 * fs + 16 * t
            for tn in range(2):
                for tm in range(2):
                    a = acc + 16 * (tn * 2 + tm)
                    k.emit("v_mfma_f32_32x32x16_bf16", v(a, 16), v(base + 4 * tn, 4), v(base + 8 + 4 * tm, 4), v(a, 16))
                    for _ in range(2 if n < 4 else 1):
                        rops.pop(0)()
                    n += 1
        assert not rops

    k.emit("s_barrier")
    for op in read_ops(0):
        op()
    k.emit("s_mov_b32", s(79), 0)
    k.emit("s_mov_b32", s(81), SLOT)
    for (acc, n, lab) in ((ACS, 16, "L_g3_loop_s"), (ACF, 6, "L_g3_loop_f")):
        k.emit("s_mov_b32", s(78), 0)
        k.label(lab)
        stage(acc, 0)
        stage(acc, 1)
        k.emit("s_add_u32", s(78), s(78), 1)
        k.emit("s_cmp_lt_u32", s(78), n)
        k.emit("s_cbranch_scc1", lab)
    k.raw("    s_waitcnt lgkmcnt(0)")
    k.lgq = []
    k.vmq = []
    k.nop(16)
    k.emit("s_barrier")
    k.emit("s_lshl_b32", s(45), s(40), 15)
    k.emit("v_lshl_add_u32", v(3), v(2), 4, s(45))
    for q in range(32):
        k.emit("ds_write_b128", v(3), v(ACS + 4 * q, 4), mods="offset:%d" % (1024 * q))
    k.wait_lg0()
    k.emit("s_barrier")
    k.emit("s_lshl_b32", s(45), s(40), 12)
    k.emit("v_lshl_add_u32", v(3), v(2), 4, s(45))
    k.emit("v_add_u32", v(4), 65536, v(3))
    R = 16
    for sw in range(4):
        ar = 3 if sw < 2 else 4
        for half in range(2):
            for q in range(4):
                k.emit("ds_read_b128", v(R + 32 * sw + 16 * half + 4 * q, 4), v(ar),
                       mods="offset:%d" % ((sw % 2) * 32768 + half * 16384 + q * 1024))
    k.srd(20, 10, 2048 * 1024)
    k.srd(24, 36, 2048 * 1024)
    k.emit("s_lshr_b32", s(46), s(40), 1)
    k.emit("s_and_b32", s(47), s(40), 1)
    k.emit("s_lshl_b32", s(48), s(42), 6)
    k.emit("s_lshl_b32", s(49), s(47), 5)
    k.emit("s_add_u32", s(48), s(48), s(49))
    k.emit("s_lshl_b32", s(48), s(48), 10)
    k.emit("s_lshl_b32", s(49), s(43), 7)
    k.emit("s_add_u32", s(48), s(48), s(49))
    k.emit("s_lshl_b32", s(49), s(46), 6)
    k.emit("s_add_u32", s(48), s(48), s(49))
    k.emit("v_and_b32", v(5), 31, v(2))
    k.emit("v_lshlrev_b32", v(5), 10, v(5))
    k.emit("v_lshl_add_u32", v(5), v(7), 4, v(5))
    X = 144
    xid = []
    for a in range(2):
        xid.append(k.emit("buffer_load_dwordx4", v(X + 4 * a, 4), v(5), s(20, 4), s(48), mods="offen offset:%d" % (32 * a)))
    k.wait_lg0()
    for i in range(32):
        k.emit("v_add_f32", v(R + i), v(R + i), v(R + 32 + i))
        k.emit("v_add_f32", v(R + 64 + i), v(R + 64 + i), v(R + 96 + i))
    for i in range(32):
        k.emit("v_add_f32", v(R + i), v(R + i), v(R + 64 + i))
    S, F, G, T0, T1 = R, R + 16, R + 32, R + 48, R + 56
    for i in range(8):
        k.emit("v_cvt_pk_bf16_f32", v(T0 + i), v(S + 2 * i), v(S + 1 + 2 * i))
        k.emit("v_cvt_pk_bf16_f32", v(T1 + i), v(F + 2 * i), v(F + 1 + 2 * i))
    for i in range(8):
        k.emit("v_lshlrev_b32", v(S + 2 * i), 16, v(T0 + i))
        k.emit("v_and_b32", v(S + 1 + 2 * i), 0xFFFF0000, v(T0 + i))
        k.emit("v_lshlrev_b32", v(F + 2 * i), 16, v(T1 + i))
        k.emit("v_and_b32", v(F + 1 + 2 * i), 0xFFFF0000, v(T1 + i))
    for i in range(16):
        k.emit("v_mul_f32", v(G + i), f32(-LOG2E), v(F + i))
    for i in range(16):
        k.emit("v_exp_f32", v(G + i), v(G + i))
    for i in range(16):
        k.emit("v_add_f32", v(G + i), 1.0, v(G + i))
    for i in range(16):
        k.emit("v_rcp_f32", v(G + i), v(G + i))
    for i in range(16):
        k.emit("v_mul_f32", v(G + i), v(G + i), v(F + i))
    for i in range(8):
        k.emit("v_cvt_pk_bf16_f32", v(T1 + i), v(G + 2 * i), v(G + 1 + 2 * i))
    for i in range(8):
        k.emit("v_lshlrev_b32", v(G + 2 * i), 16, v(T1 + i))
        k.emit("v_and_b32", v(G + 1 + 2 * i), 0xFFFF0000, v(T1 + i))
    for i in range(16):
        k.emit("v_mul_f32", v(S + i), v(S + i), v(G + i))
    for i in range(8):
        k.emit("v_cvt_pk_bf16_f32", v(T0 + i), v(S + 2 * i), v(S + 1 + 2 * i))
    k.wait_vm(xid[1])
    for i in range(8):
        k.emit("v_lshlrev_b32", v(S + 2 * i), 16, v(T0 + i))
        k.emit("v_and_b32", v(S + 1 + 2 * i), 0xFFFF0000, v(T0 + i))
        k.emit("v_lshlrev_b32", v(G + 2 * i), 16, v(X + i))
        k.emit("v_and_b32", v(G + 1 + 2 * i), 0xFFFF0000, v(X + i))
    for i in range(16):
        k.emit("v_add_f32", v(S + i), v(S + i), v(G + i))
    for i in range(8):
        k.emit("v_cvt_pk_bf16_f32", v(T0 + i), v(S + 2 * i), v(S + 1 + 2 * i))
    for a in range(2):
        k.emit("buffer_store_dwordx4", v(T0 + 4 * a, 4), v(5), s(24, 4), s(48), mods="offen offset:%d" % (32 * a))
    k.label("L_g3_end")
    return k, 208, 90
```

```python
import os
import struct
import sys

sys.path.insert(0, os.path.dirname(os.path.abspath(__file__)))
from asmlib import Kern, v, s

NAME = "recurrent_scan__sliding_block_cached__geglu_ffn__prompt"
XN_OFF = 0
O_OFF = 2 << 20
H_OFF = 18 << 20
H_RGS = 88 * 1024
PART_OFF = 24 << 20
CNT_OFF = 23 << 20
LOG2E = 1.4426950408889634


def f32(x):
    return "0x%08x" % struct.unpack("<I", struct.pack("<f", x))[0]


def wave_allreduce_add(k, val, tmp):
    for x in (1, 2, 4, 8, 16):
        o = k.emit("ds_swizzle_b32", v(tmp), v(val), mods="offset:0x%04x" % ((x << 10) | 0x1F))
        k.wait_lg(o)
        k.emit("v_add_f32", v(val), v(val), v(tmp))
    k.emit("v_mov_b32", v(tmp), v(val))
    k.emit("v_permlane32_swap_b32", v(val), v(tmp))
    k.emit("v_add_f32", v(val), v(val), v(tmp))


def gen_ln():
    k = Kern("ln_kernel")
    k.emit("s_cmp_ge_u32", s(2), 512)
    k.emit("s_cbranch_scc1", "L_ln_end")
    k.emit("s_load_dwordx2", s(4, 2), s(0, 2), 0)
    k.emit("s_load_dwordx2", s(6, 2), s(0, 2), 88)
    k.emit("v_lshlrev_b32", v(1), 4, v(0))
    k.emit("s_lshl_b32", s(3), s(2), 12)
    k.raw("    s_waitcnt lgkmcnt(0)")
    k.srd(8, 4, 2048 * 1024)
    k.srd(12, 6, 2048 * 1024, add=XN_OFF)
    o = k.emit("buffer_load_dwordx4", v(44, 4), v(1), s(8, 4), s(3), mods="offen")
    if os.environ.get("PREF", "1") == "1":
        k.emit("s_load_dwordx2", s(24, 2), s(0, 2), 24)
        k.emit("s_load_dwordx4", s(28, 4), s(0, 2), 48)
        k.emit("v_lshrrev_b32", v(2), 6, v(0))
        k.emit("v_readfirstlane_b32", s(18), v(2))
        k.emit("v_and_b32", v(2), 63, v(0))
        k.emit("s_and_b32", s(19), s(2), 7)
        k.emit("s_lshl_b32", s(19), s(19), 2)
        k.emit("s_add_u32", s(19), s(19), s(18))
        k.emit("s_lshr_b32", s(26), s(2), 3)
        k.raw("    s_waitcnt lgkmcnt(0)")
        k.srd(40, 24, 4 << 20)
        k.srd(44, 28, 512 * 2752)
        k.srd(48, 30, 512 * 2752)
        k.emit("v_lshrrev_b32", v(5), 4, v(2))
        k.emit("v_and_b32", v(6), 15, v(2))
        k.emit("v_lshlrev_b32", v(6), 4, v(6))
        k.emit("v_lshl_add_u32", v(5), v(5), 13, v(6))
        k.emit("v_min_u32", v(6), 47, v(2))
        k.emit("v_mul_u32_u24", v(7), 43, v(6))
        k.emit("v_lshrrev_b32", v(7), 8, v(7))
        k.emit("v_mul_u32_u24", v(8), 6, v(7))
        k.emit("v_sub_u32", v(8), v(6), v(8))
        k.emit("v_mul_u32_u24", v(7), 2752, v(7))
        k.emit("v_lshrrev_b32", v(9), 1, v(8))
        k.emit("v_lshl_add_u32", v(7), v(9), 10, v(7))
        k.emit("v_and_b32", v(8), 1, v(8))
        k.emit("v_lshl_add_u32", v(7), v(8), 4, v(7))
        k.emit("s_lshl_b32", s(27), s(26), 16)
        k.emit("s_lshl_b32", s(52), s(19), 8)
        k.emit("s_add_u32", s(27), s(27), s(52))
        k.emit("buffer_load_dwordx4", v(28, 4), v(5), s(40, 4), s(27), mods="offen")
        k.emit("s_add_u32", s(27), s(27), 32768)
        k.emit("buffer_load_dwordx4", v(32, 4), v(5), s(40, 4), s(27), mods="offen")
        k.emit("s_mul_i32", s(27), s(26), 8 * 2752)
        k.emit("s_lshl_b32", s(52), s(19), 5)
        k.emit("s_add_u32", s(27), s(27), s(52))
        k.emit("buffer_load_dwordx4", v(36, 4), v(7), s(44, 4), s(27), mods="offen")
        k.emit("buffer_load_dwordx4", v(40, 4), v(7), s(48, 4), s(27), mods="offen")
    k.wait_vm(o)
    for i in range(4):
        k.emit("v_mov_b32", v(4 + i), v(44 + i))
    for i in range(4):
        k.emit("v_lshlrev_b32", v(8 + 2 * i), 16, v(4 + i))
        k.emit("v_and_b32", v(9 + 2 * i), 0xFFFF0000, v(4 + i))
    k.emit("v_add_f32", v(16), v(8), v(9))
    for i in range(2, 8):
        k.emit("v_add_f32", v(16), v(16), v(8 + i))
    wave_allreduce_add(k, 16, 17)
    k.emit("v_mul_f32", v(16), f32(1.0 / 512), v(16))
    k.emit("v_sub_f32", v(18), v(8), v(16))
    k.emit("v_mul_f32", v(19), v(18), v(18))
    for i in range(1, 8):
        k.emit("v_sub_f32", v(18), v(8 + i), v(16))
        k.emit("v_fmac_f32", v(19), v(18), v(18))
    wave_allreduce_add(k, 19, 17)
    k.emit("v_mul_f32", v(19), f32(1.0 / 512), v(19))
    k.emit("v_cvt_pk_bf16_f32", v(20), v(16), v(19))
    k.emit("v_lshlrev_b32", v(16), 16, v(20))
    k.emit("v_and_b32", v(19), 0xFFFF0000, v(20))
    k.emit("v_add_f32", v(19), f32(1e-5), v(19))
    k.emit("v_cvt_pk_bf16_f32", v(20), v(19), v(19))
    k.emit("v_lshlrev_b32", v(19), 16, v(20))
    k.emit("v_sqrt_f32", v(19), v(19))
    k.emit("v_cvt_pk_bf16_f32", v(20), v(19), v(19))
    k.emit("v_lshlrev_b32", v(19), 16, v(20))
    k.emit("v_rcp_f32", v(19), v(19))
    for i in range(4):
        k.emit("v_sub_f32", v(20), v(8 + 2 * i), v(16))
        k.emit("v_sub_f32", v(21), v(9 + 2 * i), v(16))
        k.emit("v_cvt_pk_bf16_f32", v(22), v(20), v(21))
        k.emit("v_lshlrev_b32", v(20), 16, v(22))
        k.emit("v_and_b32", v(21), 0xFFFF0000, v(22))
        k.emit("v_mul_f32", v(20), v(20), v(19))
        k.emit("v_mul_f32", v(21), v(21), v(19))
        k.emit("v_cvt_pk_bf16_f32", v(24 + i), v(20), v(21))
    k.emit("v_and_b32", v(2), 63, v(0))
    k.emit("v_lshrrev_b32", v(3), 1, v(2))
    k.emit("v_lshlrev_b32", v(3), 10, v(3))
    k.emit("v_and_b32", v(2), 1, v(2))
    k.emit("v_lshl_add_u32", v(3), v(2), 9, v(3))
    k.emit("v_lshrrev_b32", v(2), 6, v(0))
    k.emit("v_lshl_add_u32", v(3), v(2), 4, v(3))
    k.emit("s_lshr_b32", s(16), s(2), 3)
    k.emit("s_lshl_b32", s(16), s(16), 15)
    k.emit("s_and_b32", s(17), s(2), 7)
    k.emit("s_lshl_b32", s(17), s(17), 6)
    k.emit("s_add_u32", s(16), s(16), s(17))
    k.emit("buffer_store_dwordx4", v(24, 4), v(3), s(12, 4), s(16), mods="offen")
    k.emit("s_cmp_lg_u32", s(2), 0)
    k.emit("s_cbranch_scc1", "L_ln_end")
    k.srd(8, 6, 256, add=CNT_OFF)
    k.emit("v_lshlrev_b32", v(2), 2, v(0))
    k.emit("v_mov_b32", v(3), 0)
    k.emit("buffer_store_dword", v(3), v(2), s(8, 4), 0, mods="offen")
    k.label("L_ln_end")
    return k, 48, 56


def gen_fin():
    k = Kern("fin_kernel")
    k.emit("s_cmp_ge_u32", s(2), 512)
    k.emit("s_cbranch_scc1", "L_fin_end")
    k.emit("s_load_dwordx2", s(4, 2), s(0, 2), 0)
    k.emit("s_load_dwordx2", s(6, 2), s(0, 2), 72)
    k.emit("s_load_dwordx2", s(16, 2), s(0, 2), 88)
    k.emit("v_and_b32", v(1), 63, v(0))
    k.emit("v_lshrrev_b32", v(2), 6, v(0))
    k.emit("v_and_b32", v(3), 1, v(2))
    k.emit("v_lshrrev_b32", v(4), 1, v(2))
    k.emit("s_and_b32", s(20), s(2), 1)
    k.emit("s_lshr_b32", s(21), s(2), 1)
    k.emit("s_and_b32", s(21), s(21), 3)
    k.emit("s_lshr_b32", s(22), s(2), 3)
    k.emit("s_lshr_b32", s(23), s(2), 1)
    k.emit("s_lshl_b32", s(23), s(23), 14)
    k.emit("s_lshl_b32", s(24), s(20), 13)
    k.emit("s_add_u32", s(23), s(23), s(24))
    k.emit("v_lshlrev_b32", v(5), 12, v(4))
    k.emit("v_lshl_add_u32", v(5), v(3), 11, v(5))
    k.emit("v_lshl_add_u32", v(5), v(1), 4, v(5))
    k.emit("s_lshr_b32", s(25), s(22), 2)
    k.emit("s_and_b32", s(26), s(22), 3)
    k.emit("s_lshr_b32", s(27), s(21), 1)
    k.emit("s_and_b32", s(28), s(21), 1)
    k.emit("s_lshl_b32", s(25), s(25), 7)
    k.emit("s_lshl_b32", s(27), s(27), 6)
    k.emit("s_add_u32", s(25), s(25), s(27))
    k.emit("s_lshl_b32", s(25), s(25), 10)
    k.emit("s_lshl_b32", s(26), s(26), 7)
    k.emit("s_lshl_b32", s(28), s(28), 6)
    k.emit("s_add_u32", s(26), s(26), s(28))
    k.emit("s_lshl_b32", s(29), s(20), 5)
    k.emit("s_add_u32", s(26), s(26), s(29))
    k.emit("s_lshl_b32", s(26), s(26), 1)
    k.emit("s_add_u32", s(25), s(25), s(26))
    k.emit("v_and_b32", v(6), 31, v(1))
    k.emit("v_lshl_add_u32", v(6), v(4), 5, v(6))
    k.emit("v_lshlrev_b32", v(6), 10, v(6))
    k.emit("v_lshl_add_u32", v(6), v(3), 5, v(6))
    k.emit("v_lshrrev_b32", v(7), 5, v(1))
    k.emit("v_lshl_add_u32", v(6), v(7), 4, v(6))
    k.raw("    s_waitcnt lgkmcnt(0)")
    k.srd(8, 4, 2048 * 1024)
    k.srd(12, 6, 2048 * 1024)
    k.srd(32, 16, 16 << 20, add=PART_OFF)
    ids = []
    for sp in range(4):
        k.emit("s_add_u32", s(36 + sp), s(23), sp * (4 << 20))
    for sp in range(4):
        for j in range(2):
            ids.append(k.emit("buffer_load_dwordx4", v(8 + sp * 8 + 4 * j, 4), v(5), s(32, 4), s(36 + sp),
                              mods="offen offset:%d" % (1024 * j)))
    ox = k.emit("buffer_load_dwordx4", v(40, 4), v(6), s(8, 4), s(25), mods="offen")
    k.wait_vm(ids[5])
    for i in range(8):
        k.emit("v_add_f32", v(8 + i), v(8 + i), v(16 + i))
        k.emit("v_add_f32", v(8 + i), v(8 + i), v(24 + i))
    k.wait_vm(ids[7])
    for i in range(4):
        k.emit("v_cvt_pk_bf16_f32", v(44 + i), v(8 + 2 * i), v(9 + 2 * i))
        k.emit("v_cvt_pk_bf16_f32", v(48 + i), v(32 + 2 * i), v(33 + 2 * i))
    for i in range(4):
        k.emit("v_lshlrev_b32", v(8 + 2 * i), 16, v(44 + i))
        k.emit("v_and_b32", v(9 + 2 * i), 0xFFFF0000, v(44 + i))
        k.emit("v_lshlrev_b32", v(32 + 2 * i), 16, v(48 + i))
        k.emit("v_and_b32", v(33 + 2 * i), 0xFFFF0000, v(48 + i))
    for i in range(8):
        k.emit("v_mul_f32", v(16 + i), f32(-LOG2E), v(32 + i))
    for i in range(8):
        k.emit("v_exp_f32", v(16 + i), v(16 + i))
    for i in range(8):
        k.emit("v_add_f32", v(16 + i), 1.0, v(16 + i))
    for i in range(8):
        k.emit("v_rcp_f32", v(16 + i), v(16 + i))
    for i in range(8):
        k.emit("v_mul_f32", v(16 + i), v(16 + i), v(32 + i))
    for i in range(4):
        k.emit("v_cvt_pk_bf16_f32", v(48 + i), v(16 + 2 * i), v(17 + 2 * i))
    for i in range(4):
        k.emit("v_lshlrev_b32", v(16 + 2 * i), 16, v(48 + i))
        k.emit("v_and_b32", v(17 + 2 * i), 0xFFFF0000, v(48 + i))
    for i in range(8):
        k.emit("v_mul_f32", v(8 + i), v(8 + i), v(16 + i))
    for i in range(4):
        k.emit("v_cvt_pk_bf16_f32", v(44 + i), v(8 + 2 * i), v(9 + 2 * i))
    k.wait_vm(ox)
    for i in range(4):
        k.emit("v_lshlrev_b32", v(8 + 2 * i), 16, v(44 + i))
        k.emit("v_and_b32", v(9 + 2 * i), 0xFFFF0000, v(44 + i))
        k.emit("v_lshlrev_b32", v(16 + 2 * i), 16, v(40 + i))
        k.emit("v_and_b32", v(17 + 2 * i), 0xFFFF0000, v(40 + i))
    for i in range(8):
        k.emit("v_add_f32", v(8 + i), v(8 + i), v(16 + i))
    for i in range(4):
        k.emit("v_cvt_pk_bf16_f32", v(44 + i), v(8 + 2 * i), v(9 + 2 * i))
    k.emit("buffer_store_dwordx4", v(44, 4), v(6), s(12, 4), s(25), mods="offen")
    k.label("L_fin_end")
    return k, 52, 44


def fin_math(k, b, wait_s, wait_f, wait_x):
    S, P1, P2, F, X, T0, T1 = b, b + 8, b + 16, b + 24, b + 32, b + 36, b + 40
    k.wait_vm(wait_s)
    for i in range(8):
        k.emit("v_add_f32", v(S + i), v(S + i), v(P1 + i))
        k.emit("v_add_f32", v(S + i), v(S + i), v(P2 + i))
    k.wait_vm(wait_f)
    for i in range(4):
        k.emit("v_cvt_pk_bf16_f32", v(T0 + i), v(S + 2 * i), v(S + 1 + 2 * i))
        k.emit("v_cvt_pk_bf16_f32", v(T1 + i), v(F + 2 * i), v(F + 1 + 2 * i))
    for i in range(4):
        k.emit("v_lshlrev_b32", v(S + 2 * i), 16, v(T0 + i))
        k.emit("v_and_b32", v(S + 1 + 2 * i), 0xFFFF0000, v(T0 + i))
        k.emit("v_lshlrev_b32", v(F + 2 * i), 16, v(T1 + i))
        k.emit("v_and_b32", v(F + 1 + 2 * i), 0xFFFF0000, v(T1 + i))
    G = P1
    for i in range(8):
        k.emit("v_mul_f32", v(G + i), f32(-LOG2E), v(F + i))
    for i in range(8):
        k.emit("v_exp_f32", v(G + i), v(G + i))
    for i in range(8):
        k.emit("v_add_f32", v(G + i), 1.0, v(G + i))
    for i in range(8):
        k.emit("v_rcp_f32", v(G + i), v(G + i))
    for i in range(8):
        k.emit("v_mul_f32", v(G + i), v(G + i), v(F + i))
    for i in range(4):
        k.emit("v_cvt_pk_bf16_f32", v(T1 + i), v(G + 2 * i), v(G + 1 + 2 * i))
    for i in range(4):
        k.emit("v_lshlrev_b32", v(G + 2 * i), 16, v(T1 + i))
        k.emit("v_and_b32", v(G + 1 + 2 * i), 0xFFFF0000, v(T1 + i))
    for i in range(8):
        k.emit("v_mul_f32", v(S + i), v(S + i), v(G + i))
    for i in range(4):
        k.emit("v_cvt_pk_bf16_f32", v(T0 + i), v(S + 2 * i), v(S + 1 + 2 * i))
    k.wait_vm(wait_x)
    for i in range(4):
        k.emit("v_lshlrev_b32", v(S + 2 * i), 16, v(T0 + i))
        k.emit("v_and_b32", v(S + 1 + 2 * i), 0xFFFF0000, v(T0 + i))
        k.emit("v_lshlrev_b32", v(G + 2 * i), 16, v(X + i))
        k.emit("v_and_b32", v(G + 1 + 2 * i), 0xFFFF0000, v(X + i))
    for i in range(8):
        k.emit("v_add_f32", v(S + i), v(S + i), v(G + i))
    for i in range(4):
        k.emit("v_cvt_pk_bf16_f32", v(T0 + i), v(S + 2 * i), v(S + 1 + 2 * i))


def bs2_lane(k, dst, lane, tmp):
    k.emit("v_and_b32", v(tmp), 1, v(lane))
    k.emit("v_lshlrev_b32", v(dst), 4, v(tmp))
    k.emit("v_and_b32", v(tmp), 2, v(lane))
    k.emit("v_lshl_add_u32", v(dst), v(tmp), 2, v(dst))


def gen_gemm2():
    k = Kern("gemm2_kernel")
    SLOT = 32768
    NSLOT = 5
    k.emit("s_cmp_ge_u32", s(2), 256)
    k.emit("s_cbranch_scc1", "L_g2_end")
    k.emit("s_load_dwordx2", s(4, 2), s(0, 2), 32)
    k.emit("s_load_dwordx2", s(6, 2), s(0, 2), 64)
    k.emit("s_load_dwordx2", s(8, 2), s(0, 2), 88)
    k.emit("v_lshrrev_b32", v(1), 6, v(0))
    k.emit("v_and_b32", v(2), 63, v(0))
    k.emit("v_readfirstlane_b32", s(40), v(1))
    k.emit("s_lshr_b32", s(39), s(40), 2)
    k.emit("s_and_b32", s(40), s(40), 3)
    k.emit("s_and_b32", s(41), s(2), 3)
    k.emit("s_lshr_b32", s(42), s(2), 2)
    k.emit("s_and_b32", s(42), s(42), 1)
    k.emit("s_lshr_b32", s(43), s(2), 5)
    k.emit("s_lshl_b32", s(42), s(42), 3)
    k.emit("s_add_u32", s(42), s(42), s(43))
    k.emit("s_lshr_b32", s(43), s(2), 3)
    k.emit("s_and_b32", s(43), s(43), 3)
    k.emit("s_mov_b32", s(44), 0)
    k.emit("s_mov_b32", s(45), 22)
    k.emit("s_cmp_eq_u32", s(41), 1)
    k.emit("s_cselect_b32", s(44), 1408, s(44))
    k.emit("s_cselect_b32", s(45), 21, s(45))
    k.emit("s_cmp_eq_u32", s(41), 2)
    k.emit("s_cselect_b32", s(44), 2752, s(44))
    k.emit("s_cselect_b32", s(45), 21, s(45))
    k.emit("s_mov_b32", s(46), 262144)
    k.emit("s_mov_b32", s(47), O_OFF)
    k.emit("s_cmp_eq_u32", s(41), 3)
    k.emit("s_cselect_b32", s(46), H_RGS, s(46))
    k.emit("s_cselect_b32", s(47), H_OFF, s(47))
    k.emit("s_mul_i32", s(48), s(42), s(46))
    k.emit("s_lshl_b32", s(48), s(48), 2)
    k.emit("s_add_u32", s(47), s(47), s(48))
    k.emit("s_lshl_b32", s(48), s(44), 6)
    k.emit("s_add_u32", s(47), s(47), s(48))
    k.emit("s_lshl_b32", s(49), s(44), 10)
    k.emit("s_lshl_b32", s(48), s(43), 8)
    k.emit("s_add_u32", s(49), s(49), s(48))
    k.raw("    s_waitcnt lgkmcnt(0)")
    k.emit("s_mov_b32", s(50), 4096 * 1024)
    k.emit("s_cmp_eq_u32", s(41), 3)
    k.emit("s_cselect_b32", s(4), s(6), s(4))
    k.emit("s_cselect_b32", s(5), s(7), s(5))
    k.emit("s_cselect_b32", s(50), 1376 * 1024, s(50))
    k.emit("s_sub_u32", s(50), s(50), s(49))
    k.emit("s_add_u32", s(12), s(8), s(47))
    k.emit("s_addc_u32", s(13), s(9), 0)
    k.emit("s_and_b32", s(13), s(13), 0xFFFF)
    k.emit("s_lshl_b32", s(51), s(46), 2)
    k.emit("s_mov_b32", s(14), s(51))
    k.emit("s_mov_b32", s(15), 0x00020000)
    k.emit("s_add_u32", s(16), s(4), s(49))
    k.emit("s_addc_u32", s(17), s(5), 0)
    k.emit("s_and_b32", s(17), s(17), 0xFFFF)
    k.emit("s_mov_b32", s(18), s(50))
    k.emit("s_mov_b32", s(19), 0x00020000)
    k.srd(20, 8, 16 << 20, add=PART_OFF)
    k.emit("v_lshlrev_b32", v(3), 4, v(2))
    k.emit("v_lshrrev_b32", v(4), 4, v(2))
    k.emit("v_bfe_u32", v(5), v(2), 2, 2)
    k.emit("v_xor_b32", v(5), v(5), v(4))
    k.emit("v_lshlrev_b32", v(5), 6, v(5))
    k.emit("v_lshl_add_u32", v(5), v(4), 10, v(5))
    k.emit("v_and_b32", v(4), 3, v(2))
    k.emit("v_lshl_add_u32", v(6), v(4), 4, v(5))
    for i in range(4):
        k.emit("s_add_u32", s(53), s(40), 4 * i)
        k.emit("s_mul_i32", s(56 + i), s(40), s(46))
        k.emit("s_add_u32", s(56 + i), s(56 + i), 1024 * i)
        k.emit("s_lshl_b32", s(60 + i), s(53), 12)
    k.emit("s_lshl_b32", s(64), s(40), 10)
    k.emit("s_lshl_b32", s(82), s(40), 12)
    k.emit("s_mov_b32", s(65), 0)
    k.emit("s_mov_b32", s(66), 0)

    ROT = int(os.environ.get("ROT", "1"))
    k.emit("s_lshr_b32", s(84), s(2), 3)
    k.emit("s_mul_i32", s(84), s(84), ROT)
    for _ in range(12):
        k.emit("s_cmp_ge_u32", s(84), s(45))
        k.emit("s_cselect_b32", s(85), s(45), 0)
        k.emit("s_sub_u32", s(84), s(84), s(85))

    def issue_dma():
        k.emit("s_cmp_lt_u32", s(65), s(45))
        k.emit("s_cselect_b32", s(14), s(51), 0)
        k.emit("s_cselect_b32", s(18), s(50), 0)
        if os.environ.get("NOACT") == "1":
            k.emit("s_mov_b32", s(14), 0)
        if os.environ.get("NOWT") == "1":
            k.emit("s_mov_b32", s(18), 0)
        k.emit("s_add_u32", s(67), s(66), s(64))
        k.emit("s_add_u32", s(83), s(66), s(82))
        k.emit("s_lshl_b32", s(85), s(84), 12)
        k.emit("s_lshl_b32", s(86), s(84), 16)
        for i in range(8 if os.environ.get("NODMA") != "1" else 0):
            if i < 4:
                k.emit("s_add_u32", "m0", s(83), 1024 * i)
                k.emit("s_add_u32", s(87), s(56 + i), s(85))
                k.emit("buffer_load_dwordx4", v(3), s(12, 4), s(87), mods="offen lds")
            else:
                k.emit("s_add_u32", "m0", s(67), 4096 * i)
                k.emit("s_add_u32", s(87), s(56 + i), s(86))
                k.emit("buffer_load_dwordx4", v(6), s(16, 4), s(87), mods="offen lds")
        k.emit("s_add_u32", s(65), s(65), 1)
        k.emit("s_add_u32", s(84), s(84), 1)
        k.emit("s_cmp_eq_u32", s(84), s(45))
        k.emit("s_cselect_b32", s(84), 0, s(84))
        k.emit("s_add_u32", s(66), s(66), SLOT)
        k.emit("s_cmp_eq_u32", s(66), SLOT * NSLOT)
        k.emit("s_cselect_b32", s(66), 0, s(66))

    k.emit("s_cmp_eq_u32", s(39), 0)
    k.emit("s_cbranch_scc1", "L_g2_compute")
    for i in range(4):
        issue_dma()
    k.raw("    s_waitcnt vmcnt(24)")
    k.emit("s_barrier")
    k.emit("s_mov_b32", s(78), 0)
    k.label("L_g2_lloop")
    k.raw("    s_waitcnt vmcnt(16)")
    k.emit("s_barrier")
    issue_dma()
    k.emit("s_add_u32", s(78), s(78), 1)
    k.emit("s_cmp_lt_u32", s(78), s(45))
    k.emit("s_cbranch_scc1", "L_g2_lloop")
    k.raw("    s_waitcnt vmcnt(0)")
    k.emit("s_endpgm")
    k.label("L_g2_compute")
    k.emit("s_lshr_b32", s(68), s(40), 1)
    k.emit("s_and_b32", s(69), s(40), 1)
    k.emit("v_lshrrev_b32", v(7), 5, v(2))
    k.emit("s_lshl_b32", s(53), s(68), 13)
    k.emit("v_lshl_add_u32", v(8), v(2), 4, s(53))
    k.emit("v_bfe_u32", v(4), v(2), 2, 2)
    k.emit("v_lshl_add_u32", v(5), v(7), 3, v(4))
    k.emit("v_lshlrev_b32", v(5), 8, v(5))
    k.emit("v_add_u32", v(5), 16384, v(5))
    k.emit("v_bfe_u32", v(14), v(2), 4, 1)
    k.emit("v_lshl_add_u32", v(5), v(14), 5, v(5))
    bs2_lane(k, 14, 2, 15)
    k.emit("v_add_u32", v(5), v(5), v(14))
    k.emit("s_lshl_b32", s(53), s(69), 1)
    for tn in range(2):
        k.emit("s_add_u32", s(54), s(53), tn)
        k.emit("v_xor_b32", v(14), s(54), v(4))
        k.emit("v_lshl_add_u32", v(12 + tn), v(14), 6, v(5))
    ACC = 80
    for i in range(64):
        k.emit("v_mov_b32", v(ACC + i), 0)

    def reads(t, fs):
        base = 16 + 16 * fs
        for tn in range(2):
            for u in range(2):
                k.emit("ds_read_b64_tr_b16", v(base + 4 * tn + 2 * u, 2), v(12 + tn),
                       mods="offset:%d" % ((16 * t + 4 * u) * 256))
        for tm in range(2):
            k.emit("ds_read_b128", v(base + 8 + 4 * tm, 4), v(8), mods="offset:%d" % (4096 * tm + 1024 * t))

    def mfmas(fs):
        base = 16 + 16 * fs
        for tn in range(2):
            for tm in range(2):
                a = ACC + 16 * (tn * 2 + tm)
                k.emit("v_mfma_f32_32x32x16_bf16", v(a, 16), v(base + 4 * tn, 4), v(base + 8 + 4 * tm, 4), v(a, 16))

    STAMP = os.environ.get("STAMP2", "0") == "1"

    def stamp(idx):
        if STAMP:
            k.raw("    s_memtime s[98:99]" if os.environ.get("REALTIME") != "1" else "    s_memrealtime s[98:99]")
            k.raw("    s_waitcnt lgkmcnt(0)")
            k.emit("s_mov_b32", s(idx), s(98))

    stamp(90)
    k.emit("s_barrier")
    stamp(91)
    reads(0, 0)
    reads(1, 1)
    k.emit("s_mov_b32", s(78), 0)
    k.emit("s_mov_b32", s(79), 0)
    k.emit("s_mov_b32", s(81), SLOT)
    k.label("L_g2_loop")

    def read_ops(t, fs):
        base = 16 + 16 * fs
        ops = []
        for tn in range(2):
            for u in range(2):
                ops.append(lambda tn=tn, u=u: k.emit("ds_read_b64_tr_b16", v(base + 4 * tn + 2 * u, 2), v(12 + tn),
                                                     mods="offset:%d" % ((16 * t + 4 * u) * 256)))
        for tm in range(2):
            ops.append(lambda tm=tm: k.emit("ds_read_b128", v(base + 8 + 4 * tm, 4), v(8),
                                            mods="offset:%d" % (4096 * tm + 1024 * t)))
        return ops

    def step(fs, rops):
        base = 16 + 16 * fs
        k.raw("    s_waitcnt lgkmcnt(6)")
        n = 0
        for tn in range(2):
            for tm in range(2):
                a = ACC + 16 * (tn * 2 + tm)
                k.emit("v_mfma_f32_32x32x16_bf16", v(a, 16), v(base + 4 * tn, 4), v(base + 8 + 4 * tm, 4), v(a, 16))
                for _ in range(2 if n < 2 else 1):
                    rops.pop(0)()
                n += 1

    step(0, read_ops(2, 2))
    step(1, read_ops(3, 3))
    k.emit("s_barrier")
    k.emit("s_add_u32", s(79), s(79), SLOT)
    k.emit("s_cmp_eq_u32", s(79), SLOT * NSLOT)
    k.emit("s_cselect_b32", s(79), 0, s(79))
    k.emit("s_cselect_b32", s(80), -SLOT * (NSLOT - 1) & 0xFFFFFFFF, s(81))
    for r in (8, 12, 13):
        k.emit("v_add_u32", v(r), s(80), v(r))
    step(2, read_ops(0, 0))
    step(3, read_ops(1, 1))
    k.emit("s_add_u32", s(78), s(78), 1)
    k.emit("s_cmp_lt_u32", s(78), s(45))
    k.emit("s_cbranch_scc1", "L_g2_loop")
    k.lgq = []
    k.vmq = []
    stamp(92)
    k.nop(16)
    k.emit("s_lshl_b32", s(53), s(41), 6)
    k.emit("s_lshl_b32", s(54), s(42), 2)
    k.emit("s_add_u32", s(53), s(53), s(54))
    k.emit("s_add_u32", s(53), s(53), s(43))
    k.emit("s_lshl_b32", s(53), s(53), 2)
    k.emit("s_add_u32", s(53), s(53), s(40))
    k.emit("s_lshl_b32", s(53), s(53), 14)
    k.emit("v_lshlrev_b32", v(4), 4, v(2))
    FUSE = os.environ.get("FUSE", "0") == "1"
    if not FUSE:
        for q in range(16):
            if q % 4 == 0 and q:
                k.emit("s_add_u32", s(53), s(53), 4096)
            k.emit("buffer_store_dwordx4", v(ACC + 4 * q, 4), v(4), s(20, 4), s(53),
                   mods="offen offset:%d" % (1024 * (q % 4)))
        k.raw("    s_waitcnt vmcnt(0)")
    if FUSE:
        for q in range(16):
            if q % 4 == 0 and q:
                k.emit("s_add_u32", s(53), s(53), 4096)
            k.emit("buffer_store_dwordx4", v(ACC + 4 * q, 4), v(4), s(20, 4), s(53),
                   mods="offen offset:%d sc1" % (1024 * (q % 4)))
        k.wait_vm0()
        k.emit("s_barrier")
        k.emit("s_load_dwordx2", s(4, 2), s(0, 2), 0)
        k.emit("s_load_dwordx2", s(6, 2), s(0, 2), 72)
        k.srd(24, 8, 256, add=CNT_OFF)
        k.emit("s_lshl_b32", s(54), s(42), 2)
        k.emit("s_add_u32", s(54), s(54), s(43))
        k.emit("s_lshl_b32", s(55), s(54), 2)
        k.emit("v_mov_b32", v(5), 1)
        k.emit("v_mov_b32", v(7), 0)
        k.emit("s_cmp_lg_u32", s(40), 0)
        k.emit("s_cbranch_scc1", "L_g2_noatom")
        k.raw("    s_mov_b64 exec, 1")
        k.raw("    buffer_atomic_add v5, v7, s[24:27], s55 offen sc0 sc1")
        k.raw("    s_waitcnt vmcnt(0)")
        k.raw("    ds_write_b32 v7, v5")
        k.raw("    s_waitcnt lgkmcnt(0)")
        k.raw("    s_mov_b64 exec, -1")
        k.label("L_g2_noatom")
        k.emit("s_barrier")
        k.raw("    ds_read_b32 v5, v7")
        k.raw("    s_waitcnt lgkmcnt(0)")
        k.nop(2)
        k.emit("v_readfirstlane_b32", s(55), v(5))
        k.nop(4)
        k.emit("s_cmp_lg_u32", s(55), 3)
        k.emit("s_cbranch_scc1", "L_g2_end")
        k.srd(28, 4, 2048 * 1024)
        k.srd(32, 6, 2048 * 1024)
        k.emit("s_lshl_b32", s(53), s(54), 2)
        k.emit("s_add_u32", s(53), s(53), s(40))
        k.emit("s_lshl_b32", s(53), s(53), 14)
        k.emit("s_lshl_b32", s(56), s(42), 7)
        k.emit("s_lshl_b32", s(57), s(68), 6)
        k.emit("s_add_u32", s(56), s(56), s(57))
        k.emit("s_lshl_b32", s(56), s(56), 10)
        k.emit("s_lshl_b32", s(57), s(43), 8)
        k.emit("s_add_u32", s(56), s(56), s(57))
        k.emit("s_lshl_b32", s(57), s(69), 7)
        k.emit("s_add_u32", s(56), s(56), s(57))
        k.emit("v_and_b32", v(5), 31, v(2))
        k.emit("v_lshlrev_b32", v(5), 10, v(5))
        k.emit("v_lshrrev_b32", v(7), 5, v(2))
        k.emit("v_lshl_add_u32", v(5), v(7), 4, v(5))
        for half in range(2):
            info = []
            for g in range(4):
                tm, a = divmod(g, 2)
                b = 16 + 44 * g
                q0 = (half * 2 + tm) * 4 + 2 * a
                ids = []
                for sp in range(4):
                    k.emit("s_add_u32", s(58), s(53), sp * (4 << 20) + (q0 // 4) * 4096)
                    for j in range(2):
                        ids.append(k.emit("buffer_load_dwordx4", v(b + sp * 8 + 4 * j, 4), v(4), s(20, 4), s(58),
                                          mods="offen offset:%d sc1" % (1024 * ((q0 % 4) + j))))
                k.emit("s_add_u32", s(60 + g), s(56), tm * 32768 + half * 64 + a * 32)
                ox = k.emit("buffer_load_dwordx4", v(b + 32, 4), v(5), s(28, 4), s(60 + g), mods="offen")
                info.append((b, ids[5], ids[7], ox))
            for g in range(4):
                b, ws_, wf_, wx_ = info[g]
                fin_math(k, b, ws_, wf_, wx_)
                k.emit("buffer_store_dwordx4", v(b + 36, 4), v(5), s(32, 4), s(60 + g), mods="offen")
        k.raw("    s_waitcnt vmcnt(0)")
    if STAMP:
        stamp(93)
        k.srd(20, 8, 1 << 20, add=61 << 20)
        k.emit("s_lshl_b32", s(57), s(2), 2)
        k.emit("s_add_u32", s(57), s(57), s(40))
        k.emit("s_lshl_b32", s(57), s(57), 4)
        k.emit("v_mov_b32", v(4), 0)
        for i in range(4):
            k.emit("v_mov_b32", v(5), s(90 + i))
            k.emit("buffer_store_dword", v(5), v(4), s(20, 4), s(57), mods="offen offset:%d" % (4 * i))
    k.label("L_g2_end")
    return k, 192, 100


from gen_attn import gen_attn


def main():
    ks = []
    launches = []
    k, nv, ns = gen_ln()
    ks.append((k, nv, ns))
    launches.append("; @launch kernel=ln_kernel grid=(512,1,1) block=(256,1,1) lds=0")
    k, nv, ns = gen_attn()
    ks.append((k, nv, ns))
    launches.append("; @launch kernel=attn_kernel grid=(256,1,1) block=(512,1,1) lds=163840")
    G3 = os.environ.get("G3", "0") == "1"
    if G3:
        from gen_g3 import gen_g3
        k, nv, ns = gen_g3()
        ks.append((k, nv, ns))
        launches.append("; @launch kernel=outp_kernel grid=(256,1,1) block=(512,1,1) lds=163840")
    else:
        k, nv, ns = gen_gemm2()
        ks.append((k, nv, ns))
        launches.append("; @launch kernel=gemm2_kernel grid=(256,1,1) block=(512,1,1) lds=163840")
    if os.environ.get("FUSE", "0") != "1" and not G3:
        k, nv, ns = gen_fin()
        ks.append((k, nv, ns))
        launches.append("; @launch kernel=fin_kernel grid=(512,1,1) block=(256,1,1) lds=0")
    out = []
    out.extend(launches)
    out.append('.amdgcn_target "amdgcn-amd-amdhsa--gfx950"')
    out.append(".text")
    descs = []
    for k, nv, ns in ks:
        assert k.maxv < nv, (k.name, k.maxv, nv)
        body, desc = k.text(nv, ns)
        out.append(body)
        descs.append(desc)
        print(k.name, "maxv", k.maxv, k.count, file=sys.stderr)
    out.append('.section .rodata,"a"')
    out.extend(descs)
    path = os.path.join(os.path.dirname(os.path.abspath(__file__)), "..", "cdna_kernels", NAME + ".s")
    with open(path, "w") as f:
        f.write("\n".join(out) + "\n")


if __name__ == "__main__":
    main()
```

```python
import struct
from asmlib import Kern, v, s

XN_OFF = 0
O_OFF = 2 << 20
H_OFF = 18 << 20
H_RGS = 88 * 1024
LOG2E = 1.4426950408889634
SLOT = 32768
NSLOT = 5
G_REG = 16384
U_REG = 22656


def f32(x):
    return "0x%08x" % struct.unpack("<I", struct.pack("<f", x))[0]


import os
STAMP = os.environ.get("STAMP", "0") == "1"


def gen_attn():
    k = Kern("attn_kernel")
    stamps = []

    def stamp(name):
        if not STAMP:
            return
        i = len(stamps)
        stamps.append(name)
        k.raw("    s_memtime s[98:99]" if os.environ.get("REALTIME") != "1" else "    s_memrealtime s[98:99]")
        k.wait_lg0()
        k.emit("s_mov_b32", s(66 + i), s(98))

    def rawi(text):
        k.raw("    " + text)
        k.pos += 1

    k.emit("s_cmp_ge_u32", s(2), 256)
    k.emit("s_cbranch_scc1", "L_at_end")
    k.emit("s_load_dwordx4", s(4, 4), s(0, 2), 8)
    k.emit("s_load_dwordx2", s(8, 2), s(0, 2), 24)
    k.emit("s_load_dwordx4", s(12, 4), s(0, 2), 48)
    k.emit("s_load_dwordx2", s(10, 2), s(0, 2), 88)
    k.emit("s_load_dwordx2", s(96, 2), s(0, 2), 32)
    k.emit("s_load_dwordx2", s(98, 2), s(0, 2), 64)
    LANE, VX, VW, VG, VK, VV, T0, VA, VF, T1, T2, T3 = 1, 2, 3, 4, 5, 6, 7, 8, 12, 13, 14, 15
    k.emit("v_lshrrev_b32", v(T0), 6, v(0))
    k.emit("v_and_b32", v(LANE), 63, v(0))
    k.emit("v_readfirstlane_b32", s(48), v(T0))
    MAP = os.environ.get("MAP", "0")
    if MAP == "0":
        k.emit("s_and_b32", s(49), s(2), 7)
        k.emit("s_lshl_b32", s(49), s(49), 2)
        k.emit("s_lshr_b32", s(51), s(2), 3)
        k.emit("s_and_b32", s(51), s(51), 3)
        k.emit("s_add_u32", s(49), s(49), s(51))
        k.emit("s_lshr_b32", s(50), s(2), 5)
    elif MAP == "1":
        k.emit("s_and_b32", s(50), s(2), 7)
        k.emit("s_lshr_b32", s(49), s(2), 3)
    elif MAP == "2":
        k.emit("s_and_b32", s(49), s(2), 1)
        k.emit("s_lshl_b32", s(49), s(49), 4)
        k.emit("s_lshr_b32", s(51), s(2), 3)
        k.emit("s_and_b32", s(51), s(51), 15)
        k.emit("s_add_u32", s(49), s(49), s(51))
        k.emit("s_lshr_b32", s(50), s(2), 1)
        k.emit("s_and_b32", s(50), s(50), 3)
        k.emit("s_lshl_b32", s(50), s(50), 1)
        k.emit("s_lshr_b32", s(51), s(2), 7)
        k.emit("s_add_u32", s(50), s(50), s(51))
    SW1024, SW2048, SW65536, SW768, SW22016 = 52, 53, 54, 55, 56
    k.emit("s_lshl_b32", s(SW1024), s(48), 10)
    k.emit("s_lshl_b32", s(SW2048), s(48), 11)
    k.emit("s_lshl_b32", s(SW65536), s(48), 16)
    k.emit("s_mul_i32", s(SW768), s(48), 768)
    k.emit("s_mul_i32", s(SW22016), s(48), 22016)
    k.raw("    s_waitcnt lgkmcnt(0)")

    def srd_dyn(d, base, off_s, nrec_s=None, nrec=None, add=0):
        k.emit("s_add_u32", s(d), s(base), s(off_s))
        k.emit("s_addc_u32", s(d + 1), s(base + 1), 0)
        if add:
            k.emit("s_add_u32", s(d), s(d), add)
            k.emit("s_addc_u32", s(d + 1), s(d + 1), 0)
        k.emit("s_and_b32", s(d + 1), s(d + 1), 0xFFFF)
        if nrec_s is not None:
            k.emit("s_mov_b32", s(d + 2), s(nrec_s))
        else:
            k.emit("s_mov_b32", s(d + 2), nrec)
        k.emit("s_mov_b32", s(d + 3), 0x00020000)

    XN, WQ, GS, US, KS, VS, OS, HS = 16, 20, 24, 28, 32, 36, 40, 44
    k.emit("s_lshl_b32", s(57), s(50), 18)
    srd_dyn(XN, 10, 57, nrec=256 * 1024, add=XN_OFF)
    k.emit("s_lshl_b32", s(57), s(49), 8)
    k.emit("s_sub_u32", s(58), 4 << 20, s(57))
    srd_dyn(WQ, 8, 57, nrec_s=58)
    k.emit("s_lshl_b32", s(59), s(49), 5)
    SH32 = 59
    k.emit("s_sub_u32", s(58), 512 * 2752, s(SH32))
    srd_dyn(GS, 12, SH32, nrec_s=58)
    srd_dyn(US, 14, SH32, nrec_s=58)
    k.emit("s_lshl_b32", s(58), s(49), 19)
    srd_dyn(KS, 4, 58, nrec=131072, add=1536 * 256)
    srd_dyn(VS, 6, 58, nrec=131072, add=1536 * 256)
    k.emit("s_lshl_b32", s(58), s(50), 21)
    k.emit("s_lshl_b32", s(57), s(49), 13)
    k.emit("s_add_u32", s(58), s(58), s(57))
    k.emit("s_sub_u32", s(60), 8 * 262144, s(57))
    srd_dyn(OS, 10, 58, nrec_s=60, add=O_OFF)
    k.emit("s_mul_i32", s(58), s(50), 8 * H_RGS)
    srd_dyn(HS, 10, 58, nrec=8 * H_RGS, add=H_OFF)

    k.emit("s_and_b32", s(57), s(2), 3)
    k.emit("s_mul_i32", s(58), s(57), 1376 * 1024)
    k.emit("s_add_u32", s(4), s(96), s(58))
    k.emit("s_addc_u32", s(5), s(97), 0)
    k.emit("s_sub_u32", s(6), 4096 * 1024, s(58))
    k.emit("s_cmp_eq_u32", s(57), 3)
    k.emit("s_cselect_b32", s(4), s(98), s(4))
    k.emit("s_cselect_b32", s(5), s(99), s(5))
    k.emit("s_cselect_b32", s(6), 1376 * 1024, s(6))
    k.emit("s_and_b32", s(5), s(5), 0xFFFF)
    k.emit("s_mov_b32", s(7), 0x00020000)
    k.emit("s_lshr_b32", s(58), s(2), 3)
    k.emit("s_lshl_b32", s(58), s(58), 3)
    k.emit("s_add_u32", s(58), s(58), s(48))
    k.emit("s_mul_i32", s(97), s(58), 5632)
    HH = T3
    k.emit("v_lshrrev_b32", v(HH), 5, v(LANE))
    k.emit("s_lshl_b32", s(57), s(48), 15)
    k.emit("v_lshl_add_u32", v(VX), v(LANE), 4, s(57))
    k.emit("v_lshrrev_b32", v(T0), 4, v(LANE))
    k.emit("v_bfe_u32", v(T1), v(LANE), 2, 2)
    k.emit("v_xor_b32", v(T1), v(T1), v(T0))
    k.emit("v_lshlrev_b32", v(T1), 6, v(T1))
    k.emit("v_and_b32", v(T2), 3, v(LANE))
    k.emit("v_lshl_add_u32", v(T1), v(T2), 4, v(T1))
    k.emit("v_lshl_add_u32", v(VW), v(T0), 13, v(T1))
    k.emit("v_lshl_add_u32", v(VV), v(T0), 8, v(T1))
    k.emit("s_and_b32", s(57), s(48), 3)
    k.emit("s_lshl_b32", s(57), s(57), 2)
    k.emit("v_add_u32", v(T1), s(57), v(T0))
    k.emit("v_and_b32", v(T2), 15, v(LANE))
    k.emit("v_xor_b32", v(T1), v(T1), v(T2))
    k.emit("v_lshlrev_b32", v(T1), 4, v(T1))
    k.emit("v_lshl_add_u32", v(VK), v(T0), 8, v(T1))
    k.emit("v_mul_u32_u24", v(T0), 43, v(LANE))
    k.emit("v_lshrrev_b32", v(T0), 8, v(T0))
    k.emit("v_mul_u32_u24", v(T1), 6, v(T0))
    k.emit("v_sub_u32", v(T1), v(LANE), v(T1))
    k.emit("v_mul_u32_u24", v(T0), 2752, v(T0))
    k.emit("v_lshrrev_b32", v(T2), 1, v(T1))
    k.emit("v_lshl_add_u32", v(T0), v(T2), 10, v(T0))
    k.emit("v_and_b32", v(T1), 1, v(T1))
    k.emit("v_lshl_add_u32", v(VG), v(T1), 4, v(T0))
    k.emit("v_bfe_u32", v(T0), v(LANE), 2, 2)
    k.emit("v_and_b32", v(T2), 1, v(LANE))
    k.emit("v_lshlrev_b32", v(T1), 4, v(T2))
    k.emit("v_and_b32", v(T2), 2, v(LANE))
    k.emit("v_lshl_add_u32", v(T1), v(T2), 2, v(T1))
    k.emit("v_bfe_u32", v(T2), v(LANE), 4, 1)
    k.emit("v_lshl_add_u32", v(T1), v(T2), 5, v(T1))
    k.emit("v_mul_u32_u24", v(VF), U_REG - G_REG - 32, v(T2))
    k.emit("v_add_u32", v(VF), v(VF), v(T1))
    k.emit("v_lshl_add_u32", v(T2), v(HH), 3, v(T0))
    k.emit("v_mul_u32_u24", v(T2), 96, v(T2))
    k.emit("v_add_u32", v(VF), v(VF), v(T2))
    k.emit("v_add_u32", v(VF), G_REG, v(VF))
    k.emit("v_lshl_add_u32", v(T2), v(HH), 3, v(T0))
    k.emit("v_lshl_add_u32", v(T1), v(T2), 8, v(T1))
    for dt in range(4):
        k.emit("v_xor_b32", v(T2), dt, v(T0))
        k.emit("v_lshl_add_u32", v(VA + dt), v(T2), 6, v(T1))

    ACCQ, ACCF, XF, WF = 16, 80, 128, 176
    QF, SACC, PP, KF, KA = 224, 80, 112, 128, 208
    OACC, VFR, TMP = 16, 160, 192
    MT, MREF, NM, NM1, SUM0, SUM1, FF, FT, THR = 216, 217, 218, 219, 220, 221, 222, 223, 0

    dma_last = {}
    xn_last = {}
    SR8, SR4 = 90, 91
    k.emit("s_and_b32", s(SR8), s(49), 3)
    k.emit("s_lshl_b32", s(SR8), s(SR8), 1)
    k.emit("s_add_u32", s(SR8), s(SR8), s(50))
    k.emit("s_add_u32", s(SR4), s(49), s(50))
    if os.environ.get("AROT", "1") == "0":
        k.emit("s_mov_b32", s(SR8), 0)
        k.emit("s_mov_b32", s(SR4), 0)

    pend_vm = []

    def dma_ops(st):
        ops = []
        if st > 15:
            return ops
        slot = (st % NSLOT) * SLOT
        if st < 8:
            def wq(j):
                if j == 0:
                    k.emit("s_add_u32", s(92), s(SR8), st)
                    k.emit("s_and_b32", s(92), s(92), 7)
                    k.emit("s_lshl_b32", s(93), s(92), 19)
                    k.emit("s_add_u32", s(93), s(93), s(SW65536))
                k.emit("s_add_u32", "m0", s(SW2048), slot + 1024 * j)
                k.emit("s_add_u32", s(61), s(93), j * 32768)
                k.emit("buffer_load_dwordx4", v(VW), s(WQ, 4), s(61), mods="offen lds")

            def gu(which):
                rawi("s_mov_b32 exec_hi, 0xffff")
                k.emit("s_add_u32", "m0", s(SW768), slot + (G_REG if which == 0 else U_REG))
                k.emit("s_mul_i32", s(61), s(92), 64 * 2752)
                k.emit("s_add_u32", s(61), s(61), s(SW22016))
                oid = k.emit("buffer_load_dwordx4", v(VG), s(GS if which == 0 else US, 4), s(61), mods="offen lds")
                rawi("s_mov_b32 exec_hi, -1")
                dma_last[st] = oid

            ops = [lambda: wq(0), lambda: wq(1), lambda: gu(0), lambda: gu(1)]
        else:
            j = st - 8

            def kv(i):
                if i == 0:
                    k.emit("s_add_u32", s(92), s(SR4), j)
                    k.emit("s_and_b32", s(92), s(92), 7)
                    k.emit("s_lshl_b32", s(92), s(92), 14)
                    k.emit("s_add_u32", s(92), s(92), s(SW1024))
                srd, vo = (KS, VK) if i < 2 else (VS, VV)
                k.emit("s_add_u32", "m0", s(SW1024), slot + 8192 * i)
                k.emit("s_add_u32", s(61), s(92), (i & 1) * 8192)
                oid = k.emit("buffer_load_dwordx4", v(vo), s(srd, 4), s(61), mods="offen lds")
                dma_last[st] = oid

            ops = [lambda i=i: kv(i) for i in range(4)]
        return ops

    def xn_ops(st):
        if st > 7:
            return []
        base = XF + 16 * (st % 3)

        def one(t):
            if t == 0:
                k.emit("s_add_u32", s(65), s(SR8), st)
                k.emit("s_and_b32", s(65), s(65), 7)
                k.emit("s_lshl_b32", s(65), s(65), 12)
            oid = k.emit("buffer_load_dwordx4", v(base + 4 * t, 4), v(VX), s(XN, 4), s(65),
                         mods="offen offset:%d" % (1024 * t))
            xn_last[st] = oid

        return [lambda t=t: one(t) for t in range(4)]

    def dma_stage(st):
        for op in dma_ops(st):
            op()

    def xn_loads(st):
        for op in xn_ops(st):
            op()

    def pump(n=1):
        for _ in range(n):
            if pend_vm:
                pend_vm.pop(0)()

    def flush_vm():
        while pend_vm:
            pend_vm.pop(0)()

    state = {"ready": -1}

    def ensure_stage(st, addr_regs):
        assert st == state["ready"] + 1
        flush_vm()
        k.wait_vm(dma_last[st])
        k.emit("s_barrier")
        stamp("B%d" % st)
        state["ready"] = st
        if st > 0 and addr_regs:
            delta = ((st % NSLOT) - ((st - 1) % NSLOT)) * SLOT
            for r in addr_regs:
                k.emit("v_add_u32", v(r), delta & 0xFFFFFFFF, v(r))
        if st >= 1:
            pend_vm.extend(xn_ops(st + 1))
            pend_vm.extend(dma_ops(st + 3))

    stamp("start")
    P1A = [VA, VA + 1, VA + 2, VA + 3, VF]
    PRO = os.environ.get("PRO", "2")
    if PRO == "0":
        dma_stage(0)
        xn_loads(0)
        dma_stage(1)
        xn_loads(1)
        dma_stage(2)
        dma_stage(3)
        ensure_stage(0, P1A)
    elif PRO == "1":
        dma_stage(0)
        xn_loads(0)
        ensure_stage(0, P1A)
        dma_stage(1)
        xn_loads(1)
        dma_stage(2)
        dma_stage(3)
    else:
        dma_stage(0)
        xn_loads(0)
        dma_stage(1)
        xn_loads(1)
        ensure_stage(0, P1A)
        dma_stage(2)
        dma_stage(3)

    wfid = {}

    def p1_reads(step, i):
        st, t = divmod(step, 4)
        base = WF + 28 * (step & 1) + 4 * i
        for u in range(2):
            if i < 4:
                oid = k.emit("ds_read_b64_tr_b16", v(base + 2 * u, 2), v(VA + i), mods="offset:%d" % ((16 * t + 4 * u) * 256))
            else:
                oid = k.emit("ds_read_b64_tr_b16", v(base + 2 * u, 2), v(VF),
                             mods="offset:%d" % ((16 * t + 4 * u) * 96 + 32 * (i - 4)))
        wfid[(step, i)] = oid

    for i in range(7):
        p1_reads(0, i)
    for step in range(32):
        st, t = divmod(step, 4)
        if t == 0:
            flush_vm() if xn_last.get(st) is None else None
            k.wait_vm(xn_last[st])
        if t == 3:
            ensure_stage(st + 1, P1A if st < 7 else None)
        if step == 17 and os.environ.get("PREF2", "1") == "1":
            def pf(i):
                if i == 0:
                    k.emit("v_lshlrev_b32", v(T0), 4, v(LANE))
                if i == 4:
                    k.emit("s_add_u32", s(97), s(97), 4096)
                k.emit("buffer_load_dwordx4", v(232 + 4 * i, 4), v(T0), s(4, 4), s(97), mods="offen offset:%d" % (1024 * (i % 4)))
            pend_vm.extend([lambda i=i: pf(i) for i in range(6)])
        xb = XF + 16 * (st % 3) + 4 * t
        for i in range(7):
            k.wait_lg(wfid[(step, i)])
            acc = ACCQ + 16 * i if i < 4 else ACCF + 16 * (i - 4)
            c = v(acc, 16) if step > 0 else "0"
            k.emit("v_mfma_f32_32x32x16_bf16", v(acc, 16), v(WF + 28 * (step & 1) + 4 * i, 4), v(xb, 4), c)
            if step < 31:
                p1_reads(step + 1, i)
            if i in (1, 4):
                pump()

    stamp("p1end")
    for dt in range(4):
        for p in range(8):
            k.emit("v_cvt_pk_bf16_f32", v(QF + 8 * dt + p), v(ACCQ + 16 * dt + 2 * p), v(ACCQ + 16 * dt + 2 * p + 1))
    k.emit("v_lshrrev_b32", v(T3), 5, v(LANE))
    k.emit("v_and_b32", v(T0), 15, v(LANE))
    k.emit("v_and_b32", v(T1), 31, v(LANE))
    k.emit("v_lshlrev_b32", v(T1), 8, v(T1))
    k.emit("v_add_u32", v(T1), (8 % NSLOT) * SLOT, v(T1))
    for t in range(8):
        k.emit("v_add_u32", v(T2), 2 * t, v(T3))
        k.emit("v_xor_b32", v(T2), v(T2), v(T0))
        k.emit("v_lshl_add_u32", v(KA + t), v(T2), 4, v(T1))
    kfid = {}

    def k_read(j, t):
        oid = k.emit("ds_read_b128", v(KF + 4 * t, 4), v(KA + t), mods="offset:%d" % ((j % 2) * 8192))
        kfid[(j, t)] = oid

    for t in range(8):
        k_read(0, t)
    k.emit("s_mul_i32", s(57), s(48), H_RGS)
    k.emit("v_lshl_add_u32", v(T3), v(LANE), 4, s(57))
    CG = -2.0 * 0.7978845608028654 * LOG2E
    k.emit("s_mov_b32", s(62), f32(0.044715))
    k.emit("s_mov_b32", s(63), f32(CG))
    ET = VFR
    for blk in range(3):
        a = ACCF + 16 * blk
        for r in range(8):
            k.emit("v_mul_f32", v(ET + r), v(a + r), v(a + r))
        for r in range(8):
            k.emit("v_fma_f32", v(ET + r), v(ET + r), s(62), "1.0")
        for r in range(8):
            k.emit("v_mul_f32", v(ET + r), v(ET + r), v(a + r))
        for r in range(8):
            k.emit("v_mul_f32", v(ET + r), s(63), v(ET + r))
        for r in range(8):
            k.emit("v_exp_f32", v(ET + r), v(ET + r))
        for r in range(8):
            k.emit("v_add_f32", v(ET + r), "1.0", v(ET + r))
        for r in range(8):
            k.emit("v_rcp_f32", v(ET + r), v(ET + r))
        for r in range(8):
            k.emit("v_mul_f32", v(ET + r), v(ET + r), v(a + r))
        for r in range(8):
            k.emit("v_mul_f32", v(ET + r), v(ET + r), v(a + 8 + r))
        pk = ET + 16 + 4 * blk
        for p in range(4):
            k.emit("v_cvt_pk_bf16_f32", v(pk + p), v(ET + 2 * p), v(ET + 2 * p + 1))
        k.emit("s_lshl_b32", s(61), s(49), 10)
        k.emit("s_add_u32", s(61), s(61), 32768 * blk)
        if blk == 2:
            k.emit("s_cmp_lt_u32", s(49), 22)
            k.emit("s_cselect_b32", s(64), -1, 0)
            for p in range(4):
                k.emit("v_and_b32", v(pk + p), s(64), v(pk + p))
            k.emit("s_cmp_lt_u32", s(49), 24)
            k.emit("s_cselect_b32", s(61), s(61), 0x7FFFFFF0)
        k.emit("buffer_store_dwordx4", v(pk, 4), v(T3), s(HS, 4), s(61), mods="offen")

    stamp("p2start")
    KAR = [KA + t for t in range(8)]
    VAR = [VA + dt for dt in range(4)]
    CS = LOG2E / (128.0 ** 0.5)
    TLAZY = 16.0
    k.emit("s_mov_b32", s(62), f32(CS))
    k.emit("s_mov_b32", s(63), f32(TLAZY / CS))
    k.emit("s_mov_b32", s(94), f32(CS))
    k.emit("s_mov_b32", s(95), f32(CS))
    k.emit("v_lshrrev_b32", v(T3), 5, v(LANE))
    k.emit("v_lshlrev_b32", v(T3), 10, v(T3))
    dlt = ((8 % NSLOT) - (7 % NSLOT)) * SLOT + 16384
    for dt in range(4):
        k.emit("v_sub_u32", v(VA + dt), v(VA + dt), v(T3))
        k.emit("v_add_u32", v(VA + dt), dlt & 0xFFFFFFFF, v(VA + dt))
    k.emit("v_mov_b32", v(SUM0), 0)
    k.emit("v_mov_b32", v(SUM1), 0)
    vfid = {}
    vstage = {"cur": 8}

    def wait_lg_safe(oid):
        if oid not in k.lgq:
            return
        n = len(k.lgq) - 1 - k.lgq.index(oid)
        if n > 15:
            k.emit("s_waitcnt", "lgkmcnt(15)")
            k.lgq = k.lgq[-15:]
            return
        k.wait_lg(oid)

    def v_read(j, f):
        st = 8 + j // 2
        if st > vstage["cur"]:
            delta = ((st % NSLOT) - ((st - 1) % NSLOT)) * SLOT
            for r in VAR:
                k.emit("v_add_u32", v(r), delta & 0xFFFFFFFF, v(r))
            vstage["cur"] = st
        t, dt = divmod(f, 4)
        base = VFR + 4 * f
        for u in range(2):
            oid = k.emit("ds_read_b64_tr_b16", v(base + 2 * u, 2), v(VA + dt),
                         mods="offset:%d" % ((32 * (j % 2) + 16 * t + 8 * u) * 256))
        vfid[(j, f)] = oid

    def k_read2(j, t):
        st = 8 + j // 2
        if st > state["ready"]:
            ensure_stage(st, KAR)
        k_read(j, t)

    def qk_mfma(j, t):
        wait_lg_safe(kfid[(j, t)])
        a = SACC + 16 * (j & 1)
        c = v(a, 16) if t > 0 else "0"
        k.emit("v_mfma_f32_32x32x16_bf16", v(a, 16), v(KF + 4 * t, 4), v(QF + 4 * t, 4), c)

    def pv_mfma(j, f):
        t, dt = divmod(f, 4)
        wait_lg_safe(vfid[(j, f)])
        a = OACC + 16 * dt
        c = v(a, 16) if (j > 0 or t > 0) else "0"
        k.emit("v_mfma_f32_32x32x16_bf16", v(a, 16), v(VFR + 4 * f, 4), v(PP + 8 * (j & 1) + 4 * t, 4), c)

    def max_ops(j):
        a = SACC + 16 * (j & 1)
        ops = [lambda: k.emit("v_max3_f32", v(MT), v(a), v(a + 1), v(a + 2))]
        for p in range(6):
            ops.append(lambda p=p: k.emit("v_max3_f32", v(MT), v(a + 3 + 2 * p), v(a + 4 + 2 * p), v(MT)))
        ops.append(lambda: k.emit("v_max_f32", v(MT), v(a + 15), v(MT)))
        return ops

    def exp_ops(j, p):
        a = SACC + 16 * (j & 1)
        lo = TMP + 2 * p
        hi = lo + 1
        PK = os.environ.get("PK", "0")
        ops = []
        if PK in ("1", "3"):
            ops.append(lambda: k.emit("v_pk_fma_f32", v(lo, 2), v(a + 2 * p, 2), s(94, 2), v(NM, 2)))
        else:
            ops.append(lambda: k.emit("v_fma_f32", v(lo), v(a + 2 * p), s(62), v(NM)))
            ops.append(lambda: k.emit("v_fma_f32", v(hi), v(a + 2 * p + 1), s(62), v(NM)))
        ops.append(lambda: k.emit("v_exp_f32", v(lo), v(lo)))
        ops.append(lambda: k.emit("v_exp_f32", v(hi), v(hi)))
        if PK in ("2", "3"):
            ops.append(lambda: k.emit("v_pk_add_f32", v(SUM0, 2), v(SUM0, 2), v(lo, 2)))
        else:
            ops.append(lambda: k.emit("v_add_f32", v(SUM0), v(SUM0), v(lo)))
            ops.append(lambda: k.emit("v_add_f32", v(SUM1), v(SUM1), v(hi)))
        ops.append(lambda: k.emit("v_cvt_pk_bf16_f32", v(PP + 8 * (j & 1) + p), v(lo), v(hi)))
        return ops

    def new_ref(first):
        k.emit("v_mov_b32", v(FT), v(MT))
        k.emit("v_permlane32_swap_b32", v(MT), v(FT))
        k.emit("v_max_f32", v(MT), v(MT), v(FT))
        if first:
            k.emit("v_mov_b32", v(MREF), v(MT))
        else:
            k.emit("v_max_f32", v(MREF), v(MREF), v(MT))
            k.emit("v_mov_b32", v(FF), v(NM))
        k.emit("v_mul_f32", v(NM), f32(-CS), v(MREF))
        k.emit("v_mul_f32", v(NM1), f32(-CS), v(MREF))
        k.emit("v_add_f32", v(THR), s(63), v(MREF))
        if not first:
            k.emit("v_sub_f32", v(FF), v(NM), v(FF))
            k.emit("v_exp_f32", v(FF), v(FF))

    rare = []
    for t in range(8):
        qk_mfma(0, t)
    for j in range(16):
        mops = max_ops(j)
        for f in range(8):
            if j >= 1:
                pv_mfma(j - 1, f)
            if j + 1 <= 15:
                k_read2(j + 1, f)
            if f in (1, 5):
                pump()
            if f >= 3 or j == 0:
                for _ in range(2):
                    if mops:
                        mops.pop(0)()
        while mops:
            mops.pop(0)()
        if j == 0:
            new_ref(True)
        else:
            k.emit("v_cmp_gt_f32", "vcc", v(MT), v(THR))
            k.nop(5)
            k.emit("s_cbranch_vccnz", "L_at_rare%d" % j)
            k.label("L_at_back%d" % j)
            rare.append(j)
        for f in range(8):
            if j + 1 <= 15:
                qk_mfma(j + 1, f)
            v_read(j, f)
            for op in exp_ops(j, f):
                op()
    for f in range(8):
        pv_mfma(15, f)

    stamp("p3end")
    k.emit("v_add_f32", v(SUM0), v(SUM0), v(SUM1))
    k.emit("v_mov_b32", v(SUM1), v(SUM0))
    k.emit("v_permlane32_swap_b32", v(SUM0), v(SUM1))
    k.emit("v_add_f32", v(SUM0), v(SUM0), v(SUM1))
    k.emit("v_rcp_f32", v(SUM0), v(SUM0))
    k.emit("s_lshl_b32", s(57), s(48), 18)
    k.emit("v_lshl_add_u32", v(T3), v(LANE), 4, s(57))
    k.emit("s_mov_b32", s(61), 4096)
    for dt in range(4):
        for a2 in range(2):
            base = OACC + 16 * dt + 8 * a2
            for r in range(8):
                k.emit("v_mul_f32", v(base + r), v(base + r), v(SUM0))
            pk = KF + 4 * (2 * dt + a2)
            for p in range(4):
                k.emit("v_cvt_pk_bf16_f32", v(pk + p), v(base + 2 * p), v(base + 2 * p + 1))
            blk = 2 * dt + a2
            k.emit("buffer_store_dwordx4", v(pk, 4), v(T3), s(OS, 4), s(61) if blk >= 4 else 0,
                   mods="offen offset:%d" % (1024 * (blk % 4)))
    if STAMP:
        k.wait_vm0()
        stamp("end")
        k.srd(XN, 10, 1 << 20, add=60 << 20)
        k.emit("s_lshl_b32", s(57), s(2), 3)
        k.emit("s_add_u32", s(57), s(57), s(48))
        k.emit("s_lshl_b32", s(57), s(57), 7)
        k.emit("v_mov_b32", v(T0), 0)
        for i in range(len(stamps)):
            k.emit("v_mov_b32", v(T1), s(66 + i))
            k.emit("buffer_store_dword", v(T1), v(T0), s(XN, 4), s(57), mods="offen offset:%d" % (4 * i))
        print("STAMPS", stamps)
    k.emit("s_branch", "L_at_end")
    for j in rare:
        k.label("L_at_rare%d" % j)
        k.nop(16)
        new_ref(False)
        for r in range(64):
            k.emit("v_mul_f32", v(OACC + r), v(OACC + r), v(FF))
        k.emit("v_mul_f32", v(SUM0), v(SUM0), v(FF))
        k.emit("v_mul_f32", v(SUM1), v(SUM1), v(FF))
        k.nop(4)
        k.emit("s_branch", "L_at_back%d" % j)
    k.label("L_at_end")
    return k, 256, 100
```

```python
import os
import struct
import sys

sys.path.insert(0, os.path.dirname(os.path.abspath(__file__)))
from asmlib import Kern, v, s

NAME = "recurrent_scan__sliding_block_cached__geglu_ffn__prompt"
XN_OFF = 0
O_OFF = 2 << 20
H_OFF = 18 << 20
H_RGS = 88 * 1024
PART_OFF = 24 << 20
CNT_OFF = 23 << 20
LOG2E = 1.4426950408889634


def f32(x):
    return "0x%08x" % struct.unpack("<I", struct.pack("<f", x))[0]


def wave_allreduce_add(k, val, tmp):
    for x in (1, 2, 4, 8, 16):
        o = k.emit("ds_swizzle_b32", v(tmp), v(val), mods="offset:0x%04x" % ((x << 10) | 0x1F))
        k.wait_lg(o)
        k.emit("v_add_f32", v(val), v(val), v(tmp))
    k.emit("v_mov_b32", v(tmp), v(val))
    k.emit("v_permlane32_swap_b32", v(val), v(tmp))
    k.emit("v_add_f32", v(val), v(val), v(tmp))


def gen_ln():
    k = Kern("ln_kernel")
    k.emit("s_cmp_ge_u32", s(2), 512)
    k.emit("s_cbranch_scc1", "L_ln_end")
    k.emit("s_load_dwordx2", s(4, 2), s(0, 2), 0)
    k.emit("s_load_dwordx2", s(6, 2), s(0, 2), 88)
    k.emit("v_lshlrev_b32", v(1), 4, v(0))
    k.emit("s_lshl_b32", s(3), s(2), 12)
    k.raw("    s_waitcnt lgkmcnt(0)")
    k.srd(8, 4, 2048 * 1024)
    k.srd(12, 6, 2048 * 1024, add=XN_OFF)
    o = k.emit("buffer_load_dwordx4", v(44, 4), v(1), s(8, 4), s(3), mods="offen")
    if os.environ.get("PREF", "1") == "1":
        k.emit("s_load_dwordx2", s(24, 2), s(0, 2), 24)
        k.emit("s_load_dwordx4", s(28, 4), s(0, 2), 48)
        k.emit("v_lshrrev_b32", v(2), 6, v(0))
        k.emit("v_readfirstlane_b32", s(18), v(2))
        k.emit("v_and_b32", v(2), 63, v(0))
        k.emit("s_and_b32", s(19), s(2), 7)
        k.emit("s_lshl_b32", s(19), s(19), 2)
        k.emit("s_add_u32", s(19), s(19), s(18))
        k.emit("s_lshr_b32", s(26), s(2), 3)
        k.raw("    s_waitcnt lgkmcnt(0)")
        k.srd(40, 24, 4 << 20)
        k.srd(44, 28, 512 * 2752)
        k.srd(48, 30, 512 * 2752)
        k.emit("v_lshrrev_b32", v(5), 4, v(2))
        k.emit("v_and_b32", v(6), 15, v(2))
        k.emit("v_lshlrev_b32", v(6), 4, v(6))
        k.emit("v_lshl_add_u32", v(5), v(5), 13, v(6))
        k.emit("v_min_u32", v(6), 47, v(2))
        k.emit("v_mul_u32_u24", v(7), 43, v(6))
        k.emit("v_lshrrev_b32", v(7), 8, v(7))
        k.emit("v_mul_u32_u24", v(8), 6, v(7))
        k.emit("v_sub_u32", v(8), v(6), v(8))
        k.emit("v_mul_u32_u24", v(7), 2752, v(7))
        k.emit("v_lshrrev_b32", v(9), 1, v(8))
        k.emit("v_lshl_add_u32", v(7), v(9), 10, v(7))
        k.emit("v_and_b32", v(8), 1, v(8))
        k.emit("v_lshl_add_u32", v(7), v(8), 4, v(7))
        k.emit("s_lshl_b32", s(27), s(26), 16)
        k.emit("s_lshl_b32", s(52), s(19), 8)
        k.emit("s_add_u32", s(27), s(27), s(52))
        k.emit("buffer_load_dwordx4", v(28, 4), v(5), s(40, 4), s(27), mods="offen")
        k.emit("s_add_u32", s(27), s(27), 32768)
        k.emit("buffer_load_dwordx4", v(32, 4), v(5), s(40, 4), s(27), mods="offen")
        k.emit("s_mul_i32", s(27), s(26), 8 * 2752)
        k.emit("s_lshl_b32", s(52), s(19), 5)
        k.emit("s_add_u32", s(27), s(27), s(52))
        k.emit("buffer_load_dwordx4", v(36, 4), v(7), s(44, 4), s(27), mods="offen")
        k.emit("buffer_load_dwordx4", v(40, 4), v(7), s(48, 4), s(27), mods="offen")
    k.wait_vm(o)
    for i in range(4):
        k.emit("v_mov_b32", v(4 + i), v(44 + i))
    for i in range(4):
        k.emit("v_lshlrev_b32", v(8 + 2 * i), 16, v(4 + i))
        k.emit("v_and_b32", v(9 + 2 * i), 0xFFFF0000, v(4 + i))
    k.emit("v_add_f32", v(16), v(8), v(9))
    for i in range(2, 8):
        k.emit("v_add_f32", v(16), v(16), v(8 + i))
    wave_allreduce_add(k, 16, 17)
    k.emit("v_mul_f32", v(16), f32(1.0 / 512), v(16))
    k.emit("v_sub_f32", v(18), v(8), v(16))
    k.emit("v_mul_f32", v(19), v(18), v(18))
    for i in range(1, 8):
        k.emit("v_sub_f32", v(18), v(8 + i), v(16))
        k.emit("v_fmac_f32", v(19), v(18), v(18))
    wave_allreduce_add(k, 19, 17)
    k.emit("v_mul_f32", v(19), f32(1.0 / 512), v(19))
    k.emit("v_cvt_pk_bf16_f32", v(20), v(16), v(19))
    k.emit("v_lshlrev_b32", v(16), 16, v(20))
    k.emit("v_and_b32", v(19), 0xFFFF0000, v(20))
    k.emit("v_add_f32", v(19), f32(1e-5), v(19))
    k.emit("v_cvt_pk_bf16_f32", v(20), v(19), v(19))
    k.emit("v_lshlrev_b32", v(19), 16, v(20))
    k.emit("v_sqrt_f32", v(19), v(19))
    k.emit("v_cvt_pk_bf16_f32", v(20), v(19), v(19))
    k.emit("v_lshlrev_b32", v(19), 16, v(20))
    k.emit("v_rcp_f32", v(19), v(19))
    for i in range(4):
        k.emit("v_sub_f32", v(20), v(8 + 2 * i), v(16))
        k.emit("v_sub_f32", v(21), v(9 + 2 * i), v(16))
        k.emit("v_cvt_pk_bf16_f32", v(22), v(20), v(21))
        k.emit("v_lshlrev_b32", v(20), 16, v(22))
        k.emit("v_and_b32", v(21), 0xFFFF0000, v(22))
        k.emit("v_mul_f32", v(20), v(20), v(19))
        k.emit("v_mul_f32", v(21), v(21), v(19))
        k.emit("v_cvt_pk_bf16_f32", v(24 + i), v(20), v(21))
    k.emit("v_and_b32", v(2), 63, v(0))
    k.emit("v_lshrrev_b32", v(3), 1, v(2))
    k.emit("v_lshlrev_b32", v(3), 10, v(3))
    k.emit("v_and_b32", v(2), 1, v(2))
    k.emit("v_lshl_add_u32", v(3), v(2), 9, v(3))
    k.emit("v_lshrrev_b32", v(2), 6, v(0))
    k.emit("v_lshl_add_u32", v(3), v(2), 4, v(3))
    k.emit("s_lshr_b32", s(16), s(2), 3)
    k.emit("s_lshl_b32", s(16), s(16), 15)
    k.emit("s_and_b32", s(17), s(2), 7)
    k.emit("s_lshl_b32", s(17), s(17), 6)
    k.emit("s_add_u32", s(16), s(16), s(17))
    k.emit("buffer_store_dwordx4", v(24, 4), v(3), s(12, 4), s(16), mods="offen")
    k.emit("s_cmp_lg_u32", s(2), 0)
    k.emit("s_cbranch_scc1", "L_ln_end")
    k.srd(8, 6, 256, add=CNT_OFF)
    k.emit("v_lshlrev_b32", v(2), 2, v(0))
    k.emit("v_mov_b32", v(3), 0)
    k.emit("buffer_store_dword", v(3), v(2), s(8, 4), 0, mods="offen")
    k.label("L_ln_end")
    return k, 48, 56


def gen_fin():
    k = Kern("fin_kernel")
    k.emit("s_cmp_ge_u32", s(2), 512)
    k.emit("s_cbranch_scc1", "L_fin_end")
    k.emit("s_load_dwordx2", s(4, 2), s(0, 2), 0)
    k.emit("s_load_dwordx2", s(6, 2), s(0, 2), 72)
    k.emit("s_load_dwordx2", s(16, 2), s(0, 2), 88)
    k.emit("v_and_b32", v(1), 63, v(0))
    k.emit("v_lshrrev_b32", v(2), 6, v(0))
    k.emit("v_and_b32", v(3), 1, v(2))
    k.emit("v_lshrrev_b32", v(4), 1, v(2))
    k.emit("s_and_b32", s(20), s(2), 1)
    k.emit("s_lshr_b32", s(21), s(2), 1)
    k.emit("s_and_b32", s(21), s(21), 3)
    k.emit("s_lshr_b32", s(22), s(2), 3)
    k.emit("s_lshr_b32", s(23), s(2), 1)
    k.emit("s_lshl_b32", s(23), s(23), 13)
    k.emit("s_lshl_b32", s(24), s(20), 12)
    k.emit("s_add_u32", s(23), s(23), s(24))
    k.emit("v_lshlrev_b32", v(5), 11, v(4))
    k.emit("v_lshl_add_u32", v(5), v(3), 10, v(5))
    k.emit("v_lshl_add_u32", v(5), v(1), 4, v(5))
    k.emit("s_lshr_b32", s(25), s(22), 2)
    k.emit("s_and_b32", s(26), s(22), 3)
    k.emit("s_lshr_b32", s(27), s(21), 1)
    k.emit("s_and_b32", s(28), s(21), 1)
    k.emit("s_lshl_b32", s(25), s(25), 7)
    k.emit("s_lshl_b32", s(27), s(27), 6)
    k.emit("s_add_u32", s(25), s(25), s(27))
    k.emit("s_lshl_b32", s(25), s(25), 10)
    k.emit("s_lshl_b32", s(26), s(26), 7)
    k.emit("s_lshl_b32", s(28), s(28), 6)
    k.emit("s_add_u32", s(26), s(26), s(28))
    k.emit("s_lshl_b32", s(29), s(20), 5)
    k.emit("s_add_u32", s(26), s(26), s(29))
    k.emit("s_lshl_b32", s(26), s(26), 1)
    k.emit("s_add_u32", s(25), s(25), s(26))
    k.emit("v_and_b32", v(6), 31, v(1))
    k.emit("v_lshl_add_u32", v(6), v(4), 5, v(6))
    k.emit("v_lshlrev_b32", v(6), 10, v(6))
    k.emit("v_lshl_add_u32", v(6), v(3), 5, v(6))
    k.emit("v_lshrrev_b32", v(7), 5, v(1))
    k.emit("v_lshl_add_u32", v(6), v(7), 4, v(6))
    k.raw("    s_waitcnt lgkmcnt(0)")
    k.srd(8, 4, 2048 * 1024)
    k.srd(12, 6, 2048 * 1024)
    k.srd(32, 16, 16 << 20, add=PART_OFF)
    ids = []
    for sp in range(4):
        k.emit("s_add_u32", s(36 + sp), s(23), sp * (2 << 20))
    for sp in range(4):
        ids.append(k.emit("buffer_load_dwordx4", v(52 + sp * 4, 4), v(5), s(32, 4), s(36 + sp), mods="offen"))
    ox = k.emit("buffer_load_dwordx4", v(40, 4), v(6), s(8, 4), s(25), mods="offen")
    k.wait_vm(ids[2])
    for sp in range(3):
        for i in range(4):
            k.emit("v_lshlrev_b32", v(8 + 8 * sp + 2 * i), 16, v(52 + 4 * sp + i))
            k.emit("v_and_b32", v(9 + 8 * sp + 2 * i), 0xFFFF0000, v(52 + 4 * sp + i))
    for i in range(8):
        k.emit("v_add_f32", v(8 + i), v(8 + i), v(16 + i))
        k.emit("v_add_f32", v(8 + i), v(8 + i), v(24 + i))
    k.wait_vm(ids[3])
    for i in range(4):
        k.emit("v_cvt_pk_bf16_f32", v(44 + i), v(8 + 2 * i), v(9 + 2 * i))
    for i in range(4):
        k.emit("v_lshlrev_b32", v(8 + 2 * i), 16, v(44 + i))
        k.emit("v_and_b32", v(9 + 2 * i), 0xFFFF0000, v(44 + i))
        k.emit("v_lshlrev_b32", v(32 + 2 * i), 16, v(64 + i))
        k.emit("v_and_b32", v(33 + 2 * i), 0xFFFF0000, v(64 + i))
    for i in range(8):
        k.emit("v_mul_f32", v(16 + i), f32(-LOG2E), v(32 + i))
    for i in range(8):
        k.emit("v_exp_f32", v(16 + i), v(16 + i))
    for i in range(8):
        k.emit("v_add_f32", v(16 + i), 1.0, v(16 + i))
    for i in range(8):
        k.emit("v_rcp_f32", v(16 + i), v(16 + i))
    for i in range(8):
        k.emit("v_mul_f32", v(16 + i), v(16 + i), v(32 + i))
    for i in range(4):
        k.emit("v_cvt_pk_bf16_f32", v(48 + i), v(16 + 2 * i), v(17 + 2 * i))
    for i in range(4):
        k.emit("v_lshlrev_b32", v(16 + 2 * i), 16, v(48 + i))
        k.emit("v_and_b32", v(17 + 2 * i), 0xFFFF0000, v(48 + i))
    for i in range(8):
        k.emit("v_mul_f32", v(8 + i), v(8 + i), v(16 + i))
    for i in range(4):
        k.emit("v_cvt_pk_bf16_f32", v(44 + i), v(8 + 2 * i), v(9 + 2 * i))
    k.wait_vm(ox)
    for i in range(4):
        k.emit("v_lshlrev_b32", v(8 + 2 * i), 16, v(44 + i))
        k.emit("v_and_b32", v(9 + 2 * i), 0xFFFF0000, v(44 + i))
        k.emit("v_lshlrev_b32", v(16 + 2 * i), 16, v(40 + i))
        k.emit("v_and_b32", v(17 + 2 * i), 0xFFFF0000, v(40 + i))
    for i in range(8):
        k.emit("v_add_f32", v(8 + i), v(8 + i), v(16 + i))
    for i in range(4):
        k.emit("v_cvt_pk_bf16_f32", v(44 + i), v(8 + 2 * i), v(9 + 2 * i))
    k.emit("buffer_store_dwordx4", v(44, 4), v(6), s(12, 4), s(25), mods="offen")
    k.label("L_fin_end")
    return k, 68, 44


def fin_math(k, b, wait_s, wait_f, wait_x):
    S, P1, P2, F, X, T0, T1 = b, b + 8, b + 16, b + 24, b + 32, b + 36, b + 40
    k.wait_vm(wait_s)
    for i in range(8):
        k.emit("v_add_f32", v(S + i), v(S + i), v(P1 + i))
        k.emit("v_add_f32", v(S + i), v(S + i), v(P2 + i))
    k.wait_vm(wait_f)
    for i in range(4):
        k.emit("v_cvt_pk_bf16_f32", v(T0 + i), v(S + 2 * i), v(S + 1 + 2 * i))
        k.emit("v_cvt_pk_bf16_f32", v(T1 + i), v(F + 2 * i), v(F + 1 + 2 * i))
    for i in range(4):
        k.emit("v_lshlrev_b32", v(S + 2 * i), 16, v(T0 + i))
        k.emit("v_and_b32", v(S + 1 + 2 * i), 0xFFFF0000, v(T0 + i))
        k.emit("v_lshlrev_b32", v(F + 2 * i), 16, v(T1 + i))
        k.emit("v_and_b32", v(F + 1 + 2 * i), 0xFFFF0000, v(T1 + i))
    G = P1
    for i in range(8):
        k.emit("v_mul_f32", v(G + i), f32(-LOG2E), v(F + i))
    for i in range(8):
        k.emit("v_exp_f32", v(G + i), v(G + i))
    for i in range(8):
        k.emit("v_add_f32", v(G + i), 1.0, v(G + i))
    for i in range(8):
        k.emit("v_rcp_f32", v(G + i), v(G + i))
    for i in range(8):
        k.emit("v_mul_f32", v(G + i), v(G + i), v(F + i))
    for i in range(4):
        k.emit("v_cvt_pk_bf16_f32", v(T1 + i), v(G + 2 * i), v(G + 1 + 2 * i))
    for i in range(4):
        k.emit("v_lshlrev_b32", v(G + 2 * i), 16, v(T1 + i))
        k.emit("v_and_b32", v(G + 1 + 2 * i), 0xFFFF0000, v(T1 + i))
    for i in range(8):
        k.emit("v_mul_f32", v(S + i), v(S + i), v(G + i))
    for i in range(4):
        k.emit("v_cvt_pk_bf16_f32", v(T0 + i), v(S + 2 * i), v(S + 1 + 2 * i))
    k.wait_vm(wait_x)
    for i in range(4):
        k.emit("v_lshlrev_b32", v(S + 2 * i), 16, v(T0 + i))
        k.emit("v_and_b32", v(S + 1 + 2 * i), 0xFFFF0000, v(T0 + i))
        k.emit("v_lshlrev_b32", v(G + 2 * i), 16, v(X + i))
        k.emit("v_and_b32", v(G + 1 + 2 * i), 0xFFFF0000, v(X + i))
    for i in range(8):
        k.emit("v_add_f32", v(S + i), v(S + i), v(G + i))
    for i in range(4):
        k.emit("v_cvt_pk_bf16_f32", v(T0 + i), v(S + 2 * i), v(S + 1 + 2 * i))


def bs2_lane(k, dst, lane, tmp):
    k.emit("v_and_b32", v(tmp), 1, v(lane))
    k.emit("v_lshlrev_b32", v(dst), 4, v(tmp))
    k.emit("v_and_b32", v(tmp), 2, v(lane))
    k.emit("v_lshl_add_u32", v(dst), v(tmp), 2, v(dst))


def gen_gemm2():
    k = Kern("gemm2_kernel")
    SLOT = 32768
    NSLOT = 5
    k.emit("s_cmp_ge_u32", s(2), 256)
    k.emit("s_cbranch_scc1", "L_g2_end")
    k.emit("s_load_dwordx2", s(4, 2), s(0, 2), 32)
    k.emit("s_load_dwordx2", s(6, 2), s(0, 2), 64)
    k.emit("s_load_dwordx2", s(8, 2), s(0, 2), 88)
    k.emit("v_lshrrev_b32", v(1), 6, v(0))
    k.emit("v_and_b32", v(2), 63, v(0))
    k.emit("v_readfirstlane_b32", s(40), v(1))
    k.emit("s_lshr_b32", s(39), s(40), 2)
    k.emit("s_and_b32", s(40), s(40), 3)
    k.emit("s_and_b32", s(41), s(2), 3)
    k.emit("s_lshr_b32", s(42), s(2), 2)
    k.emit("s_and_b32", s(42), s(42), 1)
    k.emit("s_lshr_b32", s(43), s(2), 5)
    k.emit("s_lshl_b32", s(42), s(42), 3)
    k.emit("s_add_u32", s(42), s(42), s(43))
    k.emit("s_lshr_b32", s(43), s(2), 3)
    k.emit("s_and_b32", s(43), s(43), 3)
    k.emit("s_mov_b32", s(44), 0)
    k.emit("s_mov_b32", s(45), 22)
    k.emit("s_cmp_eq_u32", s(41), 1)
    k.emit("s_cselect_b32", s(44), 1408, s(44))
    k.emit("s_cselect_b32", s(45), 21, s(45))
    k.emit("s_cmp_eq_u32", s(41), 2)
    k.emit("s_cselect_b32", s(44), 2752, s(44))
    k.emit("s_cselect_b32", s(45), 21, s(45))
    k.emit("s_mov_b32", s(46), 262144)
    k.emit("s_mov_b32", s(47), O_OFF)
    k.emit("s_cmp_eq_u32", s(41), 3)
    k.emit("s_cselect_b32", s(46), H_RGS, s(46))
    k.emit("s_cselect_b32", s(47), H_OFF, s(47))
    k.emit("s_mul_i32", s(48), s(42), s(46))
    k.emit("s_lshl_b32", s(48), s(48), 2)
    k.emit("s_add_u32", s(47), s(47), s(48))
    k.emit("s_lshl_b32", s(48), s(44), 6)
    k.emit("s_add_u32", s(47), s(47), s(48))
    k.emit("s_lshl_b32", s(49), s(44), 10)
    k.emit("s_lshl_b32", s(48), s(43), 8)
    k.emit("s_add_u32", s(49), s(49), s(48))
    k.raw("    s_waitcnt lgkmcnt(0)")
    k.emit("s_mov_b32", s(50), 4096 * 1024)
    k.emit("s_cmp_eq_u32", s(41), 3)
    k.emit("s_cselect_b32", s(4), s(6), s(4))
    k.emit("s_cselect_b32", s(5), s(7), s(5))
    k.emit("s_cselect_b32", s(50), 1376 * 1024, s(50))
    k.emit("s_sub_u32", s(50), s(50), s(49))
    k.emit("s_add_u32", s(12), s(8), s(47))
    k.emit("s_addc_u32", s(13), s(9), 0)
    k.emit("s_and_b32", s(13), s(13), 0xFFFF)
    k.emit("s_lshl_b32", s(51), s(46), 2)
    k.emit("s_mov_b32", s(14), s(51))
    k.emit("s_mov_b32", s(15), 0x00020000)
    k.emit("s_add_u32", s(16), s(4), s(49))
    k.emit("s_addc_u32", s(17), s(5), 0)
    k.emit("s_and_b32", s(17), s(17), 0xFFFF)
    k.emit("s_mov_b32", s(18), s(50))
    k.emit("s_mov_b32", s(19), 0x00020000)
    k.srd(20, 8, 16 << 20, add=PART_OFF)
    k.emit("v_lshlrev_b32", v(3), 4, v(2))
    k.emit("v_lshrrev_b32", v(4), 4, v(2))
    k.emit("v_bfe_u32", v(5), v(2), 2, 2)
    k.emit("v_xor_b32", v(5), v(5), v(4))
    k.emit("v_lshlrev_b32", v(5), 6, v(5))
    k.emit("v_lshl_add_u32", v(5), v(4), 10, v(5))
    k.emit("v_and_b32", v(4), 3, v(2))
    k.emit("v_lshl_add_u32", v(6), v(4), 4, v(5))
    for i in range(4):
        k.emit("s_add_u32", s(53), s(40), 4 * i)
        k.emit("s_mul_i32", s(56 + i), s(40), s(46))
        k.emit("s_add_u32", s(56 + i), s(56 + i), 1024 * i)
        k.emit("s_lshl_b32", s(60 + i), s(53), 12)
    k.emit("s_lshl_b32", s(64), s(40), 10)
    k.emit("s_lshl_b32", s(82), s(40), 12)
    k.emit("s_mov_b32", s(65), 0)
    k.emit("s_mov_b32", s(66), 0)

    ROT = int(os.environ.get("ROT", "1"))
    k.emit("s_lshr_b32", s(84), s(2), 3)
    k.emit("s_mul_i32", s(84), s(84), ROT)
    for _ in range(12):
        k.emit("s_cmp_ge_u32", s(84), s(45))
        k.emit("s_cselect_b32", s(85), s(45), 0)
        k.emit("s_sub_u32", s(84), s(84), s(85))

    def issue_dma():
        k.emit("s_cmp_lt_u32", s(65), s(45))
        k.emit("s_cselect_b32", s(14), s(51), 0)
        k.emit("s_cselect_b32", s(18), s(50), 0)
        if os.environ.get("NOACT") == "1":
            k.emit("s_mov_b32", s(14), 0)
        if os.environ.get("NOWT") == "1":
            k.emit("s_mov_b32", s(18), 0)
        k.emit("s_add_u32", s(67), s(66), s(64))
        k.emit("s_add_u32", s(83), s(66), s(82))
        k.emit("s_lshl_b32", s(85), s(84), 12)
        k.emit("s_lshl_b32", s(86), s(84), 16)
        for i in range(8 if os.environ.get("NODMA") != "1" else 0):
            if i < 4:
                k.emit("s_add_u32", "m0", s(83), 1024 * i)
                k.emit("s_add_u32", s(87), s(56 + i), s(85))
                k.emit("buffer_load_dwordx4", v(3), s(12, 4), s(87), mods="offen lds")
            else:
                k.emit("s_add_u32", "m0", s(67), 4096 * i)
                k.emit("s_add_u32", s(87), s(56 + i), s(86))
                k.emit("buffer_load_dwordx4", v(6), s(16, 4), s(87), mods="offen lds")
        k.emit("s_add_u32", s(65), s(65), 1)
        k.emit("s_add_u32", s(84), s(84), 1)
        k.emit("s_cmp_eq_u32", s(84), s(45))
        k.emit("s_cselect_b32", s(84), 0, s(84))
        k.emit("s_add_u32", s(66), s(66), SLOT)
        k.emit("s_cmp_eq_u32", s(66), SLOT * NSLOT)
        k.emit("s_cselect_b32", s(66), 0, s(66))

    k.emit("s_cmp_eq_u32", s(39), 0)
    k.emit("s_cbranch_scc1", "L_g2_compute")
    for i in range(4):
        issue_dma()
    k.raw("    s_waitcnt vmcnt(24)")
    k.emit("s_barrier")
    k.emit("s_mov_b32", s(78), 0)
    k.label("L_g2_lloop")
    k.raw("    s_waitcnt vmcnt(16)")
    k.emit("s_barrier")
    issue_dma()
    k.emit("s_add_u32", s(78), s(78), 1)
    k.emit("s_cmp_lt_u32", s(78), s(45))
    k.emit("s_cbranch_scc1", "L_g2_lloop")
    k.raw("    s_waitcnt vmcnt(0)")
    k.emit("s_endpgm")
    k.label("L_g2_compute")
    k.emit("s_lshr_b32", s(68), s(40), 1)
    k.emit("s_and_b32", s(69), s(40), 1)
    k.emit("v_lshrrev_b32", v(7), 5, v(2))
    k.emit("s_lshl_b32", s(53), s(68), 13)
    k.emit("v_lshl_add_u32", v(8), v(2), 4, s(53))
    k.emit("v_bfe_u32", v(4), v(2), 2, 2)
    k.emit("v_lshl_add_u32", v(5), v(7), 3, v(4))
    k.emit("v_lshlrev_b32", v(5), 8, v(5))
    k.emit("v_add_u32", v(5), 16384, v(5))
    k.emit("v_bfe_u32", v(14), v(2), 4, 1)
    k.emit("v_lshl_add_u32", v(5), v(14), 5, v(5))
    bs2_lane(k, 14, 2, 15)
    k.emit("v_add_u32", v(5), v(5), v(14))
    k.emit("s_lshl_b32", s(53), s(69), 1)
    for tn in range(2):
        k.emit("s_add_u32", s(54), s(53), tn)
        k.emit("v_xor_b32", v(14), s(54), v(4))
        k.emit("v_lshl_add_u32", v(12 + tn), v(14), 6, v(5))
    ACC = 80
    for i in range(64):
        k.emit("v_mov_b32", v(ACC + i), 0)

    def reads(t, fs):
        base = 16 + 16 * fs
        for tn in range(2):
            for u in range(2):
                k.emit("ds_read_b64_tr_b16", v(base + 4 * tn + 2 * u, 2), v(12 + tn),
                       mods="offset:%d" % ((16 * t + 4 * u) * 256))
        for tm in range(2):
            k.emit("ds_read_b128", v(base + 8 + 4 * tm, 4), v(8), mods="offset:%d" % (4096 * tm + 1024 * t))

    def mfmas(fs):
        base = 16 + 16 * fs
        for tn in range(2):
            for tm in range(2):
                a = ACC + 16 * (tn * 2 + tm)
                k.emit("v_mfma_f32_32x32x16_bf16", v(a, 16), v(base + 4 * tn, 4), v(base + 8 + 4 * tm, 4), v(a, 16))

    STAMP = os.environ.get("STAMP2", "0") == "1"

    def stamp(idx):
        if STAMP:
            k.raw("    s_memtime s[98:99]" if os.environ.get("REALTIME") != "1" else "    s_memrealtime s[98:99]")
            k.raw("    s_waitcnt lgkmcnt(0)")
            k.emit("s_mov_b32", s(idx), s(98))

    stamp(90)
    k.emit("s_barrier")
    stamp(91)
    reads(0, 0)
    reads(1, 1)
    k.emit("s_mov_b32", s(78), 0)
    k.emit("s_mov_b32", s(79), 0)
    k.emit("s_mov_b32", s(81), SLOT)
    k.label("L_g2_loop")

    def read_ops(t, fs):
        base = 16 + 16 * fs
        ops = []
        for tn in range(2):
            for u in range(2):
                ops.append(lambda tn=tn, u=u: k.emit("ds_read_b64_tr_b16", v(base + 4 * tn + 2 * u, 2), v(12 + tn),
                                                     mods="offset:%d" % ((16 * t + 4 * u) * 256)))
        for tm in range(2):
            ops.append(lambda tm=tm: k.emit("ds_read_b128", v(base + 8 + 4 * tm, 4), v(8),
                                            mods="offset:%d" % (4096 * tm + 1024 * t)))
        return ops

    def step(fs, rops):
        base = 16 + 16 * fs
        k.raw("    s_waitcnt lgkmcnt(6)")
        n = 0
        for tn in range(2):
            for tm in range(2):
                a = ACC + 16 * (tn * 2 + tm)
                k.emit("v_mfma_f32_32x32x16_bf16", v(a, 16), v(base + 4 * tn, 4), v(base + 8 + 4 * tm, 4), v(a, 16))
                for _ in range(2 if n < 2 else 1):
                    rops.pop(0)()
                n += 1

    step(0, read_ops(2, 2))
    step(1, read_ops(3, 3))
    k.emit("s_barrier")
    k.emit("s_add_u32", s(79), s(79), SLOT)
    k.emit("s_cmp_eq_u32", s(79), SLOT * NSLOT)
    k.emit("s_cselect_b32", s(79), 0, s(79))
    k.emit("s_cselect_b32", s(80), -SLOT * (NSLOT - 1) & 0xFFFFFFFF, s(81))
    for r in (8, 12, 13):
        k.emit("v_add_u32", v(r), s(80), v(r))
    step(2, read_ops(0, 0))
    step(3, read_ops(1, 1))
    k.emit("s_add_u32", s(78), s(78), 1)
    k.emit("s_cmp_lt_u32", s(78), s(45))
    k.emit("s_cbranch_scc1", "L_g2_loop")
    k.lgq = []
    k.vmq = []
    stamp(92)
    k.nop(16)
    k.emit("s_lshl_b32", s(53), s(41), 6)
    k.emit("s_lshl_b32", s(54), s(42), 2)
    k.emit("s_add_u32", s(53), s(53), s(54))
    k.emit("s_add_u32", s(53), s(53), s(43))
    k.emit("s_lshl_b32", s(53), s(53), 2)
    k.emit("s_add_u32", s(53), s(53), s(40))
    k.emit("s_lshl_b32", s(53), s(53), 14)
    k.emit("v_lshlrev_b32", v(4), 4, v(2))
    FUSE = os.environ.get("FUSE", "0") == "1"
    if not FUSE:
        k.emit("s_lshr_b32", s(53), s(53), 1)
        for o8 in range(8):
            for p in range(4):
                k.emit("v_cvt_pk_bf16_f32", v(16 + 4 * o8 + p), v(ACC + 8 * o8 + 2 * p), v(ACC + 8 * o8 + 2 * p + 1))
            if o8 == 4:
                k.emit("s_add_u32", s(53), s(53), 4096)
            k.emit("buffer_store_dwordx4", v(16 + 4 * o8, 4), v(4), s(20, 4), s(53),
                   mods="offen offset:%d" % (1024 * (o8 % 4)))
        k.raw("    s_waitcnt vmcnt(0)")
    if FUSE:
        for q in range(16):
            if q % 4 == 0 and q:
                k.emit("s_add_u32", s(53), s(53), 4096)
            k.emit("buffer_store_dwordx4", v(ACC + 4 * q, 4), v(4), s(20, 4), s(53),
                   mods="offen offset:%d sc1" % (1024 * (q % 4)))
        k.wait_vm0()
        k.emit("s_barrier")
        k.emit("s_load_dwordx2", s(4, 2), s(0, 2), 0)
        k.emit("s_load_dwordx2", s(6, 2), s(0, 2), 72)
        k.srd(24, 8, 256, add=CNT_OFF)
        k.emit("s_lshl_b32", s(54), s(42), 2)
        k.emit("s_add_u32", s(54), s(54), s(43))
        k.emit("s_lshl_b32", s(55), s(54), 2)
        k.emit("v_mov_b32", v(5), 1)
        k.emit("v_mov_b32", v(7), 0)
        k.emit("s_cmp_lg_u32", s(40), 0)
        k.emit("s_cbranch_scc1", "L_g2_noatom")
        k.raw("    s_mov_b64 exec, 1")
        k.raw("    buffer_atomic_add v5, v7, s[24:27], s55 offen sc0 sc1")
        k.raw("    s_waitcnt vmcnt(0)")
        k.raw("    ds_write_b32 v7, v5")
        k.raw("    s_waitcnt lgkmcnt(0)")
        k.raw("    s_mov_b64 exec, -1")
        k.label("L_g2_noatom")
        k.emit("s_barrier")
        k.raw("    ds_read_b32 v5, v7")
        k.raw("    s_waitcnt lgkmcnt(0)")
        k.nop(2)
        k.emit("v_readfirstlane_b32", s(55), v(5))
        k.nop(4)
        k.emit("s_cmp_lg_u32", s(55), 3)
        k.emit("s_cbranch_scc1", "L_g2_end")
        k.srd(28, 4, 2048 * 1024)
        k.srd(32, 6, 2048 * 1024)
        k.emit("s_lshl_b32", s(53), s(54), 2)
        k.emit("s_add_u32", s(53), s(53), s(40))
        k.emit("s_lshl_b32", s(53), s(53), 14)
        k.emit("s_lshl_b32", s(56), s(42), 7)
        k.emit("s_lshl_b32", s(57), s(68), 6)
        k.emit("s_add_u32", s(56), s(56), s(57))
        k.emit("s_lshl_b32", s(56), s(56), 10)
        k.emit("s_lshl_b32", s(57), s(43), 8)
        k.emit("s_add_u32", s(56), s(56), s(57))
        k.emit("s_lshl_b32", s(57), s(69), 7)
        k.emit("s_add_u32", s(56), s(56), s(57))
        k.emit("v_and_b32", v(5), 31, v(2))
        k.emit("v_lshlrev_b32", v(5), 10, v(5))
        k.emit("v_lshrrev_b32", v(7), 5, v(2))
        k.emit("v_lshl_add_u32", v(5), v(7), 4, v(5))
        for half in range(2):
            info = []
            for g in range(4):
                tm, a = divmod(g, 2)
                b = 16 + 44 * g
                q0 = (half * 2 + tm) * 4 + 2 * a
                ids = []
                for sp in range(4):
                    k.emit("s_add_u32", s(58), s(53), sp * (4 << 20) + (q0 // 4) * 4096)
                    for j in range(2):
                        ids.append(k.emit("buffer_load_dwordx4", v(b + sp * 8 + 4 * j, 4), v(4), s(20, 4), s(58),
                                          mods="offen offset:%d sc1" % (1024 * ((q0 % 4) + j))))
                k.emit("s_add_u32", s(60 + g), s(56), tm * 32768 + half * 64 + a * 32)
                ox = k.emit("buffer_load_dwordx4", v(b + 32, 4), v(5), s(28, 4), s(60 + g), mods="offen")
                info.append((b, ids[5], ids[7], ox))
            for g in range(4):
                b, ws_, wf_, wx_ = info[g]
                fin_math(k, b, ws_, wf_, wx_)
                k.emit("buffer_store_dwordx4", v(b + 36, 4), v(5), s(32, 4), s(60 + g), mods="offen")
        k.raw("    s_waitcnt vmcnt(0)")
    if STAMP:
        stamp(93)
        k.srd(20, 8, 1 << 20, add=61 << 20)
        k.emit("s_lshl_b32", s(57), s(2), 2)
        k.emit("s_add_u32", s(57), s(57), s(40))
        k.emit("s_lshl_b32", s(57), s(57), 4)
        k.emit("v_mov_b32", v(4), 0)
        for i in range(4):
            k.emit("v_mov_b32", v(5), s(90 + i))
            k.emit("buffer_store_dword", v(5), v(4), s(20, 4), s(57), mods="offen offset:%d" % (4 * i))
    k.label("L_g2_end")
    return k, 192, 100


from gen_attn import gen_attn


def main():
    ks = []
    launches = []
    k, nv, ns = gen_ln()
    ks.append((k, nv, ns))
    launches.append("; @launch kernel=ln_kernel grid=(512,1,1) block=(256,1,1) lds=0")
    k, nv, ns = gen_attn()
    ks.append((k, nv, ns))
    launches.append("; @launch kernel=attn_kernel grid=(256,1,1) block=(512,1,1) lds=163840")
    G3 = os.environ.get("G3", "0") == "1"
    if G3:
        from gen_g3 import gen_g3
        k, nv, ns = gen_g3()
        ks.append((k, nv, ns))
        launches.append("; @launch kernel=outp_kernel grid=(256,1,1) block=(512,1,1) lds=163840")
    else:
        k, nv, ns = gen_gemm2()
        ks.append((k, nv, ns))
        launches.append("; @launch kernel=gemm2_kernel grid=(256,1,1) block=(512,1,1) lds=163840")
    if os.environ.get("FUSE", "0") != "1" and not G3:
        k, nv, ns = gen_fin()
        ks.append((k, nv, ns))
        launches.append("; @launch kernel=fin_kernel grid=(512,1,1) block=(256,1,1) lds=0")
    out = []
    out.extend(launches)
    out.append('.amdgcn_target "amdgcn-amd-amdhsa--gfx950"')
    out.append(".text")
    descs = []
    for k, nv, ns in ks:
        assert k.maxv < nv, (k.name, k.maxv, nv)
        body, desc = k.text(nv, ns)
        out.append(body)
        descs.append(desc)
        print(k.name, "maxv", k.maxv, k.count, file=sys.stderr)
    out.append('.section .rodata,"a"')
    out.extend(descs)
    path = os.path.join(os.path.dirname(os.path.abspath(__file__)), "..", "cdna_kernels", NAME + ".s")
    with open(path, "w") as f:
        f.write("\n".join(out) + "\n")


if __name__ == "__main__":
    main()
```

```python
import struct
from asmlib import Kern, v, s

XN_OFF = 0
O_OFF = 2 << 20
H_OFF = 18 << 20
H_RGS = 88 * 1024
LOG2E = 1.4426950408889634
SLOT = 32768
NSLOT = 5
G_REG = 16384
U_REG = 22656


def f32(x):
    return "0x%08x" % struct.unpack("<I", struct.pack("<f", x))[0]


import os
STAMP = os.environ.get("STAMP", "0") == "1"


def gen_attn():
    k = Kern("attn_kernel")
    stamps = []

    def stamp(name):
        if not STAMP:
            return
        i = len(stamps)
        stamps.append(name)
        k.raw("    s_memtime s[98:99]" if os.environ.get("REALTIME") != "1" else "    s_memrealtime s[98:99]")
        k.wait_lg0()
        k.emit("s_mov_b32", s(66 + i), s(98))

    def rawi(text):
        k.raw("    " + text)
        k.pos += 1

    k.emit("s_cmp_ge_u32", s(2), 256)
    k.emit("s_cbranch_scc1", "L_at_end")
    k.emit("s_load_dwordx4", s(4, 4), s(0, 2), 8)
    k.emit("s_load_dwordx2", s(8, 2), s(0, 2), 24)
    k.emit("s_load_dwordx4", s(12, 4), s(0, 2), 48)
    k.emit("s_load_dwordx2", s(10, 2), s(0, 2), 88)
    k.emit("s_load_dwordx2", s(96, 2), s(0, 2), 32)
    k.emit("s_load_dwordx2", s(98, 2), s(0, 2), 64)
    LANE, VX, VW, VG, VK, VV, T0, VA, VF, T1, T2, T3 = 1, 2, 3, 4, 5, 6, 7, 8, 12, 13, 14, 15
    k.emit("v_lshrrev_b32", v(T0), 6, v(0))
    k.emit("v_and_b32", v(LANE), 63, v(0))
    k.emit("v_readfirstlane_b32", s(48), v(T0))
    MAP = os.environ.get("MAP", "0")
    if MAP == "0":
        k.emit("s_and_b32", s(49), s(2), 7)
        k.emit("s_lshl_b32", s(49), s(49), 2)
        k.emit("s_lshr_b32", s(51), s(2), 3)
        k.emit("s_and_b32", s(51), s(51), 3)
        k.emit("s_add_u32", s(49), s(49), s(51))
        k.emit("s_lshr_b32", s(50), s(2), 5)
    elif MAP == "1":
        k.emit("s_and_b32", s(50), s(2), 7)
        k.emit("s_lshr_b32", s(49), s(2), 3)
    elif MAP == "2":
        k.emit("s_and_b32", s(49), s(2), 1)
        k.emit("s_lshl_b32", s(49), s(49), 4)
        k.emit("s_lshr_b32", s(51), s(2), 3)
        k.emit("s_and_b32", s(51), s(51), 15)
        k.emit("s_add_u32", s(49), s(49), s(51))
        k.emit("s_lshr_b32", s(50), s(2), 1)
        k.emit("s_and_b32", s(50), s(50), 3)
        k.emit("s_lshl_b32", s(50), s(50), 1)
        k.emit("s_lshr_b32", s(51), s(2), 7)
        k.emit("s_add_u32", s(50), s(50), s(51))
    SW1024, SW2048, SW65536, SW768, SW22016 = 52, 53, 54, 55, 56
    k.emit("s_lshl_b32", s(SW1024), s(48), 10)
    k.emit("s_lshl_b32", s(SW2048), s(48), 11)
    k.emit("s_lshl_b32", s(SW65536), s(48), 16)
    k.emit("s_mul_i32", s(SW768), s(48), 768)
    k.emit("s_mul_i32", s(SW22016), s(48), 22016)
    k.raw("    s_waitcnt lgkmcnt(0)")

    def srd_dyn(d, base, off_s, nrec_s=None, nrec=None, add=0):
        k.emit("s_add_u32", s(d), s(base), s(off_s))
        k.emit("s_addc_u32", s(d + 1), s(base + 1), 0)
        if add:
            k.emit("s_add_u32", s(d), s(d), add)
            k.emit("s_addc_u32", s(d + 1), s(d + 1), 0)
        k.emit("s_and_b32", s(d + 1), s(d + 1), 0xFFFF)
        if nrec_s is not None:
            k.emit("s_mov_b32", s(d + 2), s(nrec_s))
        else:
            k.emit("s_mov_b32", s(d + 2), nrec)
        k.emit("s_mov_b32", s(d + 3), 0x00020000)

    XN, WQ, GS, US, KS, VS, OS, HS = 16, 20, 24, 28, 32, 36, 40, 44
    k.emit("s_lshl_b32", s(57), s(50), 18)
    srd_dyn(XN, 10, 57, nrec=256 * 1024, add=XN_OFF)
    k.emit("s_lshl_b32", s(57), s(49), 8)
    k.emit("s_sub_u32", s(58), 4 << 20, s(57))
    srd_dyn(WQ, 8, 57, nrec_s=58)
    k.emit("s_lshl_b32", s(59), s(49), 5)
    SH32 = 59
    k.emit("s_sub_u32", s(58), 512 * 2752, s(SH32))
    srd_dyn(GS, 12, SH32, nrec_s=58)
    srd_dyn(US, 14, SH32, nrec_s=58)
    k.emit("s_lshl_b32", s(58), s(49), 19)
    srd_dyn(KS, 4, 58, nrec=131072, add=1536 * 256)
    srd_dyn(VS, 6, 58, nrec=131072, add=1536 * 256)
    k.emit("s_lshl_b32", s(58), s(50), 21)
    k.emit("s_lshl_b32", s(57), s(49), 13)
    k.emit("s_add_u32", s(58), s(58), s(57))
    k.emit("s_sub_u32", s(60), 8 * 262144, s(57))
    srd_dyn(OS, 10, 58, nrec_s=60, add=O_OFF)
    k.emit("s_mul_i32", s(58), s(50), 8 * H_RGS)
    srd_dyn(HS, 10, 58, nrec=8 * H_RGS, add=H_OFF)

    k.emit("s_and_b32", s(57), s(2), 3)
    k.emit("s_mul_i32", s(58), s(57), 1376 * 1024)
    k.emit("s_add_u32", s(4), s(96), s(58))
    k.emit("s_addc_u32", s(5), s(97), 0)
    k.emit("s_sub_u32", s(6), 4096 * 1024, s(58))
    k.emit("s_cmp_eq_u32", s(57), 3)
    k.emit("s_cselect_b32", s(4), s(98), s(4))
    k.emit("s_cselect_b32", s(5), s(99), s(5))
    k.emit("s_cselect_b32", s(6), 1376 * 1024, s(6))
    k.emit("s_and_b32", s(5), s(5), 0xFFFF)
    k.emit("s_mov_b32", s(7), 0x00020000)
    k.emit("s_lshr_b32", s(58), s(2), 3)
    k.emit("s_lshl_b32", s(58), s(58), 3)
    k.emit("s_add_u32", s(58), s(58), s(48))
    k.emit("s_mul_i32", s(97), s(58), 5632)
    HH = T3
    k.emit("v_lshrrev_b32", v(HH), 5, v(LANE))
    k.emit("s_lshl_b32", s(57), s(48), 15)
    k.emit("v_lshl_add_u32", v(VX), v(LANE), 4, s(57))
    k.emit("v_lshrrev_b32", v(T0), 4, v(LANE))
    k.emit("v_bfe_u32", v(T1), v(LANE), 2, 2)
    k.emit("v_xor_b32", v(T1), v(T1), v(T0))
    k.emit("v_lshlrev_b32", v(T1), 6, v(T1))
    k.emit("v_and_b32", v(T2), 3, v(LANE))
    k.emit("v_lshl_add_u32", v(T1), v(T2), 4, v(T1))
    k.emit("v_lshl_add_u32", v(VW), v(T0), 13, v(T1))
    k.emit("v_lshl_add_u32", v(VV), v(T0), 8, v(T1))
    k.emit("s_and_b32", s(57), s(48), 3)
    k.emit("s_lshl_b32", s(57), s(57), 2)
    k.emit("v_add_u32", v(T1), s(57), v(T0))
    k.emit("v_and_b32", v(T2), 15, v(LANE))
    k.emit("v_xor_b32", v(T1), v(T1), v(T2))
    k.emit("v_lshlrev_b32", v(T1), 4, v(T1))
    k.emit("v_lshl_add_u32", v(VK), v(T0), 8, v(T1))
    k.emit("v_mul_u32_u24", v(T0), 43, v(LANE))
    k.emit("v_lshrrev_b32", v(T0), 8, v(T0))
    k.emit("v_mul_u32_u24", v(T1), 6, v(T0))
    k.emit("v_sub_u32", v(T1), v(LANE), v(T1))
    k.emit("v_mul_u32_u24", v(T0), 2752, v(T0))
    k.emit("v_lshrrev_b32", v(T2), 1, v(T1))
    k.emit("v_lshl_add_u32", v(T0), v(T2), 10, v(T0))
    k.emit("v_and_b32", v(T1), 1, v(T1))
    k.emit("v_lshl_add_u32", v(VG), v(T1), 4, v(T0))
    k.emit("v_bfe_u32", v(T0), v(LANE), 2, 2)
    k.emit("v_and_b32", v(T2), 1, v(LANE))
    k.emit("v_lshlrev_b32", v(T1), 4, v(T2))
    k.emit("v_and_b32", v(T2), 2, v(LANE))
    k.emit("v_lshl_add_u32", v(T1), v(T2), 2, v(T1))
    k.emit("v_bfe_u32", v(T2), v(LANE), 4, 1)
    k.emit("v_lshl_add_u32", v(T1), v(T2), 5, v(T1))
    k.emit("v_mul_u32_u24", v(VF), U_REG - G_REG - 32, v(T2))
    k.emit("v_add_u32", v(VF), v(VF), v(T1))
    k.emit("v_lshl_add_u32", v(T2), v(HH), 3, v(T0))
    k.emit("v_mul_u32_u24", v(T2), 96, v(T2))
    k.emit("v_add_u32", v(VF), v(VF), v(T2))
    k.emit("v_add_u32", v(VF), G_REG, v(VF))
    k.emit("v_lshl_add_u32", v(T2), v(HH), 3, v(T0))
    k.emit("v_lshl_add_u32", v(T1), v(T2), 8, v(T1))
    for dt in range(4):
        k.emit("v_xor_b32", v(T2), dt, v(T0))
        k.emit("v_lshl_add_u32", v(VA + dt), v(T2), 6, v(T1))

    ACCQ, ACCF, XF, WF = 16, 80, 128, 176
    QF, SACC, PP, KF, KA = 224, 80, 112, 128, 208
    OACC, VFR, TMP = 16, 160, 192
    MT, MREF, NM, NM1, SUM0, SUM1, FF, FT, THR = 216, 217, 218, 219, 220, 221, 222, 223, 0

    dma_last = {}
    xn_last = {}
    SR8, SR4 = 90, 91
    k.emit("s_and_b32", s(SR8), s(49), 3)
    k.emit("s_lshl_b32", s(SR8), s(SR8), 1)
    k.emit("s_add_u32", s(SR8), s(SR8), s(50))
    k.emit("s_add_u32", s(SR4), s(49), s(50))
    if os.environ.get("AROT", "1") == "0":
        k.emit("s_mov_b32", s(SR8), 0)
        k.emit("s_mov_b32", s(SR4), 0)

    pend_vm = []

    def dma_ops(st):
        ops = []
        if st > 15:
            return ops
        slot = (st % NSLOT) * SLOT
        if st < 8:
            def wq(j):
                if j == 0:
                    k.emit("s_add_u32", s(92), s(SR8), st)
                    k.emit("s_and_b32", s(92), s(92), 7)
                    k.emit("s_lshl_b32", s(93), s(92), 19)
                    k.emit("s_add_u32", s(93), s(93), s(SW65536))
                k.emit("s_add_u32", "m0", s(SW2048), slot + 1024 * j)
                k.emit("s_add_u32", s(61), s(93), j * 32768)
                k.emit("buffer_load_dwordx4", v(VW), s(WQ, 4), s(61), mods="offen lds")

            def gu(which):
                rawi("s_mov_b32 exec_hi, 0xffff")
                k.emit("s_add_u32", "m0", s(SW768), slot + (G_REG if which == 0 else U_REG))
                k.emit("s_mul_i32", s(61), s(92), 64 * 2752)
                k.emit("s_add_u32", s(61), s(61), s(SW22016))
                oid = k.emit("buffer_load_dwordx4", v(VG), s(GS if which == 0 else US, 4), s(61), mods="offen lds")
                rawi("s_mov_b32 exec_hi, -1")
                dma_last[st] = oid

            ops = [lambda: wq(0), lambda: wq(1), lambda: gu(0), lambda: gu(1)]
        else:
            j = st - 8

            def kv(i):
                if i == 0:
                    k.emit("s_add_u32", s(92), s(SR4), j)
                    k.emit("s_and_b32", s(92), s(92), 7)
                    k.emit("s_lshl_b32", s(92), s(92), 14)
                    k.emit("s_add_u32", s(92), s(92), s(SW1024))
                srd, vo = (KS, VK) if i < 2 else (VS, VV)
                k.emit("s_add_u32", "m0", s(SW1024), slot + 8192 * i)
                k.emit("s_add_u32", s(61), s(92), (i & 1) * 8192)
                oid = k.emit("buffer_load_dwordx4", v(vo), s(srd, 4), s(61), mods="offen lds")
                dma_last[st] = oid

            ops = [lambda i=i: kv(i) for i in range(4)]
        return ops

    def xn_ops(st):
        if st > 7:
            return []
        base = XF + 16 * (st % 3)

        def one(t):
            if t == 0:
                k.emit("s_add_u32", s(65), s(SR8), st)
                k.emit("s_and_b32", s(65), s(65), 7)
                k.emit("s_lshl_b32", s(65), s(65), 12)
            oid = k.emit("buffer_load_dwordx4", v(base + 4 * t, 4), v(VX), s(XN, 4), s(65),
                         mods="offen offset:%d" % (1024 * t))
            xn_last[st] = oid

        return [lambda t=t: one(t) for t in range(4)]

    def dma_stage(st):
        for op in dma_ops(st):
            op()

    def xn_loads(st):
        for op in xn_ops(st):
            op()

    def pump(n=1):
        for _ in range(n):
            if pend_vm:
                pend_vm.pop(0)()

    def flush_vm():
        while pend_vm:
            pend_vm.pop(0)()

    state = {"ready": -1}

    def ensure_stage(st, addr_regs):
        assert st == state["ready"] + 1
        flush_vm()
        k.wait_vm(dma_last[st])
        k.emit("s_barrier")
        stamp("B%d" % st)
        state["ready"] = st
        if st > 0 and addr_regs:
            delta = ((st % NSLOT) - ((st - 1) % NSLOT)) * SLOT
            for r in addr_regs:
                k.emit("v_add_u32", v(r), delta & 0xFFFFFFFF, v(r))
        if st >= 1:
            pend_vm.extend(xn_ops(st + 1))
            pend_vm.extend(dma_ops(st + 3))

    stamp("start")
    P1A = [VA, VA + 1, VA + 2, VA + 3, VF]
    PRO = os.environ.get("PRO", "2")
    if PRO == "0":
        dma_stage(0)
        xn_loads(0)
        dma_stage(1)
        xn_loads(1)
        dma_stage(2)
        dma_stage(3)
        ensure_stage(0, P1A)
    elif PRO == "1":
        dma_stage(0)
        xn_loads(0)
        ensure_stage(0, P1A)
        dma_stage(1)
        xn_loads(1)
        dma_stage(2)
        dma_stage(3)
    else:
        dma_stage(0)
        xn_loads(0)
        dma_stage(1)
        xn_loads(1)
        ensure_stage(0, P1A)
        dma_stage(2)
        dma_stage(3)

    wfid = {}

    def p1_reads(step, i):
        st, t = divmod(step, 4)
        base = WF + 28 * (step & 1) + 4 * i
        for u in range(2):
            if i < 4:
                oid = k.emit("ds_read_b64_tr_b16", v(base + 2 * u, 2), v(VA + i), mods="offset:%d" % ((16 * t + 4 * u) * 256))
            else:
                oid = k.emit("ds_read_b64_tr_b16", v(base + 2 * u, 2), v(VF),
                             mods="offset:%d" % ((16 * t + 4 * u) * 96 + 32 * (i - 4)))
        wfid[(step, i)] = oid

    for i in range(7):
        p1_reads(0, i)
    for step in range(32):
        st, t = divmod(step, 4)
        if t == 0:
            flush_vm() if xn_last.get(st) is None else None
            k.wait_vm(xn_last[st])
        if t == 3:
            ensure_stage(st + 1, P1A if st < 7 else None)
        if step == int(os.environ.get("PREF3", "9")):
            def pf3(i):
                if i == 0:
                    k.emit("v_lshlrev_b32", v(T0), 4, v(LANE))
                    k.emit("s_lshl_b32", s(96), s(50), 14)
                    k.emit("s_add_u32", s(96), s(96), s(SW2048))
                k.emit("buffer_load_dwordx4", v(232 + 4 * i, 4), v(T0), s(KS if i < 2 else VS, 4), s(96),
                       mods="offen offset:%d" % (1024 * (i % 2)))
            pend_vm.extend([lambda i=i: pf3(i) for i in range(4)])
        if step == 17 and os.environ.get("PREF2", "1") == "1":
            def pf(i):
                if i == 0:
                    k.emit("v_lshlrev_b32", v(T0), 4, v(LANE))
                if i == 4:
                    k.emit("s_add_u32", s(97), s(97), 4096)
                k.emit("buffer_load_dwordx4", v(232 + 4 * i, 4), v(T0), s(4, 4), s(97), mods="offen offset:%d" % (1024 * (i % 4)))
            pend_vm.extend([lambda i=i: pf(i) for i in range(6)])
        xb = XF + 16 * (st % 3) + 4 * t
        for i in range(7):
            k.wait_lg(wfid[(step, i)])
            acc = ACCQ + 16 * i if i < 4 else ACCF + 16 * (i - 4)
            c = v(acc, 16) if step > 0 else "0"
            k.emit("v_mfma_f32_32x32x16_bf16", v(acc, 16), v(WF + 28 * (step & 1) + 4 * i, 4), v(xb, 4), c)
            if step < 31:
                p1_reads(step + 1, i)
            if i in (1, 4):
                pump()

    stamp("p1end")
    for dt in range(4):
        for p in range(8):
            k.emit("v_cvt_pk_bf16_f32", v(QF + 8 * dt + p), v(ACCQ + 16 * dt + 2 * p), v(ACCQ + 16 * dt + 2 * p + 1))
    k.emit("v_lshrrev_b32", v(T3), 5, v(LANE))
    k.emit("v_and_b32", v(T0), 15, v(LANE))
    k.emit("v_and_b32", v(T1), 31, v(LANE))
    k.emit("v_lshlrev_b32", v(T1), 8, v(T1))
    k.emit("v_add_u32", v(T1), (8 % NSLOT) * SLOT, v(T1))
    for t in range(8):
        k.emit("v_add_u32", v(T2), 2 * t, v(T3))
        k.emit("v_xor_b32", v(T2), v(T2), v(T0))
        k.emit("v_lshl_add_u32", v(KA + t), v(T2), 4, v(T1))
    kfid = {}

    def k_read(j, t):
        oid = k.emit("ds_read_b128", v(KF + 4 * t, 4), v(KA + t), mods="offset:%d" % ((j % 2) * 8192))
        kfid[(j, t)] = oid

    for t in range(8):
        k_read(0, t)
    k.emit("s_mul_i32", s(57), s(48), H_RGS)
    k.emit("v_lshl_add_u32", v(T3), v(LANE), 4, s(57))
    CG = -2.0 * 0.7978845608028654 * LOG2E
    k.emit("s_mov_b32", s(62), f32(0.044715))
    k.emit("s_mov_b32", s(63), f32(CG))
    ET = VFR
    for blk in range(3):
        a = ACCF + 16 * blk
        for r in range(8):
            k.emit("v_mul_f32", v(ET + r), v(a + r), v(a + r))
        for r in range(8):
            k.emit("v_fma_f32", v(ET + r), v(ET + r), s(62), "1.0")
        for r in range(8):
            k.emit("v_mul_f32", v(ET + r), v(ET + r), v(a + r))
        for r in range(8):
            k.emit("v_mul_f32", v(ET + r), s(63), v(ET + r))
        for r in range(8):
            k.emit("v_exp_f32", v(ET + r), v(ET + r))
        for r in range(8):
            k.emit("v_add_f32", v(ET + r), "1.0", v(ET + r))
        for r in range(8):
            k.emit("v_rcp_f32", v(ET + r), v(ET + r))
        for r in range(8):
            k.emit("v_mul_f32", v(ET + r), v(ET + r), v(a + r))
        for r in range(8):
            k.emit("v_mul_f32", v(ET + r), v(ET + r), v(a + 8 + r))
        pk = ET + 16 + 4 * blk
        for p in range(4):
            k.emit("v_cvt_pk_bf16_f32", v(pk + p), v(ET + 2 * p), v(ET + 2 * p + 1))
        k.emit("s_lshl_b32", s(61), s(49), 10)
        k.emit("s_add_u32", s(61), s(61), 32768 * blk)
        if blk == 2:
            k.emit("s_cmp_lt_u32", s(49), 22)
            k.emit("s_cselect_b32", s(64), -1, 0)
            for p in range(4):
                k.emit("v_and_b32", v(pk + p), s(64), v(pk + p))
            k.emit("s_cmp_lt_u32", s(49), 24)
            k.emit("s_cselect_b32", s(61), s(61), 0x7FFFFFF0)
        k.emit("buffer_store_dwordx4", v(pk, 4), v(T3), s(HS, 4), s(61), mods="offen" + os.environ.get("HMOD", ""))

    stamp("p2start")
    KAR = [KA + t for t in range(8)]
    VAR = [VA + dt for dt in range(4)]
    CS = LOG2E / (128.0 ** 0.5)
    TLAZY = 16.0
    k.emit("s_mov_b32", s(62), f32(CS))
    k.emit("s_mov_b32", s(63), f32(TLAZY / CS))
    k.emit("s_mov_b32", s(94), f32(CS))
    k.emit("s_mov_b32", s(95), f32(CS))
    k.emit("v_lshrrev_b32", v(T3), 5, v(LANE))
    k.emit("v_lshlrev_b32", v(T3), 10, v(T3))
    dlt = ((8 % NSLOT) - (7 % NSLOT)) * SLOT + 16384
    for dt in range(4):
        k.emit("v_sub_u32", v(VA + dt), v(VA + dt), v(T3))
        k.emit("v_add_u32", v(VA + dt), dlt & 0xFFFFFFFF, v(VA + dt))
    k.emit("v_mov_b32", v(SUM0), 0)
    k.emit("v_mov_b32", v(SUM1), 0)
    vfid = {}
    vstage = {"cur": 8}

    def wait_lg_safe(oid):
        if oid not in k.lgq:
            return
        n = len(k.lgq) - 1 - k.lgq.index(oid)
        if n > 15:
            k.emit("s_waitcnt", "lgkmcnt(15)")
            k.lgq = k.lgq[-15:]
            return
        k.wait_lg(oid)

    def v_read(j, f):
        st = 8 + j // 2
        if st > vstage["cur"]:
            delta = ((st % NSLOT) - ((st - 1) % NSLOT)) * SLOT
            for r in VAR:
                k.emit("v_add_u32", v(r), delta & 0xFFFFFFFF, v(r))
            vstage["cur"] = st
        t, dt = divmod(f, 4)
        base = VFR + 4 * f
        for u in range(2):
            oid = k.emit("ds_read_b64_tr_b16", v(base + 2 * u, 2), v(VA + dt),
                         mods="offset:%d" % ((32 * (j % 2) + 16 * t + 8 * u) * 256))
        vfid[(j, f)] = oid

    def k_read2(j, t):
        st = 8 + j // 2
        if st > state["ready"]:
            ensure_stage(st, KAR)
        k_read(j, t)

    def qk_mfma(j, t):
        wait_lg_safe(kfid[(j, t)])
        a = SACC + 16 * (j & 1)
        c = v(a, 16) if t > 0 else "0"
        k.emit("v_mfma_f32_32x32x16_bf16", v(a, 16), v(KF + 4 * t, 4), v(QF + 4 * t, 4), c)

    def pv_mfma(j, f):
        t, dt = divmod(f, 4)
        wait_lg_safe(vfid[(j, f)])
        a = OACC + 16 * dt
        c = v(a, 16) if (j > 0 or t > 0) else "0"
        k.emit("v_mfma_f32_32x32x16_bf16", v(a, 16), v(VFR + 4 * f, 4), v(PP + 8 * (j & 1) + 4 * t, 4), c)

    def max_ops(j):
        a = SACC + 16 * (j & 1)
        ops = [lambda: k.emit("v_max3_f32", v(MT), v(a), v(a + 1), v(a + 2))]
        for p in range(6):
            ops.append(lambda p=p: k.emit("v_max3_f32", v(MT), v(a + 3 + 2 * p), v(a + 4 + 2 * p), v(MT)))
        ops.append(lambda: k.emit("v_max_f32", v(MT), v(a + 15), v(MT)))
        return ops

    def exp_ops(j, p):
        a = SACC + 16 * (j & 1)
        lo = TMP + 2 * p
        hi = lo + 1
        PK = os.environ.get("PK", "0")
        ops = []
        if PK in ("1", "3"):
            ops.append(lambda: k.emit("v_pk_fma_f32", v(lo, 2), v(a + 2 * p, 2), s(94, 2), v(NM, 2)))
        else:
            ops.append(lambda: k.emit("v_fma_f32", v(lo), v(a + 2 * p), s(62), v(NM)))
            ops.append(lambda: k.emit("v_fma_f32", v(hi), v(a + 2 * p + 1), s(62), v(NM)))
        ops.append(lambda: k.emit("v_exp_f32", v(lo), v(lo)))
        ops.append(lambda: k.emit("v_exp_f32", v(hi), v(hi)))
        if PK in ("2", "3"):
            ops.append(lambda: k.emit("v_pk_add_f32", v(SUM0, 2), v(SUM0, 2), v(lo, 2)))
        else:
            ops.append(lambda: k.emit("v_add_f32", v(SUM0), v(SUM0), v(lo)))
            ops.append(lambda: k.emit("v_add_f32", v(SUM1), v(SUM1), v(hi)))
        ops.append(lambda: k.emit("v_cvt_pk_bf16_f32", v(PP + 8 * (j & 1) + p), v(lo), v(hi)))
        return ops

    def new_ref(first):
        k.emit("v_mov_b32", v(FT), v(MT))
        k.emit("v_permlane32_swap_b32", v(MT), v(FT))
        k.emit("v_max_f32", v(MT), v(MT), v(FT))
        if first:
            k.emit("v_mov_b32", v(MREF), v(MT))
        else:
            k.emit("v_max_f32", v(MREF), v(MREF), v(MT))
            k.emit("v_mov_b32", v(FF), v(NM))
        k.emit("v_mul_f32", v(NM), f32(-CS), v(MREF))
        k.emit("v_mul_f32", v(NM1), f32(-CS), v(MREF))
        k.emit("v_add_f32", v(THR), s(63), v(MREF))
        if not first:
            k.emit("v_sub_f32", v(FF), v(NM), v(FF))
            k.emit("v_exp_f32", v(FF), v(FF))

    rare = []
    for t in range(8):
        qk_mfma(0, t)
    for j in range(16):
        mops = max_ops(j)
        for f in range(8):
            if j >= 1:
                pv_mfma(j - 1, f)
            if j + 1 <= 15:
                k_read2(j + 1, f)
            if f in (1, 5):
                pump()
            if f >= 3 or j == 0:
                for _ in range(2):
                    if mops:
                        mops.pop(0)()
        while mops:
            mops.pop(0)()
        if j == 0:
            new_ref(True)
        else:
            k.emit("v_cmp_gt_f32", "vcc", v(MT), v(THR))
            k.nop(5)
            k.emit("s_cbranch_vccnz", "L_at_rare%d" % j)
            k.label("L_at_back%d" % j)
            rare.append(j)
        for f in range(8):
            if j + 1 <= 15:
                qk_mfma(j + 1, f)
            v_read(j, f)
            for op in exp_ops(j, f):
                op()
    for f in range(8):
        pv_mfma(15, f)

    stamp("p3end")
    k.emit("v_add_f32", v(SUM0), v(SUM0), v(SUM1))
    k.emit("v_mov_b32", v(SUM1), v(SUM0))
    k.emit("v_permlane32_swap_b32", v(SUM0), v(SUM1))
    k.emit("v_add_f32", v(SUM0), v(SUM0), v(SUM1))
    k.emit("v_rcp_f32", v(SUM0), v(SUM0))
    k.emit("s_lshl_b32", s(57), s(48), 18)
    k.emit("v_lshl_add_u32", v(T3), v(LANE), 4, s(57))
    k.emit("s_mov_b32", s(61), 4096)
    for dt in range(4):
        for a2 in range(2):
            base = OACC + 16 * dt + 8 * a2
            for r in range(8):
                k.emit("v_mul_f32", v(base + r), v(base + r), v(SUM0))
            pk = KF + 4 * (2 * dt + a2)
            for p in range(4):
                k.emit("v_cvt_pk_bf16_f32", v(pk + p), v(base + 2 * p), v(base + 2 * p + 1))
            blk = 2 * dt + a2
            k.emit("buffer_store_dwordx4", v(pk, 4), v(T3), s(OS, 4), s(61) if blk >= 4 else 0,
                   mods="offen offset:%d" % (1024 * (blk % 4)) + os.environ.get("OMOD", ""))
    if STAMP:
        k.wait_vm0()
        stamp("end")
        k.srd(XN, 10, 1 << 20, add=60 << 20)
        k.emit("s_lshl_b32", s(57), s(2), 3)
        k.emit("s_add_u32", s(57), s(57), s(48))
        k.emit("s_lshl_b32", s(57), s(57), 7)
        k.emit("v_mov_b32", v(T0), 0)
        for i in range(len(stamps)):
            k.emit("v_mov_b32", v(T1), s(66 + i))
            k.emit("buffer_store_dword", v(T1), v(T0), s(XN, 4), s(57), mods="offen offset:%d" % (4 * i))
        print("STAMPS", stamps)
    k.emit("s_branch", "L_at_end")
    for j in rare:
        k.label("L_at_rare%d" % j)
        k.nop(16)
        new_ref(False)
        for r in range(64):
            k.emit("v_mul_f32", v(OACC + r), v(OACC + r), v(FF))
        k.emit("v_mul_f32", v(SUM0), v(SUM0), v(FF))
        k.emit("v_mul_f32", v(SUM1), v(SUM1), v(FF))
        k.nop(4)
        k.emit("s_branch", "L_at_back%d" % j)
    k.label("L_at_end")
    return k, 256, 100
```

```python
import struct
from asmlib import Kern, v, s

XN_OFF = 0
O_OFF = 2 << 20
H_OFF = 18 << 20
H_RGS = 88 * 1024
LOG2E = 1.4426950408889634
SLOT = 32768
NSLOT = 5
G_REG = 16384
U_REG = 22656


def f32(x):
    return "0x%08x" % struct.unpack("<I", struct.pack("<f", x))[0]


import os
STAMP = os.environ.get("STAMP", "0") == "1"


def gen_attn():
    k = Kern("attn_kernel")
    stamps = []

    def stamp(name):
        if not STAMP:
            return
        i = len(stamps)
        stamps.append(name)
        k.raw("    s_memtime s[98:99]" if os.environ.get("REALTIME") != "1" else "    s_memrealtime s[98:99]")
        k.wait_lg0()
        k.emit("s_mov_b32", s(66 + i), s(98))

    def rawi(text):
        k.raw("    " + text)
        k.pos += 1

    k.emit("s_cmp_ge_u32", s(2), 256)
    k.emit("s_cbranch_scc1", "L_at_end")
    k.emit("s_load_dwordx4", s(4, 4), s(0, 2), 8)
    k.emit("s_load_dwordx2", s(8, 2), s(0, 2), 24)
    k.emit("s_load_dwordx4", s(12, 4), s(0, 2), 48)
    k.emit("s_load_dwordx2", s(10, 2), s(0, 2), 88)
    k.emit("s_load_dwordx2", s(96, 2), s(0, 2), 32)
    k.emit("s_load_dwordx2", s(98, 2), s(0, 2), 64)
    FLN = os.environ.get("FLN", "0") == "1"
    if FLN:
        k.emit("s_load_dwordx2", s(88, 2), s(0, 2), 0)
        k.emit("s_load_dwordx2", s(86, 2), s(0, 2), 80)
    LANE, VX, VW, VG, VK, VV, T0, VA, VF, T1, T2, T3 = 1, 2, 3, 4, 5, 6, 7, 8, 12, 13, 14, 15
    k.emit("v_lshrrev_b32", v(T0), 6, v(0))
    k.emit("v_and_b32", v(LANE), 63, v(0))
    k.emit("v_readfirstlane_b32", s(48), v(T0))
    MAP = os.environ.get("MAP", "0")
    if MAP == "0":
        k.emit("s_and_b32", s(49), s(2), 7)
        k.emit("s_lshl_b32", s(49), s(49), 2)
        k.emit("s_lshr_b32", s(51), s(2), 3)
        k.emit("s_and_b32", s(51), s(51), 3)
        k.emit("s_add_u32", s(49), s(49), s(51))
        k.emit("s_lshr_b32", s(50), s(2), 5)
    elif MAP == "1":
        k.emit("s_and_b32", s(50), s(2), 7)
        k.emit("s_lshr_b32", s(49), s(2), 3)
    elif MAP == "2":
        k.emit("s_and_b32", s(49), s(2), 1)
        k.emit("s_lshl_b32", s(49), s(49), 4)
        k.emit("s_lshr_b32", s(51), s(2), 3)
        k.emit("s_and_b32", s(51), s(51), 15)
        k.emit("s_add_u32", s(49), s(49), s(51))
        k.emit("s_lshr_b32", s(50), s(2), 1)
        k.emit("s_and_b32", s(50), s(50), 3)
        k.emit("s_lshl_b32", s(50), s(50), 1)
        k.emit("s_lshr_b32", s(51), s(2), 7)
        k.emit("s_add_u32", s(50), s(50), s(51))
    SW1024, SW2048, SW65536, SW768, SW22016 = 52, 53, 54, 55, 56
    k.emit("s_lshl_b32", s(SW1024), s(48), 10)
    k.emit("s_lshl_b32", s(SW2048), s(48), 11)
    k.emit("s_lshl_b32", s(SW65536), s(48), 16)
    k.emit("s_mul_i32", s(SW768), s(48), 768)
    k.emit("s_mul_i32", s(SW22016), s(48), 22016)
    k.raw("    s_waitcnt lgkmcnt(0)")

    def srd_dyn(d, base, off_s, nrec_s=None, nrec=None, add=0):
        k.emit("s_add_u32", s(d), s(base), s(off_s))
        k.emit("s_addc_u32", s(d + 1), s(base + 1), 0)
        if add:
            k.emit("s_add_u32", s(d), s(d), add)
            k.emit("s_addc_u32", s(d + 1), s(d + 1), 0)
        k.emit("s_and_b32", s(d + 1), s(d + 1), 0xFFFF)
        if nrec_s is not None:
            k.emit("s_mov_b32", s(d + 2), s(nrec_s))
        else:
            k.emit("s_mov_b32", s(d + 2), nrec)
        k.emit("s_mov_b32", s(d + 3), 0x00020000)

    XN, WQ, GS, US, KS, VS, OS, HS = 16, 20, 24, 28, 32, 36, 40, 44
    k.emit("s_lshl_b32", s(57), s(50), 18)
    srd_dyn(XN, 10, 57, nrec=256 * 1024, add=XN_OFF)
    k.emit("s_lshl_b32", s(57), s(49), 8)
    k.emit("s_sub_u32", s(58), 4 << 20, s(57))
    srd_dyn(WQ, 8, 57, nrec_s=58)
    k.emit("s_lshl_b32", s(59), s(49), 5)
    SH32 = 59
    k.emit("s_sub_u32", s(58), 512 * 2752, s(SH32))
    srd_dyn(GS, 12, SH32, nrec_s=58)
    srd_dyn(US, 14, SH32, nrec_s=58)
    k.emit("s_lshl_b32", s(58), s(49), 19)
    srd_dyn(KS, 4, 58, nrec=131072, add=1536 * 256)
    srd_dyn(VS, 6, 58, nrec=131072, add=1536 * 256)
    k.emit("s_lshl_b32", s(58), s(50), 21)
    k.emit("s_lshl_b32", s(57), s(49), 13)
    k.emit("s_add_u32", s(58), s(58), s(57))
    k.emit("s_sub_u32", s(60), 8 * 262144, s(57))
    srd_dyn(OS, 10, 58, nrec_s=60, add=O_OFF)
    k.emit("s_mul_i32", s(58), s(50), 8 * H_RGS)
    srd_dyn(HS, 10, 58, nrec=8 * H_RGS, add=H_OFF)

    k.emit("s_and_b32", s(57), s(2), 3)
    k.emit("s_mul_i32", s(58), s(57), 1376 * 1024)
    k.emit("s_add_u32", s(4), s(96), s(58))
    k.emit("s_addc_u32", s(5), s(97), 0)
    k.emit("s_sub_u32", s(6), 4096 * 1024, s(58))
    k.emit("s_cmp_eq_u32", s(57), 3)
    k.emit("s_cselect_b32", s(4), s(98), s(4))
    k.emit("s_cselect_b32", s(5), s(99), s(5))
    k.emit("s_cselect_b32", s(6), 1376 * 1024, s(6))
    k.emit("s_and_b32", s(5), s(5), 0xFFFF)
    k.emit("s_mov_b32", s(7), 0x00020000)
    k.emit("s_lshr_b32", s(58), s(2), 3)
    k.emit("s_lshl_b32", s(58), s(58), 3)
    k.emit("s_add_u32", s(58), s(58), s(48))
    k.emit("s_mul_i32", s(97), s(58), 5632)
    HH = T3
    k.emit("v_lshrrev_b32", v(HH), 5, v(LANE))
    k.emit("s_lshl_b32", s(57), s(48), 15)
    k.emit("v_lshl_add_u32", v(VX), v(LANE), 4, s(57))
    k.emit("v_lshrrev_b32", v(T0), 4, v(LANE))
    k.emit("v_bfe_u32", v(T1), v(LANE), 2, 2)
    k.emit("v_xor_b32", v(T1), v(T1), v(T0))
    k.emit("v_lshlrev_b32", v(T1), 6, v(T1))
    k.emit("v_and_b32", v(T2), 3, v(LANE))
    k.emit("v_lshl_add_u32", v(T1), v(T2), 4, v(T1))
    k.emit("v_lshl_add_u32", v(VW), v(T0), 13, v(T1))
    k.emit("v_lshl_add_u32", v(VV), v(T0), 8, v(T1))
    k.emit("s_and_b32", s(57), s(48), 3)
    k.emit("s_lshl_b32", s(57), s(57), 2)
    k.emit("v_add_u32", v(T1), s(57), v(T0))
    k.emit("v_and_b32", v(T2), 15, v(LANE))
    k.emit("v_xor_b32", v(T1), v(T1), v(T2))
    k.emit("v_lshlrev_b32", v(T1), 4, v(T1))
    k.emit("v_lshl_add_u32", v(VK), v(T0), 8, v(T1))
    k.emit("v_mul_u32_u24", v(T0), 43, v(LANE))
    k.emit("v_lshrrev_b32", v(T0), 8, v(T0))
    k.emit("v_mul_u32_u24", v(T1), 6, v(T0))
    k.emit("v_sub_u32", v(T1), v(LANE), v(T1))
    k.emit("v_mul_u32_u24", v(T0), 2752, v(T0))
    k.emit("v_lshrrev_b32", v(T2), 1, v(T1))
    k.emit("v_lshl_add_u32", v(T0), v(T2), 10, v(T0))
    k.emit("v_and_b32", v(T1), 1, v(T1))
    k.emit("v_lshl_add_u32", v(VG), v(T1), 4, v(T0))
    k.emit("v_bfe_u32", v(T0), v(LANE), 2, 2)
    k.emit("v_and_b32", v(T2), 1, v(LANE))
    k.emit("v_lshlrev_b32", v(T1), 4, v(T2))
    k.emit("v_and_b32", v(T2), 2, v(LANE))
    k.emit("v_lshl_add_u32", v(T1), v(T2), 2, v(T1))
    k.emit("v_bfe_u32", v(T2), v(LANE), 4, 1)
    k.emit("v_lshl_add_u32", v(T1), v(T2), 5, v(T1))
    k.emit("v_mul_u32_u24", v(VF), U_REG - G_REG - 32, v(T2))
    k.emit("v_add_u32", v(VF), v(VF), v(T1))
    k.emit("v_lshl_add_u32", v(T2), v(HH), 3, v(T0))
    k.emit("v_mul_u32_u24", v(T2), 96, v(T2))
    k.emit("v_add_u32", v(VF), v(VF), v(T2))
    k.emit("v_add_u32", v(VF), G_REG, v(VF))
    k.emit("v_lshl_add_u32", v(T2), v(HH), 3, v(T0))
    k.emit("v_lshl_add_u32", v(T1), v(T2), 8, v(T1))
    for dt in range(4):
        k.emit("v_xor_b32", v(T2), dt, v(T0))
        k.emit("v_lshl_add_u32", v(VA + dt), v(T2), 6, v(T1))

    ACCQ, ACCF, XF, WF = 16, 80, 128, 176
    QF, SACC, PP, KF, KA = 224, 80, 112, 128, 208
    OACC, VFR, TMP = 16, 160, 192
    MT, MREF, NM, NM1, SUM0, SUM1, FF, FT, THR = 216, 217, 218, 219, 220, 221, 222, 223, 0

    dma_last = {}
    xn_last = {}
    SR8, SR4 = 90, 91
    k.emit("s_and_b32", s(SR8), s(49), 3)
    k.emit("s_lshl_b32", s(SR8), s(SR8), 1)
    k.emit("s_add_u32", s(SR8), s(SR8), s(50))
    k.emit("s_add_u32", s(SR4), s(49), s(50))
    if os.environ.get("AROT", "1") == "0":
        k.emit("s_mov_b32", s(SR8), 0)
        k.emit("s_mov_b32", s(SR4), 0)

    pend_vm = []

    def dma_ops(st):
        ops = []
        if st > 15:
            return ops
        slot = (st % NSLOT) * SLOT
        if st < 8:
            def wq(j):
                if j == 0:
                    k.emit("s_add_u32", s(92), s(SR8), st)
                    k.emit("s_and_b32", s(92), s(92), 7)
                    k.emit("s_lshl_b32", s(93), s(92), 19)
                    k.emit("s_add_u32", s(93), s(93), s(SW65536))
                k.emit("s_add_u32", "m0", s(SW2048), slot + 1024 * j)
                k.emit("s_add_u32", s(61), s(93), j * 32768)
                k.emit("buffer_load_dwordx4", v(VW), s(WQ, 4), s(61), mods="offen lds")

            def gu(which):
                rawi("s_mov_b32 exec_hi, 0xffff")
                k.emit("s_add_u32", "m0", s(SW768), slot + (G_REG if which == 0 else U_REG))
                k.emit("s_mul_i32", s(61), s(92), 64 * 2752)
                k.emit("s_add_u32", s(61), s(61), s(SW22016))
                oid = k.emit("buffer_load_dwordx4", v(VG), s(GS if which == 0 else US, 4), s(61), mods="offen lds")
                rawi("s_mov_b32 exec_hi, -1")
                dma_last[st] = oid

            ops = [lambda: wq(0), lambda: wq(1), lambda: gu(0), lambda: gu(1)]
        else:
            j = st - 8

            def kv(i):
                if i == 0:
                    k.emit("s_add_u32", s(92), s(SR4), j)
                    k.emit("s_and_b32", s(92), s(92), 7)
                    k.emit("s_lshl_b32", s(92), s(92), 14)
                    k.emit("s_add_u32", s(92), s(92), s(SW1024))
                srd, vo = (KS, VK) if i < 2 else (VS, VV)
                k.emit("s_add_u32", "m0", s(SW1024), slot + 8192 * i)
                k.emit("s_add_u32", s(61), s(92), (i & 1) * 8192)
                oid = k.emit("buffer_load_dwordx4", v(vo), s(srd, 4), s(61), mods="offen lds")
                dma_last[st] = oid

            ops = [lambda i=i: kv(i) for i in range(4)]
        return ops

    def xn_ops(st):
        if st > 7:
            return []
        base = XF + 16 * (st % 3)

        def one(t):
            if t == 0:
                k.emit("s_add_u32", s(65), s(SR8), st)
                k.emit("s_and_b32", s(65), s(65), 7)
                k.emit("s_lshl_b32", s(65), s(65), 12)
            oid = k.emit("buffer_load_dwordx4", v(base + 4 * t, 4), v(VX), s(XN, 4), s(65),
                         mods="offen offset:%d" % (1024 * t))
            xn_last[st] = oid

        return [lambda t=t: one(t) for t in range(4)]

    def dma_stage(st):
        for op in dma_ops(st):
            op()

    def xn_loads(st):
        for op in xn_ops(st):
            op()

    def pump(n=1):
        for _ in range(n):
            if pend_vm:
                pend_vm.pop(0)()

    def flush_vm():
        while pend_vm:
            pend_vm.pop(0)()

    state = {"ready": -1}

    def ensure_stage(st, addr_regs):
        assert st == state["ready"] + 1
        flush_vm()
        k.wait_vm(dma_last[st])
        k.emit("s_barrier")
        stamp("B%d" % st)
        state["ready"] = st
        if st > 0 and addr_regs:
            delta = ((st % NSLOT) - ((st - 1) % NSLOT)) * SLOT
            for r in addr_regs:
                k.emit("v_add_u32", v(r), delta & 0xFFFFFFFF, v(r))
        if st >= 1:
            pend_vm.extend(xn_ops(st + 1))
            pend_vm.extend(dma_ops(st + 3))
        if st == 13 and os.environ.get("PREF2", "2") == "2":
            def pf(i):
                if i == 0:
                    k.emit("v_lshlrev_b32", v(T0), 4, v(LANE))
                    k.emit("s_lshl_b32", s(96), s(48), 12)
                k.emit("s_add_u32", "m0", s(96), (11 % NSLOT) * SLOT + 1024 * (i % 4))
                k.emit("s_add_u32", s(61), s(97), 1024 * i)
                k.emit("buffer_load_dwordx4", v(T0), s(4, 4), s(61), mods="offen lds")
            pend_vm.extend([lambda i=i: pf(i) for i in range(6)])

    if os.environ.get("PRIO", "0") == "1":
        k.emit("s_cmp_ge_u32", s(48), 4)
        k.emit("s_cbranch_scc0", "L_at_prio")
        k.emit("s_setprio", 1)
        k.label("L_at_prio")
    stamp("start")
    P1A = [VA, VA + 1, VA + 2, VA + 3, VF]
    if not FLN:
        dma_stage(0)
        xn_loads(0)
        dma_stage(1)
        xn_loads(1)
        ensure_stage(0, P1A)
        dma_stage(2)
        dma_stage(3)
    else:
        L = 16
        k.srd(80, 88, 2048 * 1024)
        k.emit("s_and_b32", s(57), s(2), 31)
        k.emit("s_lshl_b32", s(57), s(57), 3)
        k.emit("s_add_u32", s(57), s(57), s(48))
        k.emit("s_lshl_b32", s(58), s(50), 8)
        k.emit("s_add_u32", s(58), s(58), s(57))
        k.emit("s_lshl_b32", s(58), s(58), 10)
        k.emit("v_lshlrev_b32", v(L), 4, v(LANE))
        o = k.emit("buffer_load_dwordx4", v(L + 4, 4), v(L), s(80, 4), s(58), mods="offen")
        k.wait_vm(o)
        X8 = L + 8
        for i in range(4):
            k.emit("v_lshlrev_b32", v(X8 + 2 * i), 16, v(L + 4 + i))
            k.emit("v_and_b32", v(X8 + 1 + 2 * i), 0xFFFF0000, v(L + 4 + i))
        A, B, C, D, E = L + 16, L + 17, L + 18, L + 19, L + 20

        def allreduce(val, tmp):
            for x in (1, 2, 4, 8, 16):
                oo = k.emit("ds_swizzle_b32", v(tmp), v(val), mods="offset:0x%04x" % ((x << 10) | 0x1F))
                k.wait_lg(oo)
                k.emit("v_add_f32", v(val), v(val), v(tmp))
            k.emit("v_mov_b32", v(tmp), v(val))
            k.emit("v_permlane32_swap_b32", v(val), v(tmp))
            k.emit("v_add_f32", v(val), v(val), v(tmp))

        k.emit("v_add_f32", v(A), v(X8), v(X8 + 1))
        for i in range(2, 8):
            k.emit("v_add_f32", v(A), v(A), v(X8 + i))
        allreduce(A, B)
        k.emit("v_mul_f32", v(A), f32(1.0 / 512), v(A))
        k.emit("v_sub_f32", v(C), v(X8), v(A))
        k.emit("v_mul_f32", v(D), v(C), v(C))
        for i in range(1, 8):
            k.emit("v_sub_f32", v(C), v(X8 + i), v(A))
            k.emit("v_fmac_f32", v(D), v(C), v(C))
        allreduce(D, B)
        k.emit("v_mul_f32", v(D), f32(1.0 / 512), v(D))
        k.emit("v_cvt_pk_bf16_f32", v(E), v(A), v(D))
        k.emit("v_lshlrev_b32", v(A), 16, v(E))
        k.emit("v_and_b32", v(D), 0xFFFF0000, v(E))
        k.emit("v_add_f32", v(D), f32(1e-5), v(D))
        k.emit("v_cvt_pk_bf16_f32", v(E), v(D), v(D))
        k.emit("v_lshlrev_b32", v(D), 16, v(E))
        k.emit("v_sqrt_f32", v(D), v(D))
        k.emit("v_cvt_pk_bf16_f32", v(E), v(D), v(D))
        k.emit("v_lshlrev_b32", v(D), 16, v(E))
        k.emit("v_rcp_f32", v(D), v(D))
        R4 = L + 24
        for i in range(4):
            k.emit("v_sub_f32", v(B), v(X8 + 2 * i), v(A))
            k.emit("v_sub_f32", v(C), v(X8 + 1 + 2 * i), v(A))
            k.emit("v_cvt_pk_bf16_f32", v(E), v(B), v(C))
            k.emit("v_lshlrev_b32", v(B), 16, v(E))
            k.emit("v_and_b32", v(C), 0xFFFF0000, v(E))
            k.emit("v_mul_f32", v(B), v(B), v(D))
            k.emit("v_mul_f32", v(C), v(C), v(D))
            k.emit("v_cvt_pk_bf16_f32", v(R4 + i), v(B), v(C))
        k.emit("v_lshrrev_b32", v(L + 1), 1, v(LANE))
        k.emit("v_lshlrev_b32", v(L + 1), 10, v(L + 1))
        k.emit("v_and_b32", v(L + 2), 1, v(LANE))
        k.emit("v_lshl_add_u32", v(L + 1), v(L + 2), 9, v(L + 1))
        k.emit("s_lshr_b32", s(58), s(57), 5)
        k.emit("s_lshl_b32", s(58), s(58), 15)
        k.emit("s_and_b32", s(57), s(57), 31)
        k.emit("s_lshl_b32", s(57), s(57), 4)
        k.emit("s_add_u32", s(58), s(58), s(57))
        so = k.emit("buffer_store_dwordx4", v(R4, 4), v(L + 1), s(XN, 4), s(58), mods="offen sc1")
        dma_stage(0)
        dma_stage(1)
        dma_stage(2)
        dma_stage(3)
        k.wait_vm(so)
        k.emit("s_barrier")
        k.srd(80, 86, 256)
        k.emit("s_lshl_b32", s(58), s(50), 5)
        k.emit("v_mov_b32", v(L), 0)
        k.emit("v_mov_b32", v(L + 1), 1)
        k.emit("s_cmp_lg_u32", s(48), 0)
        k.emit("s_cbranch_scc1", "L_at_nopoll")
        k.raw("    s_mov_b64 exec, 1")
        k.raw("    buffer_atomic_add v%d, v%d, s[80:83], s58 offen sc1" % (L + 1, L))
        k.raw("    s_mov_b32 s57, 0")
        k.label("L_at_poll")
        k.raw("    buffer_load_dword v%d, v%d, s[80:83], s58 offen sc1" % (L + 2, L))
        k.raw("    s_waitcnt vmcnt(0)")
        k.raw("    s_nop 1")
        k.raw("    v_readfirstlane_b32 s60, v%d" % (L + 2))
        k.raw("    s_nop 3")
        k.raw("    s_add_u32 s57, s57, 1")
        k.raw("    s_cmp_ge_u32 s60, 32")
        k.raw("    s_cbranch_scc1 L_at_polldone")
        k.raw("    s_sleep 1")
        k.raw("    s_cmp_lt_u32 s57, 0x40000")
        k.raw("    s_cbranch_scc1 L_at_poll")
        k.label("L_at_polldone")
        k.raw("    s_mov_b64 exec, -1")
        k.label("L_at_nopoll")
        k.nop(4)
        k.emit("s_barrier")
        xn_loads(0)
        xn_loads(1)
        ensure_stage(0, P1A)

    wfid = {}

    def p1_reads(step, i):
        st, t = divmod(step, 4)
        base = WF + 28 * (step & 1) + 4 * i
        for u in range(2):
            if i < 4:
                oid = k.emit("ds_read_b64_tr_b16", v(base + 2 * u, 2), v(VA + i), mods="offset:%d" % ((16 * t + 4 * u) * 256))
            else:
                oid = k.emit("ds_read_b64_tr_b16", v(base + 2 * u, 2), v(VF),
                             mods="offset:%d" % ((16 * t + 4 * u) * 96 + 32 * (i - 4)))
        wfid[(step, i)] = oid

    for i in range(7):
        p1_reads(0, i)
    for step in range(32):
        st, t = divmod(step, 4)
        if t == 0:
            flush_vm() if xn_last.get(st) is None else None
            k.wait_vm(xn_last[st])
        if t == 3:
            ensure_stage(st + 1, P1A if st < 7 else None)
        if step == int(os.environ.get("PREF3", "-1")):
            def pf3(i):
                if i == 0:
                    k.emit("v_lshlrev_b32", v(T0), 4, v(LANE))
                    k.emit("s_lshl_b32", s(96), s(50), 14)
                    k.emit("s_add_u32", s(96), s(96), s(SW2048))
                k.emit("buffer_load_dwordx4", v(232 + 4 * i, 4), v(T0), s(KS if i < 2 else VS, 4), s(96),
                       mods="offen offset:%d" % (1024 * (i % 2)))
            pend_vm.extend([lambda i=i: pf3(i) for i in range(4)])
        if step == 17 and os.environ.get("PREF2", "2") == "1":
            def pf(i):
                if i == 0:
                    k.emit("v_lshlrev_b32", v(T0), 4, v(LANE))
                if i == 4:
                    k.emit("s_add_u32", s(97), s(97), 4096)
                k.emit("buffer_load_dwordx4", v(232 + 4 * i, 4), v(T0), s(4, 4), s(97), mods="offen offset:%d" % (1024 * (i % 4)))
            pend_vm.extend([lambda i=i: pf(i) for i in range(6)])
        xb = XF + 16 * (st % 3) + 4 * t
        for i in range(7):
            k.wait_lg(wfid[(step, i)])
            acc = ACCQ + 16 * i if i < 4 else ACCF + 16 * (i - 4)
            c = v(acc, 16) if step > 0 else "0"
            k.emit("v_mfma_f32_32x32x16_bf16", v(acc, 16), v(WF + 28 * (step & 1) + 4 * i, 4), v(xb, 4), c)
            if step < 31:
                p1_reads(step + 1, i)
            if i in (1, 4):
                pump()

    stamp("p1end")
    for r in range(64):
        k.emit("v_mul_f32", v(ACCQ + r), f32(LOG2E / (128.0 ** 0.5)), v(ACCQ + r))
    for dt in range(4):
        for p in range(8):
            k.emit("v_cvt_pk_bf16_f32", v(QF + 8 * dt + p), v(ACCQ + 16 * dt + 2 * p), v(ACCQ + 16 * dt + 2 * p + 1))
    k.emit("v_lshrrev_b32", v(T3), 5, v(LANE))
    k.emit("v_and_b32", v(T0), 15, v(LANE))
    k.emit("v_and_b32", v(T1), 31, v(LANE))
    k.emit("v_lshlrev_b32", v(T1), 8, v(T1))
    k.emit("v_add_u32", v(T1), (8 % NSLOT) * SLOT, v(T1))
    for t in range(8):
        k.emit("v_add_u32", v(T2), 2 * t, v(T3))
        k.emit("v_xor_b32", v(T2), v(T2), v(T0))
        k.emit("v_lshl_add_u32", v(KA + t), v(T2), 4, v(T1))
    kfid = {}

    def k_read(j, t):
        oid = k.emit("ds_read_b128", v(KF + 4 * t, 4), v(KA + t), mods="offset:%d" % ((j % 2) * 8192))
        kfid[(j, t)] = oid

    for t in range(8):
        k_read(0, t)
    k.emit("s_mul_i32", s(57), s(48), H_RGS)
    k.emit("v_lshl_add_u32", v(T3), v(LANE), 4, s(57))
    CG = -2.0 * 0.7978845608028654 * LOG2E
    k.emit("s_mov_b32", s(62), f32(0.044715))
    k.emit("s_mov_b32", s(63), f32(CG))
    ET = VFR
    for blk in range(3):
        a = ACCF + 16 * blk
        for r in range(8):
            k.emit("v_mul_f32", v(ET + r), v(a + r), v(a + r))
        for r in range(8):
            k.emit("v_fma_f32", v(ET + r), v(ET + r), s(62), "1.0")
        for r in range(8):
            k.emit("v_mul_f32", v(ET + r), v(ET + r), v(a + r))
        for r in range(8):
            k.emit("v_mul_f32", v(ET + r), s(63), v(ET + r))
        for r in range(8):
            k.emit("v_exp_f32", v(ET + r), v(ET + r))
        for r in range(8):
            k.emit("v_add_f32", v(ET + r), "1.0", v(ET + r))
        for r in range(8):
            k.emit("v_rcp_f32", v(ET + r), v(ET + r))
        for r in range(8):
            k.emit("v_mul_f32", v(ET + r), v(ET + r), v(a + r))
        for r in range(8):
            k.emit("v_mul_f32", v(ET + r), v(ET + r), v(a + 8 + r))
        pk = ET + 16 + 4 * blk
        for p in range(4):
            k.emit("v_cvt_pk_bf16_f32", v(pk + p), v(ET + 2 * p), v(ET + 2 * p + 1))
        k.emit("s_lshl_b32", s(61), s(49), 10)
        k.emit("s_add_u32", s(61), s(61), 32768 * blk)
        if blk == 2:
            k.emit("s_cmp_lt_u32", s(49), 22)
            k.emit("s_cselect_b32", s(64), -1, 0)
            for p in range(4):
                k.emit("v_and_b32", v(pk + p), s(64), v(pk + p))
            k.emit("s_cmp_lt_u32", s(49), 24)
            k.emit("s_cselect_b32", s(61), s(61), 0x7FFFFFF0)
        k.emit("buffer_store_dwordx4", v(pk, 4), v(T3), s(HS, 4), s(61), mods="offen" + os.environ.get("HMOD", " sc1"))

    stamp("p2start")
    KAR = [KA + t for t in range(8)]
    VAR = [VA + dt for dt in range(4)]
    CS = LOG2E / (128.0 ** 0.5)
    TLAZY = 16.0
    k.emit("s_mov_b32", s(62), f32(CS))
    k.emit("s_mov_b32", s(63), f32(TLAZY / CS))
    k.emit("s_mov_b32", s(94), f32(CS))
    k.emit("s_mov_b32", s(95), f32(CS))
    k.emit("v_lshrrev_b32", v(T3), 5, v(LANE))
    k.emit("v_lshlrev_b32", v(T3), 10, v(T3))
    dlt = ((8 % NSLOT) - (7 % NSLOT)) * SLOT + 16384
    for dt in range(4):
        k.emit("v_sub_u32", v(VA + dt), v(VA + dt), v(T3))
        k.emit("v_add_u32", v(VA + dt), dlt & 0xFFFFFFFF, v(VA + dt))
    k.emit("v_mov_b32", v(SUM0), 0)
    k.emit("v_mov_b32", v(SUM1), 0)
    vfid = {}
    vstage = {"cur": 8}

    def wait_lg_safe(oid):
        if oid not in k.lgq:
            return
        n = len(k.lgq) - 1 - k.lgq.index(oid)
        if n > 15:
            k.emit("s_waitcnt", "lgkmcnt(15)")
            k.lgq = k.lgq[-15:]
            return
        k.wait_lg(oid)

    def v_read(j, f):
        st = 8 + j // 2
        if st > vstage["cur"]:
            delta = ((st % NSLOT) - ((st - 1) % NSLOT)) * SLOT
            for r in VAR:
                k.emit("v_add_u32", v(r), delta & 0xFFFFFFFF, v(r))
            vstage["cur"] = st
        t, dt = divmod(f, 4)
        base = VFR + 4 * f
        for u in range(2):
            oid = k.emit("ds_read_b64_tr_b16", v(base + 2 * u, 2), v(VA + dt),
                         mods="offset:%d" % ((32 * (j % 2) + 16 * t + 8 * u) * 256))
        vfid[(j, f)] = oid

    def k_read2(j, t):
        st = 8 + j // 2
        if st > state["ready"]:
            ensure_stage(st, KAR)
        k_read(j, t)

    W2 = os.environ.get("W2", "1") == "1"

    def qk_mfma(j, t):
        wait_lg_safe(kfid[(j, t | 1)] if W2 else kfid[(j, t)])
        a = SACC + 16 * (j & 1)
        c = v(a, 16) if t > 0 else ("0" if j == 0 else v(TMP, 16))
        k.emit("v_mfma_f32_32x32x16_bf16", v(a, 16), v(KF + 4 * t, 4), v(QF + 4 * t, 4), c)

    def pv_mfma(j, f):
        t, dt = divmod(f, 4)
        wait_lg_safe(vfid[(j, f | 1)] if W2 else vfid[(j, f)])
        a = OACC + 16 * dt
        c = v(a, 16) if (j > 0 or t > 0) else "0"
        k.emit("v_mfma_f32_32x32x16_bf16", v(a, 16), v(VFR + 4 * f, 4), v(PP + 8 * (j & 1) + 4 * t, 4), c)

    def max_ops(j):
        a = SACC + 16 * (j & 1)
        ops = [lambda: k.emit("v_max3_f32", v(MT), v(a), v(a + 1), v(a + 2))]
        for p in range(6):
            ops.append(lambda p=p: k.emit("v_max3_f32", v(MT), v(a + 3 + 2 * p), v(a + 4 + 2 * p), v(MT)))
        ops.append(lambda: k.emit("v_max_f32", v(MT), v(a + 15), v(MT)))
        return ops

    def exp_ops(j, p):
        a = SACC + 16 * (j & 1)
        lo = a + 2 * p
        hi = lo + 1
        return [
            lambda: k.emit("v_exp_f32", v(lo), v(lo)),
            lambda: k.emit("v_exp_f32", v(hi), v(hi)),
            lambda: k.emit("v_add_f32", v(SUM0), v(SUM0), v(lo)),
            lambda: k.emit("v_add_f32", v(SUM1), v(SUM1), v(hi)),
            lambda: k.emit("v_cvt_pk_bf16_f32", v(PP + 8 * (j & 1) + p), v(lo), v(hi)),
        ]

    def new_ref(j):
        first = j == 0
        a = SACC + 16 * (j & 1)
        k.emit("v_mov_b32", v(FT), v(MT))
        k.emit("v_permlane32_swap_b32", v(MT), v(FT))
        k.emit("v_max_f32", v(MT), v(MT), v(FT))
        if not first:
            k.emit("v_max_f32", v(MT), 0, v(MT))
        for r in range(16):
            k.emit("v_sub_f32", v(a + r), v(a + r), v(MT))
        for r in range(16):
            if first:
                k.emit("v_sub_f32", v(TMP + r), 0, v(MT))
            else:
                k.emit("v_sub_f32", v(TMP + r), v(TMP + r), v(MT))
        if not first:
            k.emit("v_sub_f32", v(FF), 0, v(MT))
            k.emit("v_exp_f32", v(FF), v(FF))

    rare = []
    for t in range(8):
        qk_mfma(0, t)
    for j in range(16):
        mops = max_ops(j)
        for f in range(8):
            if j >= 1:
                pv_mfma(j - 1, f)
            if j + 1 <= 15:
                k_read2(j + 1, f)
            if f in (1, 5):
                pump()
            if f >= 3 or j == 0:
                for _ in range(2):
                    if mops:
                        mops.pop(0)()
        while mops:
            mops.pop(0)()
        if j == 0:
            new_ref(0)
        else:
            k.emit("v_cmp_lt_f32", "vcc", f32(TLAZY), v(MT))
            k.nop(5)
            k.emit("s_cbranch_vccnz", "L_at_rare%d" % j)
            k.label("L_at_back%d" % j)
            rare.append(j)
        for f in range(8):
            if j + 1 <= 15:
                qk_mfma(j + 1, f)
            v_read(j, f)
            for op in exp_ops(j, f):
                op()
    for f in range(8):
        pv_mfma(15, f)

    stamp("p3end")
    k.emit("v_add_f32", v(SUM0), v(SUM0), v(SUM1))
    k.emit("v_mov_b32", v(SUM1), v(SUM0))
    k.emit("v_permlane32_swap_b32", v(SUM0), v(SUM1))
    k.emit("v_add_f32", v(SUM0), v(SUM0), v(SUM1))
    k.emit("v_rcp_f32", v(SUM0), v(SUM0))
    k.emit("s_lshl_b32", s(57), s(48), 18)
    k.emit("v_lshl_add_u32", v(T3), v(LANE), 4, s(57))
    k.emit("s_mov_b32", s(61), 4096)
    for dt in range(4):
        for a2 in range(2):
            base = OACC + 16 * dt + 8 * a2
            for r in range(8):
                k.emit("v_mul_f32", v(base + r), v(base + r), v(SUM0))
            pk = KF + 4 * (2 * dt + a2)
            for p in range(4):
                k.emit("v_cvt_pk_bf16_f32", v(pk + p), v(base + 2 * p), v(base + 2 * p + 1))
            blk = 2 * dt + a2
            k.emit("buffer_store_dwordx4", v(pk, 4), v(T3), s(OS, 4), s(61) if blk >= 4 else 0,
                   mods="offen offset:%d" % (1024 * (blk % 4)) + os.environ.get("OMOD", " sc1"))
    if STAMP:
        k.wait_vm0()
        stamp("end")
        k.srd(XN, 10, 1 << 20, add=60 << 20)
        k.emit("s_lshl_b32", s(57), s(2), 3)
        k.emit("s_add_u32", s(57), s(57), s(48))
        k.emit("s_lshl_b32", s(57), s(57), 7)
        k.emit("v_mov_b32", v(T0), 0)
        for i in range(len(stamps)):
            k.emit("v_mov_b32", v(T1), s(66 + i))
            k.emit("buffer_store_dword", v(T1), v(T0), s(XN, 4), s(57), mods="offen offset:%d" % (4 * i))
        print("STAMPS", stamps)
    k.emit("s_branch", "L_at_end")
    for j in rare:
        k.label("L_at_rare%d" % j)
        k.nop(16)
        new_ref(j)
        for r in range(64):
            k.emit("v_mul_f32", v(OACC + r), v(OACC + r), v(FF))
        k.emit("v_mul_f32", v(SUM0), v(SUM0), v(FF))
        k.emit("v_mul_f32", v(SUM1), v(SUM1), v(FF))
        k.nop(4)
        k.emit("s_branch", "L_at_back%d" % j)
    k.label("L_at_end")
    return k, 256, 100
```

```python
import os
import struct
import sys

sys.path.insert(0, os.path.dirname(os.path.abspath(__file__)))
from asmlib import Kern, v, s

NAME = "recurrent_scan__sliding_block_cached__geglu_ffn__prompt"
XN_OFF = 0
O_OFF = 2 << 20
H_OFF = 18 << 20
H_RGS = 88 * 1024
PART_OFF = 24 << 20
CNT_OFF = 23 << 20
LOG2E = 1.4426950408889634


def f32(x):
    return "0x%08x" % struct.unpack("<I", struct.pack("<f", x))[0]


def wave_allreduce_add(k, val, tmp):
    for x in (1, 2, 4, 8, 16):
        o = k.emit("ds_swizzle_b32", v(tmp), v(val), mods="offset:0x%04x" % ((x << 10) | 0x1F))
        k.wait_lg(o)
        k.emit("v_add_f32", v(val), v(val), v(tmp))
    k.emit("v_mov_b32", v(tmp), v(val))
    k.emit("v_permlane32_swap_b32", v(val), v(tmp))
    k.emit("v_add_f32", v(val), v(val), v(tmp))


def gen_ln():
    k = Kern("ln_kernel")
    k.emit("s_cmp_ge_u32", s(2), 512)
    k.emit("s_cbranch_scc1", "L_ln_end")
    k.emit("s_load_dwordx2", s(4, 2), s(0, 2), 0)
    k.emit("s_load_dwordx2", s(6, 2), s(0, 2), 88)
    k.emit("v_lshlrev_b32", v(1), 4, v(0))
    k.emit("s_lshl_b32", s(3), s(2), 12)
    k.raw("    s_waitcnt lgkmcnt(0)")
    k.srd(8, 4, 2048 * 1024)
    k.srd(12, 6, 2048 * 1024, add=XN_OFF)
    o = k.emit("buffer_load_dwordx4", v(44, 4), v(1), s(8, 4), s(3), mods="offen")
    if os.environ.get("PREF", "1") == "1":
        k.emit("s_load_dwordx2", s(24, 2), s(0, 2), 24)
        k.emit("s_load_dwordx4", s(28, 4), s(0, 2), 48)
        k.emit("v_lshrrev_b32", v(2), 6, v(0))
        k.emit("v_readfirstlane_b32", s(18), v(2))
        k.emit("v_and_b32", v(2), 63, v(0))
        k.emit("s_and_b32", s(19), s(2), 7)
        k.emit("s_lshl_b32", s(19), s(19), 2)
        k.emit("s_add_u32", s(19), s(19), s(18))
        k.emit("s_lshr_b32", s(26), s(2), 3)
        k.raw("    s_waitcnt lgkmcnt(0)")
        k.srd(40, 24, 4 << 20)
        k.srd(44, 28, 512 * 2752)
        k.srd(48, 30, 512 * 2752)
        k.emit("v_lshrrev_b32", v(5), 4, v(2))
        k.emit("v_and_b32", v(6), 15, v(2))
        k.emit("v_lshlrev_b32", v(6), 4, v(6))
        k.emit("v_lshl_add_u32", v(5), v(5), 13, v(6))
        k.emit("v_min_u32", v(6), 47, v(2))
        k.emit("v_mul_u32_u24", v(7), 43, v(6))
        k.emit("v_lshrrev_b32", v(7), 8, v(7))
        k.emit("v_mul_u32_u24", v(8), 6, v(7))
        k.emit("v_sub_u32", v(8), v(6), v(8))
        k.emit("v_mul_u32_u24", v(7), 2752, v(7))
        k.emit("v_lshrrev_b32", v(9), 1, v(8))
        k.emit("v_lshl_add_u32", v(7), v(9), 10, v(7))
        k.emit("v_and_b32", v(8), 1, v(8))
        k.emit("v_lshl_add_u32", v(7), v(8), 4, v(7))
        k.emit("s_lshl_b32", s(27), s(26), 16)
        k.emit("s_lshl_b32", s(52), s(19), 8)
        k.emit("s_add_u32", s(27), s(27), s(52))
        k.emit("buffer_load_dwordx4", v(28, 4), v(5), s(40, 4), s(27), mods="offen")
        k.emit("s_add_u32", s(27), s(27), 32768)
        k.emit("buffer_load_dwordx4", v(32, 4), v(5), s(40, 4), s(27), mods="offen")
        k.emit("s_mul_i32", s(27), s(26), 8 * 2752)
        k.emit("s_lshl_b32", s(52), s(19), 5)
        k.emit("s_add_u32", s(27), s(27), s(52))
        k.emit("buffer_load_dwordx4", v(36, 4), v(7), s(44, 4), s(27), mods="offen")
        k.emit("buffer_load_dwordx4", v(40, 4), v(7), s(48, 4), s(27), mods="offen")
    k.wait_vm(o)
    for i in range(4):
        k.emit("v_mov_b32", v(4 + i), v(44 + i))
    for i in range(4):
        k.emit("v_lshlrev_b32", v(8 + 2 * i), 16, v(4 + i))
        k.emit("v_and_b32", v(9 + 2 * i), 0xFFFF0000, v(4 + i))
    k.emit("v_add_f32", v(16), v(8), v(9))
    for i in range(2, 8):
        k.emit("v_add_f32", v(16), v(16), v(8 + i))
    wave_allreduce_add(k, 16, 17)
    k.emit("v_mul_f32", v(16), f32(1.0 / 512), v(16))
    k.emit("v_sub_f32", v(18), v(8), v(16))
    k.emit("v_mul_f32", v(19), v(18), v(18))
    for i in range(1, 8):
        k.emit("v_sub_f32", v(18), v(8 + i), v(16))
        k.emit("v_fmac_f32", v(19), v(18), v(18))
    wave_allreduce_add(k, 19, 17)
    k.emit("v_mul_f32", v(19), f32(1.0 / 512), v(19))
    k.emit("v_cvt_pk_bf16_f32", v(20), v(16), v(19))
    k.emit("v_lshlrev_b32", v(16), 16, v(20))
    k.emit("v_and_b32", v(19), 0xFFFF0000, v(20))
    k.emit("v_add_f32", v(19), f32(1e-5), v(19))
    k.emit("v_cvt_pk_bf16_f32", v(20), v(19), v(19))
    k.emit("v_lshlrev_b32", v(19), 16, v(20))
    k.emit("v_sqrt_f32", v(19), v(19))
    k.emit("v_cvt_pk_bf16_f32", v(20), v(19), v(19))
    k.emit("v_lshlrev_b32", v(19), 16, v(20))
    k.emit("v_rcp_f32", v(19), v(19))
    for i in range(4):
        k.emit("v_sub_f32", v(20), v(8 + 2 * i), v(16))
        k.emit("v_sub_f32", v(21), v(9 + 2 * i), v(16))
        k.emit("v_cvt_pk_bf16_f32", v(22), v(20), v(21))
        k.emit("v_lshlrev_b32", v(20), 16, v(22))
        k.emit("v_and_b32", v(21), 0xFFFF0000, v(22))
        k.emit("v_mul_f32", v(20), v(20), v(19))
        k.emit("v_mul_f32", v(21), v(21), v(19))
        k.emit("v_cvt_pk_bf16_f32", v(24 + i), v(20), v(21))
    k.emit("v_and_b32", v(2), 63, v(0))
    k.emit("v_lshrrev_b32", v(3), 1, v(2))
    k.emit("v_lshlrev_b32", v(3), 10, v(3))
    k.emit("v_and_b32", v(2), 1, v(2))
    k.emit("v_lshl_add_u32", v(3), v(2), 9, v(3))
    k.emit("v_lshrrev_b32", v(2), 6, v(0))
    k.emit("v_lshl_add_u32", v(3), v(2), 4, v(3))
    k.emit("s_lshr_b32", s(16), s(2), 3)
    k.emit("s_lshl_b32", s(16), s(16), 15)
    k.emit("s_and_b32", s(17), s(2), 7)
    k.emit("s_lshl_b32", s(17), s(17), 6)
    k.emit("s_add_u32", s(16), s(16), s(17))
    k.emit("buffer_store_dwordx4", v(24, 4), v(3), s(12, 4), s(16), mods="offen" + os.environ.get("XMOD", ""))
    k.emit("s_cmp_lg_u32", s(2), 0)
    k.emit("s_cbranch_scc1", "L_ln_end")
    k.srd(8, 6, 256, add=CNT_OFF)
    k.emit("v_lshlrev_b32", v(2), 2, v(0))
    k.emit("v_mov_b32", v(3), 0)
    k.emit("buffer_store_dword", v(3), v(2), s(8, 4), 0, mods="offen")
    k.label("L_ln_end")
    return k, 48, 56


def gen_fin():
    k = Kern("fin_kernel")
    k.emit("s_cmp_ge_u32", s(2), 512)
    k.emit("s_cbranch_scc1", "L_fin_end")
    k.emit("s_load_dwordx2", s(4, 2), s(0, 2), 0)
    k.emit("s_load_dwordx2", s(6, 2), s(0, 2), 72)
    k.emit("s_load_dwordx2", s(16, 2), s(0, 2), 88)
    k.emit("v_and_b32", v(1), 63, v(0))
    k.emit("v_lshrrev_b32", v(2), 6, v(0))
    k.emit("v_and_b32", v(3), 1, v(2))
    k.emit("v_lshrrev_b32", v(4), 1, v(2))
    k.emit("s_and_b32", s(20), s(2), 1)
    k.emit("s_lshr_b32", s(21), s(2), 1)
    k.emit("s_and_b32", s(21), s(21), 3)
    k.emit("s_lshr_b32", s(22), s(2), 3)
    k.emit("s_lshr_b32", s(23), s(2), 1)
    k.emit("s_lshl_b32", s(23), s(23), 13)
    k.emit("s_lshl_b32", s(24), s(20), 12)
    k.emit("s_add_u32", s(23), s(23), s(24))
    k.emit("v_lshlrev_b32", v(5), 11, v(4))
    k.emit("v_lshl_add_u32", v(5), v(3), 10, v(5))
    k.emit("v_lshl_add_u32", v(5), v(1), 4, v(5))
    k.emit("s_lshr_b32", s(25), s(22), 2)
    k.emit("s_and_b32", s(26), s(22), 3)
    k.emit("s_lshr_b32", s(27), s(21), 1)
    k.emit("s_and_b32", s(28), s(21), 1)
    k.emit("s_lshl_b32", s(25), s(25), 7)
    k.emit("s_lshl_b32", s(27), s(27), 6)
    k.emit("s_add_u32", s(25), s(25), s(27))
    k.emit("s_lshl_b32", s(25), s(25), 10)
    k.emit("s_lshl_b32", s(26), s(26), 7)
    k.emit("s_lshl_b32", s(28), s(28), 6)
    k.emit("s_add_u32", s(26), s(26), s(28))
    k.emit("s_lshl_b32", s(29), s(20), 5)
    k.emit("s_add_u32", s(26), s(26), s(29))
    k.emit("s_lshl_b32", s(26), s(26), 1)
    k.emit("s_add_u32", s(25), s(25), s(26))
    k.emit("v_and_b32", v(6), 31, v(1))
    k.emit("v_lshl_add_u32", v(6), v(4), 5, v(6))
    k.emit("v_lshlrev_b32", v(6), 10, v(6))
    k.emit("v_lshl_add_u32", v(6), v(3), 5, v(6))
    k.emit("v_lshrrev_b32", v(7), 5, v(1))
    k.emit("v_lshl_add_u32", v(6), v(7), 4, v(6))
    k.raw("    s_waitcnt lgkmcnt(0)")
    k.srd(8, 4, 2048 * 1024)
    k.srd(12, 6, 2048 * 1024)
    k.srd(32, 16, 16 << 20, add=PART_OFF)
    ids = []
    for sp in range(4):
        k.emit("s_add_u32", s(36 + sp), s(23), sp * (2 << 20))
    for sp in range(4):
        ids.append(k.emit("buffer_load_dwordx4", v(52 + sp * 4, 4), v(5), s(32, 4), s(36 + sp), mods="offen"))
    ox = k.emit("buffer_load_dwordx4", v(40, 4), v(6), s(8, 4), s(25), mods="offen")
    k.wait_vm(ids[2])
    for sp in range(3):
        for i in range(4):
            k.emit("v_lshlrev_b32", v(8 + 8 * sp + 2 * i), 16, v(52 + 4 * sp + i))
            k.emit("v_and_b32", v(9 + 8 * sp + 2 * i), 0xFFFF0000, v(52 + 4 * sp + i))
    for i in range(8):
        k.emit("v_add_f32", v(8 + i), v(8 + i), v(16 + i))
        k.emit("v_add_f32", v(8 + i), v(8 + i), v(24 + i))
    k.wait_vm(ids[3])
    for i in range(4):
        k.emit("v_cvt_pk_bf16_f32", v(44 + i), v(8 + 2 * i), v(9 + 2 * i))
    for i in range(4):
        k.emit("v_lshlrev_b32", v(8 + 2 * i), 16, v(44 + i))
        k.emit("v_and_b32", v(9 + 2 * i), 0xFFFF0000, v(44 + i))
        k.emit("v_lshlrev_b32", v(32 + 2 * i), 16, v(64 + i))
        k.emit("v_and_b32", v(33 + 2 * i), 0xFFFF0000, v(64 + i))
    for i in range(8):
        k.emit("v_mul_f32", v(16 + i), f32(-LOG2E), v(32 + i))
    for i in range(8):
        k.emit("v_exp_f32", v(16 + i), v(16 + i))
    for i in range(8):
        k.emit("v_add_f32", v(16 + i), 1.0, v(16 + i))
    for i in range(8):
        k.emit("v_rcp_f32", v(16 + i), v(16 + i))
    for i in range(8):
        k.emit("v_mul_f32", v(16 + i), v(16 + i), v(32 + i))
    for i in range(4):
        k.emit("v_cvt_pk_bf16_f32", v(48 + i), v(16 + 2 * i), v(17 + 2 * i))
    for i in range(4):
        k.emit("v_lshlrev_b32", v(16 + 2 * i), 16, v(48 + i))
        k.emit("v_and_b32", v(17 + 2 * i), 0xFFFF0000, v(48 + i))
    for i in range(8):
        k.emit("v_mul_f32", v(8 + i), v(8 + i), v(16 + i))
    for i in range(4):
        k.emit("v_cvt_pk_bf16_f32", v(44 + i), v(8 + 2 * i), v(9 + 2 * i))
    k.wait_vm(ox)
    for i in range(4):
        k.emit("v_lshlrev_b32", v(8 + 2 * i), 16, v(44 + i))
        k.emit("v_and_b32", v(9 + 2 * i), 0xFFFF0000, v(44 + i))
        k.emit("v_lshlrev_b32", v(16 + 2 * i), 16, v(40 + i))
        k.emit("v_and_b32", v(17 + 2 * i), 0xFFFF0000, v(40 + i))
    for i in range(8):
        k.emit("v_add_f32", v(8 + i), v(8 + i), v(16 + i))
    for i in range(4):
        k.emit("v_cvt_pk_bf16_f32", v(44 + i), v(8 + 2 * i), v(9 + 2 * i))
    k.emit("buffer_store_dwordx4", v(44, 4), v(6), s(12, 4), s(25), mods="offen")
    k.label("L_fin_end")
    return k, 68, 44


def fin_math(k, b, wait_s, wait_f, wait_x):
    S, P1, P2, F, X, T0, T1 = b, b + 8, b + 16, b + 24, b + 32, b + 36, b + 40
    k.wait_vm(wait_s)
    for i in range(8):
        k.emit("v_add_f32", v(S + i), v(S + i), v(P1 + i))
        k.emit("v_add_f32", v(S + i), v(S + i), v(P2 + i))
    k.wait_vm(wait_f)
    for i in range(4):
        k.emit("v_cvt_pk_bf16_f32", v(T0 + i), v(S + 2 * i), v(S + 1 + 2 * i))
        k.emit("v_cvt_pk_bf16_f32", v(T1 + i), v(F + 2 * i), v(F + 1 + 2 * i))
    for i in range(4):
        k.emit("v_lshlrev_b32", v(S + 2 * i), 16, v(T0 + i))
        k.emit("v_and_b32", v(S + 1 + 2 * i), 0xFFFF0000, v(T0 + i))
        k.emit("v_lshlrev_b32", v(F + 2 * i), 16, v(T1 + i))
        k.emit("v_and_b32", v(F + 1 + 2 * i), 0xFFFF0000, v(T1 + i))
    G = P1
    for i in range(8):
        k.emit("v_mul_f32", v(G + i), f32(-LOG2E), v(F + i))
    for i in range(8):
        k.emit("v_exp_f32", v(G + i), v(G + i))
    for i in range(8):
        k.emit("v_add_f32", v(G + i), 1.0, v(G + i))
    for i in range(8):
        k.emit("v_rcp_f32", v(G + i), v(G + i))
    for i in range(8):
        k.emit("v_mul_f32", v(G + i), v(G + i), v(F + i))
    for i in range(4):
        k.emit("v_cvt_pk_bf16_f32", v(T1 + i), v(G + 2 * i), v(G + 1 + 2 * i))
    for i in range(4):
        k.emit("v_lshlrev_b32", v(G + 2 * i), 16, v(T1 + i))
        k.emit("v_and_b32", v(G + 1 + 2 * i), 0xFFFF0000, v(T1 + i))
    for i in range(8):
        k.emit("v_mul_f32", v(S + i), v(S + i), v(G + i))
    for i in range(4):
        k.emit("v_cvt_pk_bf16_f32", v(T0 + i), v(S + 2 * i), v(S + 1 + 2 * i))
    k.wait_vm(wait_x)
    for i in range(4):
        k.emit("v_lshlrev_b32", v(S + 2 * i), 16, v(T0 + i))
        k.emit("v_and_b32", v(S + 1 + 2 * i), 0xFFFF0000, v(T0 + i))
        k.emit("v_lshlrev_b32", v(G + 2 * i), 16, v(X + i))
        k.emit("v_and_b32", v(G + 1 + 2 * i), 0xFFFF0000, v(X + i))
    for i in range(8):
        k.emit("v_add_f32", v(S + i), v(S + i), v(G + i))
    for i in range(4):
        k.emit("v_cvt_pk_bf16_f32", v(T0 + i), v(S + 2 * i), v(S + 1 + 2 * i))


def bs2_lane(k, dst, lane, tmp):
    k.emit("v_and_b32", v(tmp), 1, v(lane))
    k.emit("v_lshlrev_b32", v(dst), 4, v(tmp))
    k.emit("v_and_b32", v(tmp), 2, v(lane))
    k.emit("v_lshl_add_u32", v(dst), v(tmp), 2, v(dst))


def gen_gemm2():
    k = Kern("gemm2_kernel")
    SLOT = 32768
    NSLOT = 5
    k.emit("s_cmp_ge_u32", s(2), 256)
    k.emit("s_cbranch_scc1", "L_g2_end")
    k.emit("s_load_dwordx2", s(4, 2), s(0, 2), 32)
    k.emit("s_load_dwordx2", s(6, 2), s(0, 2), 64)
    k.emit("s_load_dwordx2", s(8, 2), s(0, 2), 88)
    k.emit("v_lshrrev_b32", v(1), 6, v(0))
    k.emit("v_and_b32", v(2), 63, v(0))
    k.emit("v_readfirstlane_b32", s(40), v(1))
    k.emit("s_lshr_b32", s(39), s(40), 2)
    k.emit("s_and_b32", s(40), s(40), 3)
    k.emit("s_and_b32", s(41), s(2), 3)
    k.emit("s_lshr_b32", s(42), s(2), 2)
    k.emit("s_and_b32", s(42), s(42), 1)
    k.emit("s_lshr_b32", s(43), s(2), 5)
    k.emit("s_lshl_b32", s(42), s(42), 3)
    k.emit("s_add_u32", s(42), s(42), s(43))
    k.emit("s_lshr_b32", s(43), s(2), 3)
    k.emit("s_and_b32", s(43), s(43), 3)
    k.emit("s_mov_b32", s(44), 0)
    k.emit("s_mov_b32", s(45), 22)
    k.emit("s_cmp_eq_u32", s(41), 1)
    k.emit("s_cselect_b32", s(44), 1408, s(44))
    k.emit("s_cselect_b32", s(45), 21, s(45))
    k.emit("s_cmp_eq_u32", s(41), 2)
    k.emit("s_cselect_b32", s(44), 2752, s(44))
    k.emit("s_cselect_b32", s(45), 21, s(45))
    k.emit("s_mov_b32", s(46), 262144)
    k.emit("s_mov_b32", s(47), O_OFF)
    k.emit("s_cmp_eq_u32", s(41), 3)
    k.emit("s_cselect_b32", s(46), H_RGS, s(46))
    k.emit("s_cselect_b32", s(47), H_OFF, s(47))
    k.emit("s_mul_i32", s(48), s(42), s(46))
    k.emit("s_lshl_b32", s(48), s(48), 2)
    k.emit("s_add_u32", s(47), s(47), s(48))
    k.emit("s_lshl_b32", s(48), s(44), 6)
    k.emit("s_add_u32", s(47), s(47), s(48))
    k.emit("s_lshl_b32", s(49), s(44), 10)
    k.emit("s_lshl_b32", s(48), s(43), 8)
    k.emit("s_add_u32", s(49), s(49), s(48))
    k.raw("    s_waitcnt lgkmcnt(0)")
    k.emit("s_mov_b32", s(50), 4096 * 1024)
    k.emit("s_cmp_eq_u32", s(41), 3)
    k.emit("s_cselect_b32", s(4), s(6), s(4))
    k.emit("s_cselect_b32", s(5), s(7), s(5))
    k.emit("s_cselect_b32", s(50), 1376 * 1024, s(50))
    k.emit("s_sub_u32", s(50), s(50), s(49))
    k.emit("s_add_u32", s(12), s(8), s(47))
    k.emit("s_addc_u32", s(13), s(9), 0)
    k.emit("s_and_b32", s(13), s(13), 0xFFFF)
    k.emit("s_lshl_b32", s(51), s(46), 2)
    k.emit("s_mov_b32", s(14), s(51))
    k.emit("s_mov_b32", s(15), 0x00020000)
    k.emit("s_add_u32", s(16), s(4), s(49))
    k.emit("s_addc_u32", s(17), s(5), 0)
    k.emit("s_and_b32", s(17), s(17), 0xFFFF)
    k.emit("s_mov_b32", s(18), s(50))
    k.emit("s_mov_b32", s(19), 0x00020000)
    k.srd(20, 8, 16 << 20, add=PART_OFF)
    k.emit("v_lshlrev_b32", v(3), 4, v(2))
    k.emit("v_lshrrev_b32", v(4), 4, v(2))
    k.emit("v_bfe_u32", v(5), v(2), 2, 2)
    k.emit("v_xor_b32", v(5), v(5), v(4))
    k.emit("v_lshlrev_b32", v(5), 6, v(5))
    k.emit("v_lshl_add_u32", v(5), v(4), 10, v(5))
    k.emit("v_and_b32", v(4), 3, v(2))
    k.emit("v_lshl_add_u32", v(6), v(4), 4, v(5))
    for i in range(4):
        k.emit("s_add_u32", s(53), s(40), 4 * i)
        k.emit("s_mul_i32", s(56 + i), s(40), s(46))
        k.emit("s_add_u32", s(56 + i), s(56 + i), 1024 * i)
        k.emit("s_lshl_b32", s(60 + i), s(53), 12)
    k.emit("s_lshl_b32", s(64), s(40), 10)
    k.emit("s_lshl_b32", s(82), s(40), 12)
    k.emit("s_mov_b32", s(65), 0)
    k.emit("s_mov_b32", s(66), 0)

    ROT = int(os.environ.get("ROT", "1"))
    k.emit("s_lshr_b32", s(84), s(2), 3)
    k.emit("s_mul_i32", s(84), s(84), ROT)
    for _ in range(12):
        k.emit("s_cmp_ge_u32", s(84), s(45))
        k.emit("s_cselect_b32", s(85), s(45), 0)
        k.emit("s_sub_u32", s(84), s(84), s(85))

    def issue_dma():
        k.emit("s_cmp_lt_u32", s(65), s(45))
        k.emit("s_cselect_b32", s(14), s(51), 0)
        k.emit("s_cselect_b32", s(18), s(50), 0)
        if os.environ.get("NOACT") == "1":
            k.emit("s_mov_b32", s(14), 0)
        if os.environ.get("NOWT") == "1":
            k.emit("s_mov_b32", s(18), 0)
        k.emit("s_add_u32", s(67), s(66), s(64))
        k.emit("s_add_u32", s(83), s(66), s(82))
        k.emit("s_lshl_b32", s(85), s(84), 12)
        k.emit("s_lshl_b32", s(86), s(84), 16)
        for i in range(8 if os.environ.get("NODMA") != "1" else 0):
            if i < 4:
                k.emit("s_add_u32", "m0", s(83), 1024 * i)
                k.emit("s_add_u32", s(87), s(56 + i), s(85))
                k.emit("buffer_load_dwordx4", v(3), s(12, 4), s(87), mods="offen lds")
            else:
                k.emit("s_add_u32", "m0", s(67), 4096 * i)
                k.emit("s_add_u32", s(87), s(56 + i), s(86))
                k.emit("buffer_load_dwordx4", v(6), s(16, 4), s(87), mods="offen lds")
        k.emit("s_add_u32", s(65), s(65), 1)
        k.emit("s_add_u32", s(84), s(84), 1)
        k.emit("s_cmp_eq_u32", s(84), s(45))
        k.emit("s_cselect_b32", s(84), 0, s(84))
        k.emit("s_add_u32", s(66), s(66), SLOT)
        k.emit("s_cmp_eq_u32", s(66), SLOT * NSLOT)
        k.emit("s_cselect_b32", s(66), 0, s(66))

    k.emit("s_cmp_eq_u32", s(39), 0)
    k.emit("s_cbranch_scc1", "L_g2_compute")
    for i in range(4):
        issue_dma()
    k.raw("    s_waitcnt vmcnt(24)")
    k.emit("s_barrier")
    k.emit("s_mov_b32", s(78), 0)
    k.label("L_g2_lloop")
    k.raw("    s_waitcnt vmcnt(16)")
    k.emit("s_barrier")
    issue_dma()
    k.emit("s_add_u32", s(78), s(78), 1)
    k.emit("s_cmp_lt_u32", s(78), s(45))
    k.emit("s_cbranch_scc1", "L_g2_lloop")
    if os.environ.get("PREFX", "0") == "1":
        k.emit("s_load_dwordx2", s(4, 2), s(0, 2), 0)
        k.raw("    s_waitcnt lgkmcnt(0)")
        k.srd(24, 4, 2048 * 1024)
        k.emit("s_lshl_b32", s(53), s(2), 13)
        k.emit("s_lshl_b32", s(54), s(40), 11)
        k.emit("s_add_u32", s(53), s(53), s(54))
        k.emit("buffer_load_dwordx4", v(16, 4), v(3), s(24, 4), s(53), mods="offen")
        k.emit("buffer_load_dwordx4", v(20, 4), v(3), s(24, 4), s(53), mods="offen offset:1024")
    k.raw("    s_waitcnt vmcnt(0)")
    k.emit("s_endpgm")
    k.label("L_g2_compute")
    k.emit("s_lshr_b32", s(68), s(40), 1)
    k.emit("s_and_b32", s(69), s(40), 1)
    k.emit("v_lshrrev_b32", v(7), 5, v(2))
    k.emit("s_lshl_b32", s(53), s(68), 13)
    k.emit("v_lshl_add_u32", v(8), v(2), 4, s(53))
    k.emit("v_bfe_u32", v(4), v(2), 2, 2)
    k.emit("v_lshl_add_u32", v(5), v(7), 3, v(4))
    k.emit("v_lshlrev_b32", v(5), 8, v(5))
    k.emit("v_add_u32", v(5), 16384, v(5))
    k.emit("v_bfe_u32", v(14), v(2), 4, 1)
    k.emit("v_lshl_add_u32", v(5), v(14), 5, v(5))
    bs2_lane(k, 14, 2, 15)
    k.emit("v_add_u32", v(5), v(5), v(14))
    k.emit("s_lshl_b32", s(53), s(69), 1)
    for tn in range(2):
        k.emit("s_add_u32", s(54), s(53), tn)
        k.emit("v_xor_b32", v(14), s(54), v(4))
        k.emit("v_lshl_add_u32", v(12 + tn), v(14), 6, v(5))
    ACC = 80
    for i in range(64):
        k.emit("v_mov_b32", v(ACC + i), 0)

    def reads(t, fs):
        base = 16 + 16 * fs
        for tn in range(2):
            for u in range(2):
                k.emit("ds_read_b64_tr_b16", v(base + 4 * tn + 2 * u, 2), v(12 + tn),
                       mods="offset:%d" % ((16 * t + 4 * u) * 256))
        for tm in range(2):
            k.emit("ds_read_b128", v(base + 8 + 4 * tm, 4), v(8), mods="offset:%d" % (4096 * tm + 1024 * t))

    def mfmas(fs):
        base = 16 + 16 * fs
        for tn in range(2):
            for tm in range(2):
                a = ACC + 16 * (tn * 2 + tm)
                k.emit("v_mfma_f32_32x32x16_bf16", v(a, 16), v(base + 4 * tn, 4), v(base + 8 + 4 * tm, 4), v(a, 16))

    STAMP = os.environ.get("STAMP2", "0") == "1"

    def stamp(idx):
        if STAMP:
            k.raw("    s_memtime s[98:99]" if os.environ.get("REALTIME") != "1" else "    s_memrealtime s[98:99]")
            k.raw("    s_waitcnt lgkmcnt(0)")
            k.emit("s_mov_b32", s(idx), s(98))

    stamp(90)
    k.emit("s_barrier")
    stamp(91)
    reads(0, 0)
    reads(1, 1)
    k.emit("s_mov_b32", s(78), 0)
    k.emit("s_mov_b32", s(79), 0)
    k.emit("s_mov_b32", s(81), SLOT)
    k.label("L_g2_loop")

    def read_ops(t, fs):
        base = 16 + 16 * fs
        ops = []
        for tn in range(2):
            for u in range(2):
                ops.append(lambda tn=tn, u=u: k.emit("ds_read_b64_tr_b16", v(base + 4 * tn + 2 * u, 2), v(12 + tn),
                                                     mods="offset:%d" % ((16 * t + 4 * u) * 256)))
        for tm in range(2):
            ops.append(lambda tm=tm: k.emit("ds_read_b128", v(base + 8 + 4 * tm, 4), v(8),
                                            mods="offset:%d" % (4096 * tm + 1024 * t)))
        return ops

    def step(fs, rops):
        base = 16 + 16 * fs
        k.raw("    s_waitcnt lgkmcnt(6)")
        n = 0
        for tn in range(2):
            for tm in range(2):
                a = ACC + 16 * (tn * 2 + tm)
                k.emit("v_mfma_f32_32x32x16_bf16", v(a, 16), v(base + 4 * tn, 4), v(base + 8 + 4 * tm, 4), v(a, 16))
                for _ in range(2 if n < 2 else 1):
                    rops.pop(0)()
                n += 1

    step(0, read_ops(2, 2))
    step(1, read_ops(3, 3))
    k.emit("s_barrier")
    k.emit("s_add_u32", s(79), s(79), SLOT)
    k.emit("s_cmp_eq_u32", s(79), SLOT * NSLOT)
    k.emit("s_cselect_b32", s(79), 0, s(79))
    k.emit("s_cselect_b32", s(80), -SLOT * (NSLOT - 1) & 0xFFFFFFFF, s(81))
    for r in (8, 12, 13):
        k.emit("v_add_u32", v(r), s(80), v(r))
    step(2, read_ops(0, 0))
    step(3, read_ops(1, 1))
    k.emit("s_add_u32", s(78), s(78), 1)
    k.emit("s_cmp_lt_u32", s(78), s(45))
    k.emit("s_cbranch_scc1", "L_g2_loop")
    k.lgq = []
    k.vmq = []
    stamp(92)
    k.nop(16)
    k.emit("s_lshl_b32", s(53), s(41), 6)
    k.emit("s_lshl_b32", s(54), s(42), 2)
    k.emit("s_add_u32", s(53), s(53), s(54))
    k.emit("s_add_u32", s(53), s(53), s(43))
    k.emit("s_lshl_b32", s(53), s(53), 2)
    k.emit("s_add_u32", s(53), s(53), s(40))
    k.emit("s_lshl_b32", s(53), s(53), 14)
    k.emit("v_lshlrev_b32", v(4), 4, v(2))
    FUSE = os.environ.get("FUSE", "0") == "1"
    if not FUSE:
        k.emit("s_lshr_b32", s(53), s(53), 1)
        for o8 in range(8):
            for p in range(4):
                k.emit("v_cvt_pk_bf16_f32", v(16 + 4 * o8 + p), v(ACC + 8 * o8 + 2 * p), v(ACC + 8 * o8 + 2 * p + 1))
            if o8 == 4:
                k.emit("s_add_u32", s(53), s(53), 4096)
            k.emit("buffer_store_dwordx4", v(16 + 4 * o8, 4), v(4), s(20, 4), s(53),
                   mods="offen offset:%d" % (1024 * (o8 % 4)) + os.environ.get("PMOD", " sc1"))
        k.raw("    s_waitcnt vmcnt(0)")
    if FUSE:
        for q in range(16):
            if q % 4 == 0 and q:
                k.emit("s_add_u32", s(53), s(53), 4096)
            k.emit("buffer_store_dwordx4", v(ACC + 4 * q, 4), v(4), s(20, 4), s(53),
                   mods="offen offset:%d sc1" % (1024 * (q % 4)))
        k.wait_vm0()
        k.emit("s_barrier")
        k.emit("s_load_dwordx2", s(4, 2), s(0, 2), 0)
        k.emit("s_load_dwordx2", s(6, 2), s(0, 2), 72)
        k.srd(24, 8, 256, add=CNT_OFF)
        k.emit("s_lshl_b32", s(54), s(42), 2)
        k.emit("s_add_u32", s(54), s(54), s(43))
        k.emit("s_lshl_b32", s(55), s(54), 2)
        k.emit("v_mov_b32", v(5), 1)
        k.emit("v_mov_b32", v(7), 0)
        k.emit("s_cmp_lg_u32", s(40), 0)
        k.emit("s_cbranch_scc1", "L_g2_noatom")
        k.raw("    s_mov_b64 exec, 1")
        k.raw("    buffer_atomic_add v5, v7, s[24:27], s55 offen sc0 sc1")
        k.raw("    s_waitcnt vmcnt(0)")
        k.raw("    ds_write_b32 v7, v5")
        k.raw("    s_waitcnt lgkmcnt(0)")
        k.raw("    s_mov_b64 exec, -1")
        k.label("L_g2_noatom")
        k.emit("s_barrier")
        k.raw("    ds_read_b32 v5, v7")
        k.raw("    s_waitcnt lgkmcnt(0)")
        k.nop(2)
        k.emit("v_readfirstlane_b32", s(55), v(5))
        k.nop(4)
        k.emit("s_cmp_lg_u32", s(55), 3)
        k.emit("s_cbranch_scc1", "L_g2_end")
        k.srd(28, 4, 2048 * 1024)
        k.srd(32, 6, 2048 * 1024)
        k.emit("s_lshl_b32", s(53), s(54), 2)
        k.emit("s_add_u32", s(53), s(53), s(40))
        k.emit("s_lshl_b32", s(53), s(53), 14)
        k.emit("s_lshl_b32", s(56), s(42), 7)
        k.emit("s_lshl_b32", s(57), s(68), 6)
        k.emit("s_add_u32", s(56), s(56), s(57))
        k.emit("s_lshl_b32", s(56), s(56), 10)
        k.emit("s_lshl_b32", s(57), s(43), 8)
        k.emit("s_add_u32", s(56), s(56), s(57))
        k.emit("s_lshl_b32", s(57), s(69), 7)
        k.emit("s_add_u32", s(56), s(56), s(57))
        k.emit("v_and_b32", v(5), 31, v(2))
        k.emit("v_lshlrev_b32", v(5), 10, v(5))
        k.emit("v_lshrrev_b32", v(7), 5, v(2))
        k.emit("v_lshl_add_u32", v(5), v(7), 4, v(5))
        for half in range(2):
            info = []
            for g in range(4):
                tm, a = divmod(g, 2)
                b = 16 + 44 * g
                q0 = (half * 2 + tm) * 4 + 2 * a
                ids = []
                for sp in range(4):
                    k.emit("s_add_u32", s(58), s(53), sp * (4 << 20) + (q0 // 4) * 4096)
                    for j in range(2):
                        ids.append(k.emit("buffer_load_dwordx4", v(b + sp * 8 + 4 * j, 4), v(4), s(20, 4), s(58),
                                          mods="offen offset:%d sc1" % (1024 * ((q0 % 4) + j))))
                k.emit("s_add_u32", s(60 + g), s(56), tm * 32768 + half * 64 + a * 32)
                ox = k.emit("buffer_load_dwordx4", v(b + 32, 4), v(5), s(28, 4), s(60 + g), mods="offen")
                info.append((b, ids[5], ids[7], ox))
            for g in range(4):
                b, ws_, wf_, wx_ = info[g]
                fin_math(k, b, ws_, wf_, wx_)
                k.emit("buffer_store_dwordx4", v(b + 36, 4), v(5), s(32, 4), s(60 + g), mods="offen")
        k.raw("    s_waitcnt vmcnt(0)")
    if STAMP:
        stamp(93)
        k.srd(20, 8, 1 << 20, add=61 << 20)
        k.emit("s_lshl_b32", s(57), s(2), 2)
        k.emit("s_add_u32", s(57), s(57), s(40))
        k.emit("s_lshl_b32", s(57), s(57), 4)
        k.emit("v_mov_b32", v(4), 0)
        for i in range(4):
            k.emit("v_mov_b32", v(5), s(90 + i))
            k.emit("buffer_store_dword", v(5), v(4), s(20, 4), s(57), mods="offen offset:%d" % (4 * i))
    k.label("L_g2_end")
    return k, 192, 100


from gen_attn import gen_attn


def main():
    ks = []
    launches = []
    if os.environ.get("FLN", "0") != "1":
        k, nv, ns = gen_ln()
        ks.append((k, nv, ns))
        launches.append("; @launch kernel=ln_kernel grid=(512,1,1) block=(256,1,1) lds=0")
    k, nv, ns = gen_attn()
    ks.append((k, nv, ns))
    launches.append("; @launch kernel=attn_kernel grid=(256,1,1) block=(512,1,1) lds=163840")
    G3 = os.environ.get("G3", "0") == "1"
    if G3:
        from gen_g3 import gen_g3
        k, nv, ns = gen_g3()
        ks.append((k, nv, ns))
        launches.append("; @launch kernel=outp_kernel grid=(256,1,1) block=(512,1,1) lds=163840")
    else:
        k, nv, ns = gen_gemm2()
        ks.append((k, nv, ns))
        launches.append("; @launch kernel=gemm2_kernel grid=(256,1,1) block=(512,1,1) lds=163840")
    if os.environ.get("FUSE", "0") != "1" and not G3:
        k, nv, ns = gen_fin()
        ks.append((k, nv, ns))
        launches.append("; @launch kernel=fin_kernel grid=(512,1,1) block=(256,1,1) lds=0")
    out = []
    out.extend(launches)
    out.append('.amdgcn_target "amdgcn-amd-amdhsa--gfx950"')
    out.append(".text")
    descs = []
    for k, nv, ns in ks:
        assert k.maxv < nv, (k.name, k.maxv, nv)
        body, desc = k.text(nv, ns)
        out.append(body)
        descs.append(desc)
        print(k.name, "maxv", k.maxv, k.count, file=sys.stderr)
    out.append('.section .rodata,"a"')
    out.extend(descs)
    path = os.path.join(os.path.dirname(os.path.abspath(__file__)), "..", "cdna_kernels", NAME + ".s")
    with open(path, "w") as f:
        f.write("\n".join(out) + "\n")


if __name__ == "__main__":
    main()
```

```python
import struct
from asmlib import Kern, v, s

XN_OFF = 0
O_OFF = 2 << 20
H_OFF = 18 << 20
H_RGS = 88 * 1024
LOG2E = 1.4426950408889634
SLOT = 32768
NSLOT = 5
G_REG = 16384
U_REG = 22656


def f32(x):
    return "0x%08x" % struct.unpack("<I", struct.pack("<f", x))[0]


import os
STAMP = os.environ.get("STAMP", "0") == "1"


def gen_attn():
    k = Kern("attn_kernel")
    stamps = []

    def stamp(name):
        if not STAMP:
            return
        i = len(stamps)
        stamps.append(name)
        k.raw("    s_memtime s[98:99]" if os.environ.get("REALTIME") != "1" else "    s_memrealtime s[98:99]")
        k.wait_lg0()
        k.emit("s_mov_b32", s(66 + i), s(98))

    def rawi(text):
        k.raw("    " + text)
        k.pos += 1

    k.emit("s_cmp_ge_u32", s(2), 256)
    k.emit("s_cbranch_scc1", "L_at_end")
    k.emit("s_load_dwordx4", s(4, 4), s(0, 2), 8)
    k.emit("s_load_dwordx2", s(8, 2), s(0, 2), 24)
    k.emit("s_load_dwordx4", s(12, 4), s(0, 2), 48)
    k.emit("s_load_dwordx2", s(10, 2), s(0, 2), 88)
    k.emit("s_load_dwordx2", s(96, 2), s(0, 2), 32)
    k.emit("s_load_dwordx2", s(98, 2), s(0, 2), 64)
    FLN = os.environ.get("FLN", "0") == "1"
    if FLN:
        k.emit("s_load_dwordx2", s(88, 2), s(0, 2), 0)
        k.emit("s_load_dwordx2", s(86, 2), s(0, 2), 80)
    LANE, VX, VW, VG, VK, VV, T0, VA, VF, T1, T2, T3 = 1, 2, 3, 4, 5, 6, 7, 8, 12, 13, 14, 15
    k.emit("v_lshrrev_b32", v(T0), 6, v(0))
    k.emit("v_and_b32", v(LANE), 63, v(0))
    k.emit("v_readfirstlane_b32", s(48), v(T0))
    MAP = os.environ.get("MAP", "0")
    if MAP == "0":
        k.emit("s_and_b32", s(49), s(2), 7)
        k.emit("s_lshl_b32", s(49), s(49), 2)
        k.emit("s_lshr_b32", s(51), s(2), 3)
        k.emit("s_and_b32", s(51), s(51), 3)
        k.emit("s_add_u32", s(49), s(49), s(51))
        k.emit("s_lshr_b32", s(50), s(2), 5)
    elif MAP == "1":
        k.emit("s_and_b32", s(50), s(2), 7)
        k.emit("s_lshr_b32", s(49), s(2), 3)
    elif MAP == "2":
        k.emit("s_and_b32", s(49), s(2), 1)
        k.emit("s_lshl_b32", s(49), s(49), 4)
        k.emit("s_lshr_b32", s(51), s(2), 3)
        k.emit("s_and_b32", s(51), s(51), 15)
        k.emit("s_add_u32", s(49), s(49), s(51))
        k.emit("s_lshr_b32", s(50), s(2), 1)
        k.emit("s_and_b32", s(50), s(50), 3)
        k.emit("s_lshl_b32", s(50), s(50), 1)
        k.emit("s_lshr_b32", s(51), s(2), 7)
        k.emit("s_add_u32", s(50), s(50), s(51))
    SW1024, SW2048, SW65536, SW768, SW22016 = 52, 53, 54, 55, 56
    k.emit("s_lshl_b32", s(SW1024), s(48), 10)
    k.emit("s_lshl_b32", s(SW2048), s(48), 11)
    k.emit("s_lshl_b32", s(SW65536), s(48), 16)
    k.emit("s_mul_i32", s(SW768), s(48), 768)
    k.emit("s_mul_i32", s(SW22016), s(48), 22016)
    k.raw("    s_waitcnt lgkmcnt(0)")

    def srd_dyn(d, base, off_s, nrec_s=None, nrec=None, add=0):
        k.emit("s_add_u32", s(d), s(base), s(off_s))
        k.emit("s_addc_u32", s(d + 1), s(base + 1), 0)
        if add:
            k.emit("s_add_u32", s(d), s(d), add)
            k.emit("s_addc_u32", s(d + 1), s(d + 1), 0)
        k.emit("s_and_b32", s(d + 1), s(d + 1), 0xFFFF)
        if nrec_s is not None:
            k.emit("s_mov_b32", s(d + 2), s(nrec_s))
        else:
            k.emit("s_mov_b32", s(d + 2), nrec)
        k.emit("s_mov_b32", s(d + 3), 0x00020000)

    XN, WQ, GS, US, KS, VS, OS, HS = 16, 20, 24, 28, 32, 36, 40, 44
    k.emit("s_lshl_b32", s(57), s(50), 18)
    srd_dyn(XN, 10, 57, nrec=256 * 1024, add=XN_OFF)
    k.emit("s_lshl_b32", s(57), s(49), 8)
    k.emit("s_sub_u32", s(58), 4 << 20, s(57))
    srd_dyn(WQ, 8, 57, nrec_s=58)
    k.emit("s_lshl_b32", s(59), s(49), 5)
    SH32 = 59
    k.emit("s_sub_u32", s(58), 512 * 2752, s(SH32))
    srd_dyn(GS, 12, SH32, nrec_s=58)
    srd_dyn(US, 14, SH32, nrec_s=58)
    k.emit("s_lshl_b32", s(58), s(49), 19)
    srd_dyn(KS, 4, 58, nrec=131072, add=1536 * 256)
    srd_dyn(VS, 6, 58, nrec=131072, add=1536 * 256)
    k.emit("s_lshl_b32", s(58), s(50), 21)
    k.emit("s_lshl_b32", s(57), s(49), 13)
    k.emit("s_add_u32", s(58), s(58), s(57))
    k.emit("s_sub_u32", s(60), 8 * 262144, s(57))
    srd_dyn(OS, 10, 58, nrec_s=60, add=O_OFF)
    k.emit("s_mul_i32", s(58), s(50), 8 * H_RGS)
    srd_dyn(HS, 10, 58, nrec=8 * H_RGS, add=H_OFF)

    k.emit("s_and_b32", s(57), s(2), 3)
    k.emit("s_mul_i32", s(58), s(57), 1376 * 1024)
    k.emit("s_add_u32", s(4), s(96), s(58))
    k.emit("s_addc_u32", s(5), s(97), 0)
    k.emit("s_sub_u32", s(6), 4096 * 1024, s(58))
    k.emit("s_cmp_eq_u32", s(57), 3)
    k.emit("s_cselect_b32", s(4), s(98), s(4))
    k.emit("s_cselect_b32", s(5), s(99), s(5))
    k.emit("s_cselect_b32", s(6), 1376 * 1024, s(6))
    k.emit("s_and_b32", s(5), s(5), 0xFFFF)
    k.emit("s_mov_b32", s(7), 0x00020000)
    k.emit("s_lshr_b32", s(58), s(2), 3)
    k.emit("s_lshl_b32", s(58), s(58), 3)
    k.emit("s_add_u32", s(58), s(58), s(48))
    k.emit("s_mul_i32", s(97), s(58), 5632)
    HH = T3
    k.emit("v_lshrrev_b32", v(HH), 5, v(LANE))
    k.emit("s_lshl_b32", s(57), s(48), 15)
    k.emit("v_lshl_add_u32", v(VX), v(LANE), 4, s(57))
    k.emit("v_lshrrev_b32", v(T0), 4, v(LANE))
    k.emit("v_bfe_u32", v(T1), v(LANE), 2, 2)
    k.emit("v_xor_b32", v(T1), v(T1), v(T0))
    k.emit("v_lshlrev_b32", v(T1), 6, v(T1))
    k.emit("v_and_b32", v(T2), 3, v(LANE))
    k.emit("v_lshl_add_u32", v(T1), v(T2), 4, v(T1))
    k.emit("v_lshl_add_u32", v(VW), v(T0), 13, v(T1))
    k.emit("v_lshl_add_u32", v(VV), v(T0), 8, v(T1))
    k.emit("s_and_b32", s(57), s(48), 3)
    k.emit("s_lshl_b32", s(57), s(57), 2)
    k.emit("v_add_u32", v(T1), s(57), v(T0))
    k.emit("v_and_b32", v(T2), 15, v(LANE))
    k.emit("v_xor_b32", v(T1), v(T1), v(T2))
    k.emit("v_lshlrev_b32", v(T1), 4, v(T1))
    k.emit("v_lshl_add_u32", v(VK), v(T0), 8, v(T1))
    k.emit("v_mul_u32_u24", v(T0), 43, v(LANE))
    k.emit("v_lshrrev_b32", v(T0), 8, v(T0))
    k.emit("v_mul_u32_u24", v(T1), 6, v(T0))
    k.emit("v_sub_u32", v(T1), v(LANE), v(T1))
    k.emit("v_mul_u32_u24", v(T0), 2752, v(T0))
    k.emit("v_lshrrev_b32", v(T2), 1, v(T1))
    k.emit("v_lshl_add_u32", v(T0), v(T2), 10, v(T0))
    k.emit("v_and_b32", v(T1), 1, v(T1))
    k.emit("v_lshl_add_u32", v(VG), v(T1), 4, v(T0))
    k.emit("v_bfe_u32", v(T0), v(LANE), 2, 2)
    k.emit("v_and_b32", v(T2), 1, v(LANE))
    k.emit("v_lshlrev_b32", v(T1), 4, v(T2))
    k.emit("v_and_b32", v(T2), 2, v(LANE))
    k.emit("v_lshl_add_u32", v(T1), v(T2), 2, v(T1))
    k.emit("v_bfe_u32", v(T2), v(LANE), 4, 1)
    k.emit("v_lshl_add_u32", v(T1), v(T2), 5, v(T1))
    k.emit("v_mul_u32_u24", v(VF), U_REG - G_REG - 32, v(T2))
    k.emit("v_add_u32", v(VF), v(VF), v(T1))
    k.emit("v_lshl_add_u32", v(T2), v(HH), 3, v(T0))
    k.emit("v_mul_u32_u24", v(T2), 96, v(T2))
    k.emit("v_add_u32", v(VF), v(VF), v(T2))
    k.emit("v_add_u32", v(VF), G_REG, v(VF))
    k.emit("v_lshl_add_u32", v(T2), v(HH), 3, v(T0))
    k.emit("v_lshl_add_u32", v(T1), v(T2), 8, v(T1))
    for dt in range(4):
        k.emit("v_xor_b32", v(T2), dt, v(T0))
        k.emit("v_lshl_add_u32", v(VA + dt), v(T2), 6, v(T1))

    ACCQ, ACCF, XF, WF = 16, 80, 128, 176
    QF, SACC, PP, KF, KA = 224, 80, 112, 128, 208
    OACC, VFR, TMP = 16, 160, 192
    MT, MREF, NM, NM1, SUM0, SUM1, FF, FT, THR = 216, 217, 218, 219, 220, 221, 222, 223, 0

    dma_last = {}
    xn_last = {}
    SR8, SR4 = 90, 91
    k.emit("s_and_b32", s(SR8), s(49), 3)
    k.emit("s_lshl_b32", s(SR8), s(SR8), 1)
    k.emit("s_add_u32", s(SR8), s(SR8), s(50))
    k.emit("s_add_u32", s(SR4), s(49), s(50))
    if os.environ.get("AROT", "1") == "0":
        k.emit("s_mov_b32", s(SR8), 0)
        k.emit("s_mov_b32", s(SR4), 0)

    pend_vm = []

    def dma_ops(st):
        ops = []
        if st > 15:
            return ops
        slot = (st % NSLOT) * SLOT
        if st < 8:
            def wq(j):
                if j == 0:
                    k.emit("s_add_u32", s(92), s(SR8), st)
                    k.emit("s_and_b32", s(92), s(92), 7)
                    k.emit("s_lshl_b32", s(93), s(92), 19)
                    k.emit("s_add_u32", s(93), s(93), s(SW65536))
                k.emit("s_add_u32", "m0", s(SW2048), slot + 1024 * j)
                k.emit("s_add_u32", s(61), s(93), j * 32768)
                k.emit("buffer_load_dwordx4", v(VW), s(WQ, 4), s(61), mods="offen lds")

            def gu(which):
                rawi("s_mov_b32 exec_hi, 0xffff")
                k.emit("s_add_u32", "m0", s(SW768), slot + (G_REG if which == 0 else U_REG))
                k.emit("s_mul_i32", s(61), s(92), 64 * 2752)
                k.emit("s_add_u32", s(61), s(61), s(SW22016))
                oid = k.emit("buffer_load_dwordx4", v(VG), s(GS if which == 0 else US, 4), s(61), mods="offen lds")
                rawi("s_mov_b32 exec_hi, -1")
                dma_last[st] = oid

            ops = [lambda: wq(0), lambda: wq(1), lambda: gu(0), lambda: gu(1)]
        else:
            j = st - 8

            def kv(i):
                if i == 0:
                    k.emit("s_add_u32", s(92), s(SR4), j)
                    k.emit("s_and_b32", s(92), s(92), 7)
                    k.emit("s_lshl_b32", s(92), s(92), 14)
                    k.emit("s_add_u32", s(92), s(92), s(SW1024))
                srd, vo = (KS, VK) if i < 2 else (VS, VV)
                k.emit("s_add_u32", "m0", s(SW1024), slot + 8192 * i)
                k.emit("s_add_u32", s(61), s(92), (i & 1) * 8192)
                oid = k.emit("buffer_load_dwordx4", v(vo), s(srd, 4), s(61), mods="offen lds")
                dma_last[st] = oid

            ops = [lambda i=i: kv(i) for i in range(4)]
        return ops

    def xn_ops(st):
        if st > 7:
            return []
        base = XF + 16 * (st % 3)

        def one(t):
            if t == 0:
                k.emit("s_add_u32", s(65), s(SR8), st)
                k.emit("s_and_b32", s(65), s(65), 7)
                k.emit("s_lshl_b32", s(65), s(65), 12)
            oid = k.emit("buffer_load_dwordx4", v(base + 4 * t, 4), v(VX), s(XN, 4), s(65),
                         mods="offen offset:%d" % (1024 * t))
            xn_last[st] = oid

        return [lambda t=t: one(t) for t in range(4)]

    def dma_stage(st):
        for op in dma_ops(st):
            op()

    def xn_loads(st):
        for op in xn_ops(st):
            op()

    def pump(n=1):
        for _ in range(n):
            if pend_vm:
                pend_vm.pop(0)()

    def flush_vm():
        while pend_vm:
            pend_vm.pop(0)()

    state = {"ready": -1}

    def ensure_stage(st, addr_regs):
        assert st == state["ready"] + 1
        flush_vm()
        k.wait_vm(dma_last[st])
        k.emit("s_barrier")
        stamp("B%d" % st)
        state["ready"] = st
        if st > 0 and addr_regs:
            delta = ((st % NSLOT) - ((st - 1) % NSLOT)) * SLOT
            for r in addr_regs:
                k.emit("v_add_u32", v(r), delta & 0xFFFFFFFF, v(r))
        if st >= 1:
            pend_vm.extend(xn_ops(st + 1))
            pend_vm.extend(dma_ops(st + 3))
        if st == 13 and os.environ.get("PREF2", "2") == "2":
            def pf(i):
                if i == 0:
                    k.emit("v_lshlrev_b32", v(T0), 4, v(LANE))
                    k.emit("s_lshl_b32", s(96), s(48), 12)
                k.emit("s_add_u32", "m0", s(96), (11 % NSLOT) * SLOT + 1024 * (i % 4))
                k.emit("s_add_u32", s(61), s(97), 1024 * i)
                k.emit("buffer_load_dwordx4", v(T0), s(4, 4), s(61), mods="offen lds")
            pend_vm.extend([lambda i=i: pf(i) for i in range(6)])

    if os.environ.get("PRIO", "0") == "1":
        k.emit("s_cmp_ge_u32", s(48), 4)
        k.emit("s_cbranch_scc0", "L_at_prio")
        k.emit("s_setprio", 1)
        k.label("L_at_prio")
    stamp("start")
    P1A = [VA, VA + 1, VA + 2, VA + 3, VF]
    if not FLN:
        PRO = os.environ.get("PRO", "2")
        if PRO == "2":
            dma_stage(0)
            xn_loads(0)
            dma_stage(1)
            xn_loads(1)
            ensure_stage(0, P1A)
            dma_stage(2)
            dma_stage(3)
        elif PRO == "3":
            dma_stage(0)
            xn_loads(0)
            dma_stage(1)
            xn_loads(1)
            ensure_stage(0, P1A)
            pend_vm.extend(dma_ops(2))
            pend_vm.extend(dma_ops(3))
        elif PRO == "4":
            xn_loads(0)
            dma_stage(0)
            dma_stage(1)
            xn_loads(1)
            dma_stage(2)
            ensure_stage(0, P1A)
            pend_vm.extend(dma_ops(3))
    else:
        L = 16
        k.srd(80, 88, 2048 * 1024)
        k.emit("s_and_b32", s(57), s(2), 31)
        k.emit("s_lshl_b32", s(57), s(57), 3)
        k.emit("s_add_u32", s(57), s(57), s(48))
        k.emit("s_lshl_b32", s(58), s(50), 8)
        k.emit("s_add_u32", s(58), s(58), s(57))
        k.emit("s_lshl_b32", s(58), s(58), 10)
        k.emit("v_lshlrev_b32", v(L), 4, v(LANE))
        o = k.emit("buffer_load_dwordx4", v(L + 4, 4), v(L), s(80, 4), s(58), mods="offen")
        k.wait_vm(o)
        X8 = L + 8
        for i in range(4):
            k.emit("v_lshlrev_b32", v(X8 + 2 * i), 16, v(L + 4 + i))
            k.emit("v_and_b32", v(X8 + 1 + 2 * i), 0xFFFF0000, v(L + 4 + i))
        A, B, C, D, E = L + 16, L + 17, L + 18, L + 19, L + 20

        def allreduce(val, tmp):
            for x in (1, 2, 4, 8, 16):
                oo = k.emit("ds_swizzle_b32", v(tmp), v(val), mods="offset:0x%04x" % ((x << 10) | 0x1F))
                k.wait_lg(oo)
                k.emit("v_add_f32", v(val), v(val), v(tmp))
            k.emit("v_mov_b32", v(tmp), v(val))
            k.emit("v_permlane32_swap_b32", v(val), v(tmp))
            k.emit("v_add_f32", v(val), v(val), v(tmp))

        k.emit("v_add_f32", v(A), v(X8), v(X8 + 1))
        for i in range(2, 8):
            k.emit("v_add_f32", v(A), v(A), v(X8 + i))
        allreduce(A, B)
        k.emit("v_mul_f32", v(A), f32(1.0 / 512), v(A))
        k.emit("v_sub_f32", v(C), v(X8), v(A))
        k.emit("v_mul_f32", v(D), v(C), v(C))
        for i in range(1, 8):
            k.emit("v_sub_f32", v(C), v(X8 + i), v(A))
            k.emit("v_fmac_f32", v(D), v(C), v(C))
        allreduce(D, B)
        k.emit("v_mul_f32", v(D), f32(1.0 / 512), v(D))
        k.emit("v_cvt_pk_bf16_f32", v(E), v(A), v(D))
        k.emit("v_lshlrev_b32", v(A), 16, v(E))
        k.emit("v_and_b32", v(D), 0xFFFF0000, v(E))
        k.emit("v_add_f32", v(D), f32(1e-5), v(D))
        k.emit("v_cvt_pk_bf16_f32", v(E), v(D), v(D))
        k.emit("v_lshlrev_b32", v(D), 16, v(E))
        k.emit("v_sqrt_f32", v(D), v(D))
        k.emit("v_cvt_pk_bf16_f32", v(E), v(D), v(D))
        k.emit("v_lshlrev_b32", v(D), 16, v(E))
        k.emit("v_rcp_f32", v(D), v(D))
        R4 = L + 24
        for i in range(4):
            k.emit("v_sub_f32", v(B), v(X8 + 2 * i), v(A))
            k.emit("v_sub_f32", v(C), v(X8 + 1 + 2 * i), v(A))
            k.emit("v_cvt_pk_bf16_f32", v(E), v(B), v(C))
            k.emit("v_lshlrev_b32", v(B), 16, v(E))
            k.emit("v_and_b32", v(C), 0xFFFF0000, v(E))
            k.emit("v_mul_f32", v(B), v(B), v(D))
            k.emit("v_mul_f32", v(C), v(C), v(D))
            k.emit("v_cvt_pk_bf16_f32", v(R4 + i), v(B), v(C))
        k.emit("v_lshrrev_b32", v(L + 1), 1, v(LANE))
        k.emit("v_lshlrev_b32", v(L + 1), 10, v(L + 1))
        k.emit("v_and_b32", v(L + 2), 1, v(LANE))
        k.emit("v_lshl_add_u32", v(L + 1), v(L + 2), 9, v(L + 1))
        k.emit("s_lshr_b32", s(58), s(57), 5)
        k.emit("s_lshl_b32", s(58), s(58), 15)
        k.emit("s_and_b32", s(57), s(57), 31)
        k.emit("s_lshl_b32", s(57), s(57), 4)
        k.emit("s_add_u32", s(58), s(58), s(57))
        so = k.emit("buffer_store_dwordx4", v(R4, 4), v(L + 1), s(XN, 4), s(58), mods="offen sc1")
        dma_stage(0)
        dma_stage(1)
        dma_stage(2)
        dma_stage(3)
        k.wait_vm(so)
        k.emit("s_barrier")
        k.srd(80, 86, 256)
        k.emit("s_lshl_b32", s(58), s(50), 5)
        k.emit("v_mov_b32", v(L), 0)
        k.emit("v_mov_b32", v(L + 1), 1)
        k.emit("s_cmp_lg_u32", s(48), 0)
        k.emit("s_cbranch_scc1", "L_at_nopoll")
        k.raw("    s_mov_b64 exec, 1")
        k.raw("    buffer_atomic_add v%d, v%d, s[80:83], s58 offen sc1" % (L + 1, L))
        k.raw("    s_mov_b32 s57, 0")
        k.label("L_at_poll")
        k.raw("    buffer_load_dword v%d, v%d, s[80:83], s58 offen sc1" % (L + 2, L))
        k.raw("    s_waitcnt vmcnt(0)")
        k.raw("    s_nop 1")
        k.raw("    v_readfirstlane_b32 s60, v%d" % (L + 2))
        k.raw("    s_nop 3")
        k.raw("    s_add_u32 s57, s57, 1")
        k.raw("    s_cmp_ge_u32 s60, 32")
        k.raw("    s_cbranch_scc1 L_at_polldone")
        k.raw("    s_sleep 1")
        k.raw("    s_cmp_lt_u32 s57, 0x40000")
        k.raw("    s_cbranch_scc1 L_at_poll")
        k.label("L_at_polldone")
        k.raw("    s_mov_b64 exec, -1")
        k.label("L_at_nopoll")
        k.nop(4)
        k.emit("s_barrier")
        xn_loads(0)
        xn_loads(1)
        ensure_stage(0, P1A)

    wfid = {}

    def p1_reads(step, i):
        st, t = divmod(step, 4)
        base = WF + 28 * (step & 1) + 4 * i
        for u in range(2):
            if i < 4:
                oid = k.emit("ds_read_b64_tr_b16", v(base + 2 * u, 2), v(VA + i), mods="offset:%d" % ((16 * t + 4 * u) * 256))
            else:
                oid = k.emit("ds_read_b64_tr_b16", v(base + 2 * u, 2), v(VF),
                             mods="offset:%d" % ((16 * t + 4 * u) * 96 + 32 * (i - 4)))
        wfid[(step, i)] = oid

    for i in range(7):
        p1_reads(0, i)
    for step in range(32):
        st, t = divmod(step, 4)
        if t == 0:
            flush_vm() if xn_last.get(st) is None else None
            k.wait_vm(xn_last[st])
        if t == 3:
            ensure_stage(st + 1, P1A if st < 7 else None)
        if step == int(os.environ.get("PREF3", "-1")):
            def pf3(i):
                if i == 0:
                    k.emit("v_lshlrev_b32", v(T0), 4, v(LANE))
                    k.emit("s_lshl_b32", s(96), s(50), 14)
                    k.emit("s_add_u32", s(96), s(96), s(SW2048))
                k.emit("buffer_load_dwordx4", v(232 + 4 * i, 4), v(T0), s(KS if i < 2 else VS, 4), s(96),
                       mods="offen offset:%d" % (1024 * (i % 2)))
            pend_vm.extend([lambda i=i: pf3(i) for i in range(4)])
        if step == 17 and os.environ.get("PREF2", "2") == "1":
            def pf(i):
                if i == 0:
                    k.emit("v_lshlrev_b32", v(T0), 4, v(LANE))
                if i == 4:
                    k.emit("s_add_u32", s(97), s(97), 4096)
                k.emit("buffer_load_dwordx4", v(232 + 4 * i, 4), v(T0), s(4, 4), s(97), mods="offen offset:%d" % (1024 * (i % 4)))
            pend_vm.extend([lambda i=i: pf(i) for i in range(6)])
        xb = XF + 16 * (st % 3) + 4 * t
        for i in range(7):
            k.wait_lg(wfid[(step, i)])
            acc = ACCQ + 16 * i if i < 4 else ACCF + 16 * (i - 4)
            c = v(acc, 16) if step > 0 else "0"
            k.emit("v_mfma_f32_32x32x16_bf16", v(acc, 16), v(WF + 28 * (step & 1) + 4 * i, 4), v(xb, 4), c)
            if step < 31:
                p1_reads(step + 1, i)
            if i in (1, 4):
                pump()

    stamp("p1end")
    for r in range(64):
        k.emit("v_mul_f32", v(ACCQ + r), f32(LOG2E / (128.0 ** 0.5)), v(ACCQ + r))
    for dt in range(4):
        for p in range(8):
            k.emit("v_cvt_pk_bf16_f32", v(QF + 8 * dt + p), v(ACCQ + 16 * dt + 2 * p), v(ACCQ + 16 * dt + 2 * p + 1))
    k.emit("v_lshrrev_b32", v(T3), 5, v(LANE))
    k.emit("v_and_b32", v(T0), 15, v(LANE))
    k.emit("v_and_b32", v(T1), 31, v(LANE))
    k.emit("v_lshlrev_b32", v(T1), 8, v(T1))
    k.emit("v_add_u32", v(T1), (8 % NSLOT) * SLOT, v(T1))
    for t in range(8):
        k.emit("v_add_u32", v(T2), 2 * t, v(T3))
        k.emit("v_xor_b32", v(T2), v(T2), v(T0))
        k.emit("v_lshl_add_u32", v(KA + t), v(T2), 4, v(T1))
    kfid = {}

    def k_read(j, t):
        oid = k.emit("ds_read_b128", v(KF + 4 * t, 4), v(KA + t), mods="offset:%d" % ((j % 2) * 8192))
        kfid[(j, t)] = oid

    for t in range(8):
        k_read(0, t)
    k.emit("s_mul_i32", s(57), s(48), H_RGS)
    k.emit("v_lshl_add_u32", v(T3), v(LANE), 4, s(57))
    CG = -2.0 * 0.7978845608028654 * LOG2E
    k.emit("s_mov_b32", s(62), f32(0.044715))
    k.emit("s_mov_b32", s(63), f32(CG))
    ET = VFR
    for blk in range(3):
        a = ACCF + 16 * blk
        for r in range(8):
            k.emit("v_mul_f32", v(ET + r), v(a + r), v(a + r))
        for r in range(8):
            k.emit("v_fma_f32", v(ET + r), v(ET + r), s(62), "1.0")
        for r in range(8):
            k.emit("v_mul_f32", v(ET + r), v(ET + r), v(a + r))
        for r in range(8):
            k.emit("v_mul_f32", v(ET + r), s(63), v(ET + r))
        for r in range(8):
            k.emit("v_exp_f32", v(ET + r), v(ET + r))
        for r in range(8):
            k.emit("v_add_f32", v(ET + r), "1.0", v(ET + r))
        for r in range(8):
            k.emit("v_rcp_f32", v(ET + r), v(ET + r))
        for r in range(8):
            k.emit("v_mul_f32", v(ET + r), v(ET + r), v(a + r))
        for r in range(8):
            k.emit("v_mul_f32", v(ET + r), v(ET + r), v(a + 8 + r))
        pk = ET + 16 + 4 * blk
        for p in range(4):
            k.emit("v_cvt_pk_bf16_f32", v(pk + p), v(ET + 2 * p), v(ET + 2 * p + 1))
        k.emit("s_lshl_b32", s(61), s(49), 10)
        k.emit("s_add_u32", s(61), s(61), 32768 * blk)
        if blk == 2:
            k.emit("s_cmp_lt_u32", s(49), 22)
            k.emit("s_cselect_b32", s(64), -1, 0)
            for p in range(4):
                k.emit("v_and_b32", v(pk + p), s(64), v(pk + p))
            k.emit("s_cmp_lt_u32", s(49), 24)
            k.emit("s_cselect_b32", s(61), s(61), 0x7FFFFFF0)
        k.emit("buffer_store_dwordx4", v(pk, 4), v(T3), s(HS, 4), s(61), mods="offen" + os.environ.get("HMOD", " sc1"))

    stamp("p2start")
    KAR = [KA + t for t in range(8)]
    VAR = [VA + dt for dt in range(4)]
    CS = LOG2E / (128.0 ** 0.5)
    TLAZY = 16.0
    k.emit("s_mov_b32", s(62), f32(CS))
    k.emit("s_mov_b32", s(63), f32(TLAZY / CS))
    k.emit("s_mov_b32", s(94), f32(CS))
    k.emit("s_mov_b32", s(95), f32(CS))
    k.emit("v_lshrrev_b32", v(T3), 5, v(LANE))
    k.emit("v_lshlrev_b32", v(T3), 10, v(T3))
    dlt = ((8 % NSLOT) - (7 % NSLOT)) * SLOT + 16384
    for dt in range(4):
        k.emit("v_sub_u32", v(VA + dt), v(VA + dt), v(T3))
        k.emit("v_add_u32", v(VA + dt), dlt & 0xFFFFFFFF, v(VA + dt))
    k.emit("v_mov_b32", v(SUM0), 0)
    k.emit("v_mov_b32", v(SUM1), 0)
    vfid = {}
    vstage = {"cur": 8}

    def wait_lg_safe(oid):
        if oid not in k.lgq:
            return
        n = len(k.lgq) - 1 - k.lgq.index(oid)
        if n > 15:
            k.emit("s_waitcnt", "lgkmcnt(15)")
            k.lgq = k.lgq[-15:]
            return
        k.wait_lg(oid)

    def v_read(j, f):
        st = 8 + j // 2
        if st > vstage["cur"]:
            delta = ((st % NSLOT) - ((st - 1) % NSLOT)) * SLOT
            for r in VAR:
                k.emit("v_add_u32", v(r), delta & 0xFFFFFFFF, v(r))
            vstage["cur"] = st
        t, dt = divmod(f, 4)
        base = VFR + 4 * f
        for u in range(2):
            oid = k.emit("ds_read_b64_tr_b16", v(base + 2 * u, 2), v(VA + dt),
                         mods="offset:%d" % ((32 * (j % 2) + 16 * t + 8 * u) * 256))
        vfid[(j, f)] = oid

    def k_read2(j, t):
        st = 8 + j // 2
        if st > state["ready"]:
            ensure_stage(st, KAR)
        k_read(j, t)

    W2 = os.environ.get("W2", "1") == "1"

    def qk_mfma(j, t):
        wait_lg_safe(kfid[(j, t | 1)] if W2 else kfid[(j, t)])
        a = SACC + 16 * (j & 1)
        c = v(a, 16) if t > 0 else ("0" if j == 0 else v(TMP, 16))
        k.emit("v_mfma_f32_32x32x16_bf16", v(a, 16), v(KF + 4 * t, 4), v(QF + 4 * t, 4), c)

    def pv_mfma(j, f):
        t, dt = divmod(f, 4)
        wait_lg_safe(vfid[(j, f | 1)] if W2 else vfid[(j, f)])
        a = OACC + 16 * dt
        c = v(a, 16) if (j > 0 or t > 0) else "0"
        k.emit("v_mfma_f32_32x32x16_bf16", v(a, 16), v(VFR + 4 * f, 4), v(PP + 8 * (j & 1) + 4 * t, 4), c)

    def max_ops(j):
        a = SACC + 16 * (j & 1)
        ops = [lambda: k.emit("v_max3_f32", v(MT), v(a), v(a + 1), v(a + 2))]
        for p in range(6):
            ops.append(lambda p=p: k.emit("v_max3_f32", v(MT), v(a + 3 + 2 * p), v(a + 4 + 2 * p), v(MT)))
        ops.append(lambda: k.emit("v_max_f32", v(MT), v(a + 15), v(MT)))
        return ops

    def exp_ops(j, p):
        a = SACC + 16 * (j & 1)
        lo = a + 2 * p
        hi = lo + 1
        return [
            lambda: k.emit("v_exp_f32", v(lo), v(lo)),
            lambda: k.emit("v_exp_f32", v(hi), v(hi)),
            lambda: k.emit("v_add_f32", v(SUM0), v(SUM0), v(lo)),
            lambda: k.emit("v_add_f32", v(SUM1), v(SUM1), v(hi)),
            lambda: k.emit("v_cvt_pk_bf16_f32", v(PP + 8 * (j & 1) + p), v(lo), v(hi)),
        ]

    def new_ref(j):
        first = j == 0
        a = SACC + 16 * (j & 1)
        k.emit("v_mov_b32", v(FT), v(MT))
        k.emit("v_permlane32_swap_b32", v(MT), v(FT))
        k.emit("v_max_f32", v(MT), v(MT), v(FT))
        if not first:
            k.emit("v_max_f32", v(MT), 0, v(MT))
        for r in range(16):
            k.emit("v_sub_f32", v(a + r), v(a + r), v(MT))
        for r in range(16):
            if first:
                k.emit("v_sub_f32", v(TMP + r), 0, v(MT))
            else:
                k.emit("v_sub_f32", v(TMP + r), v(TMP + r), v(MT))
        if not first:
            k.emit("v_sub_f32", v(FF), 0, v(MT))
            k.emit("v_exp_f32", v(FF), v(FF))

    rare = []
    for t in range(8):
        qk_mfma(0, t)
    for j in range(16):
        mops = max_ops(j)
        for f in range(8):
            if j >= 1:
                pv_mfma(j - 1, f)
            if j + 1 <= 15:
                k_read2(j + 1, f)
            if f in (1, 5):
                pump()
            if f >= 3 or j == 0:
                for _ in range(2):
                    if mops:
                        mops.pop(0)()
        while mops:
            mops.pop(0)()
        if j == 0:
            new_ref(0)
        else:
            k.emit("v_cmp_lt_f32", "vcc", f32(TLAZY), v(MT))
            k.nop(5)
            k.emit("s_cbranch_vccnz", "L_at_rare%d" % j)
            k.label("L_at_back%d" % j)
            rare.append(j)
        for f in range(8):
            if j + 1 <= 15:
                qk_mfma(j + 1, f)
            v_read(j, f)
            for op in exp_ops(j, f):
                op()
    for f in range(8):
        pv_mfma(15, f)

    stamp("p3end")
    k.emit("v_add_f32", v(SUM0), v(SUM0), v(SUM1))
    k.emit("v_mov_b32", v(SUM1), v(SUM0))
    k.emit("v_permlane32_swap_b32", v(SUM0), v(SUM1))
    k.emit("v_add_f32", v(SUM0), v(SUM0), v(SUM1))
    k.emit("v_rcp_f32", v(SUM0), v(SUM0))
    k.emit("s_lshl_b32", s(57), s(48), 18)
    k.emit("v_lshl_add_u32", v(T3), v(LANE), 4, s(57))
    k.emit("s_mov_b32", s(61), 4096)
    for dt in range(4):
        for a2 in range(2):
            base = OACC + 16 * dt + 8 * a2
            for r in range(8):
                k.emit("v_mul_f32", v(base + r), v(base + r), v(SUM0))
            pk = KF + 4 * (2 * dt + a2)
            for p in range(4):
                k.emit("v_cvt_pk_bf16_f32", v(pk + p), v(base + 2 * p), v(base + 2 * p + 1))
            blk = 2 * dt + a2
            k.emit("buffer_store_dwordx4", v(pk, 4), v(T3), s(OS, 4), s(61) if blk >= 4 else 0,
                   mods="offen offset:%d" % (1024 * (blk % 4)) + os.environ.get("OMOD", " sc1"))
    if STAMP:
        k.wait_vm0()
        stamp("end")
        k.srd(XN, 10, 1 << 20, add=60 << 20)
        k.emit("s_lshl_b32", s(57), s(2), 3)
        k.emit("s_add_u32", s(57), s(57), s(48))
        k.emit("s_lshl_b32", s(57), s(57), 7)
        k.emit("v_mov_b32", v(T0), 0)
        for i in range(len(stamps)):
            k.emit("v_mov_b32", v(T1), s(66 + i))
            k.emit("buffer_store_dword", v(T1), v(T0), s(XN, 4), s(57), mods="offen offset:%d" % (4 * i))
        print("STAMPS", stamps)
    k.emit("s_branch", "L_at_end")
    for j in rare:
        k.label("L_at_rare%d" % j)
        k.nop(16)
        new_ref(j)
        for r in range(64):
            k.emit("v_mul_f32", v(OACC + r), v(OACC + r), v(FF))
        k.emit("v_mul_f32", v(SUM0), v(SUM0), v(FF))
        k.emit("v_mul_f32", v(SUM1), v(SUM1), v(FF))
        k.nop(4)
        k.emit("s_branch", "L_at_back%d" % j)
    k.label("L_at_end")
    return k, 256, 100
```
